```python
import torch

def _softmax(x, axis=-1):
    return torch.softmax(x, dim=axis)
def _gelu(x):
    return torch.nn.functional.gelu(x, approximate="tanh")
def _silu(x):
    return torch.nn.functional.silu(x)
def _sigmoid(x):
    return torch.sigmoid(x)
def _layernorm(x, axis=-1, eps=1e-5):
    m = x.mean(dim=axis, keepdim=True)
    v = x.var(dim=axis, keepdim=True, unbiased=False)
    return (x - m) / torch.sqrt(v + eps)
def _scatter_add(tgt, idx, src, axis=0):
    return tgt.clone().index_add_(axis, idx, src)
def _segment_sum(src, seg, n):
    out = torch.zeros((n,) + src.shape[1:], dtype=src.dtype)
    return out.index_add_(0, seg, src)
def _pad(x, pw):
    flat = tuple(v for pair in reversed(pw) for v in pair)
    return torch.nn.functional.pad(x, flat)

kernel_name = 'standalone__gqa_block_cached__near_ridge'

def setup_inputs():

    _w = (lambda a: (lambda t: t.to(torch.bfloat16) if t.is_floating_point() else t)(torch.as_tensor(a)))
    B, Sq, D = 16, 80, 576
    Hq, Hkv, Sk, Dh = 32, 16, 1024, 128
    assert Hq % Hkv == 0, (Hq, Hkv)
    return {
        "x": _w((lambda *s: torch.randn(*s, dtype=torch.bfloat16) * 0.8)(B, Sq, D)),
        "k_cache": _w((lambda *s: torch.randn(*s, dtype=torch.bfloat16) * 0.8)(B, Hkv, Sk, Dh)),
        "v_cache": _w((lambda *s: torch.randn(*s, dtype=torch.bfloat16) * 0.05)(B, Hkv, Sk, Dh)),
        "wq": _w((lambda *s: torch.randn(*s, dtype=torch.bfloat16) * 0.8)(D, Hq * Dh) * (D ** -0.5)),
        "wo": _w((lambda *s: torch.randn(*s, dtype=torch.bfloat16) * 0.05)(Hq * Dh, D) * ((Hq * Dh) ** -0.5)),
    }

def reference(x, k_cache, v_cache, wq, wo):
    B, Sq, D = x.shape
    Hq, Dh = 32, 128
    Hkv = k_cache.shape[1]
    rep = Hq // Hkv
    q = (lambda x, *d: x.permute(*d))((x @ wq).reshape(B, Sq, Hq, Dh), 0, 2, 1, 3)
    k = (lambda x, n, axis: torch.repeat_interleave(x, n, dim=axis))(k_cache, rep, axis=1)
    v = (lambda x, n, axis: torch.repeat_interleave(x, n, dim=axis))(v_cache, rep, axis=1)
    scores = torch.einsum("bhqd,bhkd->bhqk", q, k) * (Dh ** -0.5)
    p = _softmax(scores, axis=-1)
    o = torch.einsum("bhqk,bhkd->bhqd", p, v)
    return (lambda x, *d: x.permute(*d))(o, 0, 2, 1, 3).reshape(B, Sq, Hq * Dh) @ wo
```

```python
import sys, struct, argparse

NAME = "standalone__gqa_block_cached__near_ridge"

def f32bits(x):
    return struct.unpack("<I", struct.pack("<f", x))[0]

class G:
    def __init__(self):
        self.L = []
    def __call__(self, s):
        self.L.append("    " + s)
    def lab(self, s):
        self.L.append(s + ":")
    def raw(self, s):
        self.L.append(s)
    def c(self, s):
        self.L.append("    ; " + s)

def vr(a, n):
    return f"v[{a}:{a+n-1}]" if n > 1 else f"v{a}"
def sr(a, n):
    return f"s[{a}:{a+n-1}]" if n > 1 else f"s{a}"

S_X, S_K, S_V, S_WQ, S_WO, S_WS, S_OUT = 8, 12, 16, 20, 24, 28, 32
S_HKV, S_B, S_WAVE = 36, 37, 38
S_T0, S_T1, S_T2, S_T3 = 39, 40, 41, 42
S_I, S_SLOT, S_DELTA = 43, 44, 45
S_THR, S_SCALE, S_SELLO, S_SELHI = 46, 47, 48, 49
S_E = 50
S_SOFF, S_M0 = 58, 59
S_KVBASE = 60
S_STAMP = 64
SLOT = 32768
XBASE = 65536
QB = 163840 - 40960
OFB = 0
STAMP_OFF = 0x8000000
NSTAMP = 12

def build(opt):
    g = G()
    stamps = opt.stamps
    def stamp(i):
        if stamps:
            g(f"s_memrealtime {sr(S_STAMP+2*i,2)}")
    hdr = []
    hdr.append(f"; @launch kernel={NAME}_kernel grid=(256,1,1) block=(512,1,1) lds=163840")
    hdr.append(f"; @launch kernel=reduce_kernel grid=(184,1,1) block=(512,1,1) lds=0")
    for h in hdr: g.raw(h)
    g.raw('.amdgcn_target "amdgcn-amd-amdhsa--gfx950"')
    g.raw(".text")
    g.raw(f".globl {NAME}_kernel")
    g.raw(".p2align 8")
    g.raw(f".type {NAME}_kernel,@function")
    g.lab(f"{NAME}_kernel")
    g("s_cmp_ge_u32 s2, 256")
    g("s_cbranch_scc1 L_end")
    g("s_load_dwordx16 s[64:79], s[0:1], 0")
    g("v_lshrrev_b32 v1, 6, v0")
    g("s_and_b32 s36, s2, 7")
    g("v_readfirstlane_b32 s38, v1")
    g("s_lshl_b32 s36, s36, 1")
    g("s_bfe_u32 s39, s2, 0x10003")
    g("s_add_u32 s36, s36, s39")
    g("s_lshr_b32 s37, s2, 4")
    g("v_and_b32 v0, 63, v0")
    g("s_waitcnt lgkmcnt(0)")
    for (d, src, size) in ((S_X, 64, 1474560), (S_K, 66, 67108864), (S_V, 68, 67108864), (S_WQ, 70, 4718592),
                           (S_WO, 72, 4718592), (S_OUT, 74, 1474560), (S_WS, 78, 268435456)):
        g(f"s_mov_b32 s{d}, s{src}")
        g(f"s_mov_b32 s{d+1}, s{src+1}")
        g(f"s_mov_b32 s{d+2}, {size}")
        g(f"s_mov_b32 s{d+3}, 0x20000")
    stamp(0)
    g(f"s_lshl_b32 s{S_KVBASE}, s{S_B}, 4")
    g(f"s_add_u32 s{S_KVBASE}, s{S_KVBASE}, s{S_HKV}")
    g(f"s_lshl_b32 s{S_KVBASE}, s{S_KVBASE}, 18")
    g(f"s_cmp_lt_u32 s{S_WAVE}, 4")
    g("s_cbranch_scc1 L_qproj")
    g(f"s_cmp_eq_u32 s{S_WAVE}, 5")
    g("s_cbranch_scc1 L_kload")
    g(f"s_cmp_eq_u32 s{S_WAVE}, 6")
    g("s_cbranch_scc1 L_vload")

    g.c("x loader")
    g(f"s_cmp_eq_u32 s{S_WAVE}, 7")
    g(f"s_cselect_b32 s{S_T0}, 1, 0")
    g("v_lshrrev_b32 v1, 3, v0")
    g(f"s_lshl_b32 s{S_T1}, s{S_T0}, 3")
    g(f"v_add_u32 v1, s{S_T1}, v1")
    g("v_lshrrev_b32 v2, 1, v1")
    g("v_and_b32 v3, 7, v0")
    g("v_xor_b32 v2, v2, v3")
    g("v_lshlrev_b32 v2, 4, v2")
    g("v_mul_u32_u24 v1, 1152, v1")
    g("v_add_u32 v1, v1, v2")
    g(f"s_mul_i32 s{S_SOFF}, s{S_B}, 92160")
    g(f"s_lshl_b32 s{S_T1}, s{S_T0}, 10")
    g(f"s_add_u32 m0, s{S_T1}, {XBASE}")
    g(f"s_mov_b32 s{S_I}, 0")
    g.lab("L_xloop")
    for t in range(5):
        g(f"s_add_u32 s{S_T2}, s{S_SOFF}, {t*18432}")
        g(f"buffer_load_dwordx4 v1, {sr(S_X,4)}, s{S_T2} offen lds")
        g("s_add_u32 m0, m0, 2048")
    g(f"s_add_u32 s{S_SOFF}, s{S_SOFF}, 128")
    g(f"s_add_u32 s{S_I}, s{S_I}, 1")
    g(f"s_cmp_lt_u32 s{S_I}, 9")
    g("s_cbranch_scc1 L_xloop")
    g("s_waitcnt vmcnt(30)")
    g("s_barrier")
    g("s_waitcnt vmcnt(15)")
    g("s_barrier")
    g("s_waitcnt vmcnt(0)")
    g("s_barrier")
    g("s_barrier")
    g(f"s_cmp_eq_u32 s{S_WAVE}, 4")
    g("s_cbranch_scc1 L_qdone")
    g("s_barrier")
    g("s_barrier")
    g(f"s_mov_b32 s{S_I}, 0")
    g.lab("L_idle")
    g("s_barrier")
    g(f"s_add_u32 s{S_I}, s{S_I}, 1")
    g(f"s_cmp_lt_u32 s{S_I}, 16")
    g("s_cbranch_scc1 L_idle")
    g("s_branch L_oproj")

    def loader(isV):
        nm = "v" if isV else "k"
        srd = S_V if isV else S_K
        g.lab(f"L_{nm}load")
        g("v_lshrrev_b32 v1, 4, v0")
        g("v_and_b32 v2, 15, v0")
        for a in range(4):
            if isV:
                if a == 0:
                    g("v_lshlrev_b32 v3, 2, v1")
                    g("v_xor_b32 v3, v3, v2")
                    g("v_lshlrev_b32 v3, 4, v3")
                    g("v_lshl_add_u32 v4, v1, 8, v3")
            else:
                g(f"v_add_u32 v3, {4*a}, v1")
                g("v_xor_b32 v3, v3, v2")
                g("v_lshlrev_b32 v3, 4, v3")
                g(f"v_lshl_add_u32 v{4+a}, v1, 8, v3")
        def voff(a):
            return "v4" if isV else f"v{4+a}"
        hp = 1 if isV else 0
        g("v_lshrrev_b32 v1, 3, v0")
        g("v_bfe_u32 v2, v0, 4, 1")
        if hp: g("v_or_b32 v2, 2, v2")
        g("v_bfe_u32 v3, v0, 1, 2")
        g("v_xor_b32 v2, v2, v3")
        g("v_lshlrev_b32 v2, 5, v2")
        g("v_and_b32 v3, 1, v0")
        g("v_lshl_add_u32 v2, v3, 4, v2")
        g("v_mul_u32_u24 v1, 1152, v1")
        g("v_add_u32 v8, v1, v2")
        for a in range(1, 4):
            g(f"v_add_u32 v{8+a}, {a*8192}, v8")
        def issue_tile_imm(tile):
            stage = tile + (1 if isV else 0)
            lds = (stage % 5) * SLOT + (16384 if isV else 0)
            for q in range(4):
                g(f"s_mov_b32 m0, {lds + q*4096}")
                g(f"s_add_u32 s{S_T0}, s{S_KVBASE}, {tile*16384 + q*4096}")
                for a in range(4):
                    g(f"buffer_load_dwordx4 {voff(a)}, {sr(srd,4)}, s{S_T0} offen offset:{a*1024} nt lds")
        def issue_tile_dyn():
            g(f"s_mov_b32 m0, s{S_M0}")
            for q in range(4):
                if q:
                    g(f"s_add_u32 m0, m0, 4096")
                    g(f"s_add_u32 s{S_SOFF}, s{S_SOFF}, 4096")
                else:
                    g("s_nop 0")
                for a in range(4):
                    g(f"buffer_load_dwordx4 {voff(a)}, {sr(srd,4)}, s{S_SOFF} offen offset:{a*1024} nt lds")
            g(f"s_add_u32 s{S_SOFF}, s{S_SOFF}, 4096")
        def issue_wo(c):
            lds = ((c + 2) % 5) * SLOT + hp * 16384
            for q in range(4):
                g(f"s_mov_b32 m0, {lds + q*4096}")
                g(f"s_add_u32 s{S_T0}, s{S_T1}, {c*128 + q*4*9216}")
                for a in range(4):
                    g(f"buffer_load_dwordx4 v{8+a}, {sr(S_WO,4)}, s{S_T0} offen offset:{a*1024} lds")
        if isV:
            issue_tile_imm(0)
        else:
            issue_tile_imm(0); issue_tile_imm(1)
        g("s_barrier"); g("s_barrier"); g("s_barrier")
        g("s_barrier")
        if isV:
            issue_tile_imm(1)
        else:
            issue_tile_imm(2); issue_tile_imm(3)
        g("s_barrier")
        if not isV:
            g("s_waitcnt vmcnt(48)")
        g("s_barrier")
        if isV:
            issue_tile_imm(2); issue_tile_imm(3)
        else:
            issue_tile_imm(4)
        first_next_tile = 4 if isV else 5
        g(f"s_add_u32 s{S_SOFF}, s{S_KVBASE}, {first_next_tile*16384}")
        g(f"s_mov_b32 s{S_M0}, {16384 if isV else 0}")
        g(f"s_mov_b32 s{S_I}, 0")
        nloop = 12 if isV else 11
        g.lab(f"L_{nm}loop")
        g("s_waitcnt vmcnt(48)")
        g("s_barrier")
        issue_tile_dyn()
        g(f"s_add_u32 s{S_M0}, s{S_M0}, {SLOT}")
        g(f"s_cmp_ge_u32 s{S_M0}, {5*SLOT}")
        g(f"s_cselect_b32 s{S_T0}, {5*SLOT}, 0")
        g(f"s_sub_u32 s{S_M0}, s{S_M0}, s{S_T0}")
        g(f"s_add_u32 s{S_I}, s{S_I}, 1")
        g(f"s_cmp_lt_u32 s{S_I}, {nloop}")
        g(f"s_cbranch_scc1 L_{nm}loop")
        g(f"s_mul_i32 s{S_T1}, s{S_HKV}, {256*1152}")
        if hp: g(f"s_add_u32 s{S_T1}, s{S_T1}, {128*1152}")
        laststage = 16 if isV else 15
        q = list(range(nloop + 1, laststage + 1))
        for i in range(nloop, 16):
            need = i + 1
            if need in q:
                after = len(q) - 1 - q.index(need)
                g(f"s_waitcnt vmcnt({16*after})")
                q = q[q.index(need)+1:]
            g("s_barrier")
            c = i - 12
            if 0 <= c <= 2:
                issue_wo(c); q.append(100 + c)
        g("s_waitcnt vmcnt(0)")
        g("s_branch L_oproj")
    loader(False)
    loader(True)

    ACC, XF, AF, RAW, VQ, XA = 0, 80, 120, 152, 248, 249
    def acc(j, t): return ACC + (j*5 + t)*4
    g.lab("L_qproj")
    g("v_and_b32 v1, 15, v0")
    g("v_lshrrev_b32 v2, 4, v0")
    g(f"v_lshlrev_b32 v{VQ}, 16, v2")
    g(f"v_lshl_add_u32 v{VQ}, v1, 3, v{VQ}")
    g(f"s_lshl_b32 s{S_T0}, s{S_HKV}, 9")
    g(f"s_lshl_b32 s{S_T1}, s{S_WAVE}, 7")
    g(f"s_add_u32 s{S_E}, s{S_T0}, s{S_T1}")
    for e in range(1, 8):
        g(f"s_add_u32 s{S_E+e}, s{S_E}, {e*8192}")
    def wq_loads(pd):
        out = []
        for e in range(8):
            out.append(f"buffer_load_dwordx2 {vr(RAW+pd*16+e*2,2)}, v{VQ}, {sr(S_WQ,4)}, s{S_E+e} offen")
        out.append(f"v_add_u32 v{VQ}, 0x40000, v{VQ}")
        return out
    for pd in range(6):
        for s in wq_loads(pd): g(s)
    g("v_lshrrev_b32 v3, 1, v1")
    g("v_xor_b32 v3, v3, v2")
    g("v_lshlrev_b32 v3, 4, v3")
    g(f"v_lshl_add_u32 v{XA}, v1, 7, v3")
    g(f"v_add_u32 v{XA}, {XBASE}, v{XA}")
    g(f"v_xor_b32 v{XA+1}, 64, v{XA}")
    g(f"s_mov_b32 s{S_SELLO}, 0x05040100")
    g(f"s_mov_b32 s{S_SELHI}, 0x07060302")
    for r in range(80): g(f"v_mov_b32 v{ACC+r}, 0")
    def perms(pd, ab):
        out = []
        for j in range(4):
            for r in range(4):
                a = RAW + pd*16 + (2*r)*2 + (j >> 1)
                b = RAW + pd*16 + (2*r+1)*2 + (j >> 1)
                sel = S_SELHI if (j & 1) else S_SELLO
                out.append(f"v_perm_b32 v{AF+ab*16+j*4+r}, v{b}, v{a}, s{sel}")
        return out
    def xreads(ks, xb):
        kp, sub = ks >> 1, ks & 1
        return [f"ds_read_b128 {vr(XF+xb*20+t*4,4)}, v{XA+sub} offset:{(kp*5+t)*2048}" for t in range(5)]
    g("s_waitcnt vmcnt(40)")
    for s in perms(0, 0): g(s)
    for s in wq_loads(0): g(s)
    g("s_barrier")
    stamp(1)
    for s in xreads(0, 0): g(s)
    g(f"s_mov_b32 s{S_I}, 0")
    g.lab("L_qloop")
    for ks in range(6):
        cur = ks & 1; nxt = cur ^ 1
        pdn = (ks + 1) % 6
        fill = []
        g("s_waitcnt lgkmcnt(0)")
        if ks == 5:
            g(f"s_cmp_lt_u32 s{S_I}, 2")
            g(f"s_cselect_b32 s{S_T0}, 30720, 0")
            g(f"v_add_u32 v{XA}, s{S_T0}, v{XA}")
            g(f"v_add_u32 v{XA+1}, s{S_T0}, v{XA+1}")
            g("s_barrier")
        fill += xreads((ks + 1) % 6, nxt)
        fill += ["s_waitcnt vmcnt(40)"]
        fill += perms(pdn, nxt)
        fill += wq_loads(pdn)
        n = 0
        per = [2,2,2,2,2,2,2,2,2,2,2,1,1,1,1,1,1,1,1,2]
        k = 0
        for j in range(4):
            for t in range(5):
                g(f"v_mfma_f32_16x16x32_bf16 {vr(acc(j,t),4)}, {vr(AF+cur*16+j*4,4)}, {vr(XF+cur*20+t*4,4)}, {vr(acc(j,t),4)}")
                for _ in range(per[n]):
                    if k < len(fill): g(fill[k]); k += 1
                n += 1
        while k < len(fill): g(fill[k]); k += 1
    g(f"s_add_u32 s{S_I}, s{S_I}, 1")
    g(f"s_cmp_lt_u32 s{S_I}, 3")
    g("s_cbranch_scc1 L_qloop")
    stamp(2)
    g(f"s_mov_b32 s{S_SCALE}, {hex(f32bits(1.4426950408889634 * 128 ** -0.5))}")
    g("v_mbcnt_lo_u32_b32 v252, -1, 0")
    g("v_mbcnt_hi_u32_b32 v252, -1, v252")
    g("v_and_b32 v253, 15, v252")
    g("v_lshrrev_b32 v254, 4, v252")
    g(f"s_and_b32 s{S_T0}, s{S_WAVE}, 1")
    g(f"s_lshl_b32 s{S_T0}, s{S_T0}, 12")
    g(f"s_lshr_b32 s{S_T1}, s{S_WAVE}, 1")
    g(f"s_lshl_b32 s{S_T1}, s{S_T1}, 8")
    g(f"s_add_u32 s{S_T0}, s{S_T0}, s{S_T1}")
    g(f"s_add_u32 s{S_T0}, s{S_T0}, {QB}")
    g("v_lshlrev_b32 v254, 10, v254")
    g("v_lshl_add_u32 v254, v253, 4, v254")
    g(f"v_add_u32 v254, s{S_T0}, v254")
    g("s_waitcnt vmcnt(0) lgkmcnt(0)")
    for r in range(80): g(f"v_mul_f32 v{ACC+r}, s{S_SCALE}, v{ACC+r}")
    for t in range(5):
        for h in range(2):
            d = XF + ((t*2+h) % 4)*4
            for rr in range(2):
                r = 2*h + rr
                g(f"v_cvt_pk_bf16_f32 v{d+2*rr}, v{acc(0,t)+r}, v{acc(1,t)+r}")
                g(f"v_cvt_pk_bf16_f32 v{d+2*rr+1}, v{acc(2,t)+r}, v{acc(3,t)+r}")
            g(f"ds_write_b128 v254, {vr(d,4)} offset:{t*8192+h*512}")
            if (t*2+h) % 4 == 3: g("s_waitcnt lgkmcnt(0)")
    g("s_waitcnt lgkmcnt(0)")
    g.lab("L_qdone")
    g("s_barrier")

    O, QF, NEGM, SB, PB, FB, TB, KA, VA = 0, 64, 96, 112, 144, 160, 192, 208, 216
    VL, VTS, VM, VT0, VT1, VT2, VLANE = 220, 221, 222, 223, 224, 225, 226
    g(f"v_mbcnt_lo_u32_b32 v{VLANE}, -1, 0")
    g(f"v_mbcnt_hi_u32_b32 v{VLANE}, -1, v{VLANE}")
    g(f"s_lshl_b32 s{S_T0}, s{S_WAVE}, 13")
    g(f"s_add_u32 s{S_T0}, s{S_T0}, {QB}")
    g(f"v_lshlrev_b32 v{VT0}, 4, v{VLANE}")
    g(f"v_add_u32 v{VT0}, s{S_T0}, v{VT0}")
    for s in range(8):
        g(f"ds_read_b128 {vr(QF+4*s,4)}, v{VT0} offset:{s*1024}")
    g(f"v_and_b32 v{VT1}, 15, v{VLANE}")
    g(f"v_lshrrev_b32 v{VT2}, 5, v{VLANE}")
    g(f"v_xor_b32 v{VT1}, v{VT1}, v{VT2}")
    g(f"v_lshlrev_b32 v{VT1}, 4, v{VT1}")
    g(f"v_and_b32 v{KA}, 31, v{VLANE}")
    g(f"v_lshl_add_u32 v{KA}, v{KA}, 8, v{VT1}")
    for s in range(1, 8):
        g(f"v_xor_b32 v{KA+s}, {s*32}, v{KA}")
    g(f"v_bfe_u32 v{VT1}, v{VLANE}, 2, 2")
    g(f"v_lshl_add_u32 v{VA}, v{VT2}, 2, v{VT1}")
    g(f"v_lshlrev_b32 v{VA}, 8, v{VA}")
    g(f"v_lshl_add_u32 v{VA}, v{VT1}, 6, v{VA}")
    g(f"v_bfe_u32 v{VT1}, v{VLANE}, 4, 1")
    g(f"v_lshl_add_u32 v{VA}, v{VT1}, 5, v{VA}")
    g(f"v_and_b32 v{VT1}, 3, v{VLANE}")
    g(f"v_lshl_add_u32 v{VA}, v{VT1}, 3, v{VA}")
    for dt in range(1, 4):
        g(f"v_xor_b32 v{VA+dt}, {dt*64}, v{VA}")
    for r in range(64): g(f"v_mov_b32 v{O+r}, 0")
    g(f"s_mov_b32 s{S_THR}, {hex(f32bits(65536.0))}")
    g(f"s_mov_b32 s{S_SLOT}, 0")
    g(f"s_mov_b32 s{S_DELTA}, {SLOT}")
    g("s_waitcnt lgkmcnt(0)")
    g("s_barrier")
    stamp(3)

    def fb(f): return FB + (f % 8)*4
    def rd_k(f, st, s):
        return [f"ds_read_b128 {vr(fb(f),4)}, v{KA+s} offset:{st*8192}"]
    def rd_v(f, st, ks, dt):
        base = 16384 + st*8192 + ks*4096
        return [f"ds_read_b64_tr_b16 {vr(fb(f),2)}, v{VA+dt} offset:{base}",
                f"ds_read_b64_tr_b16 {vr(fb(f)+2,2)}, v{VA+dt} offset:{base+2048}"]
    def mf_qk(f, sb, s, czero=False):
        c = ("0" if czero else vr(NEGM,16)) if s == 0 else vr(SB+sb*16,16)
        return f"v_mfma_f32_32x32x16_bf16 {vr(SB+sb*16,16)}, {vr(fb(f),4)}, {vr(QF+4*s,4)}, {c}"
    def mf_pv(f, pb, ks, dt):
        return f"v_mfma_f32_32x32x16_bf16 {vr(O+dt*16,16)}, {vr(fb(f),4)}, {vr(PB+pb*8+ks*4,4)}, {vr(O+dt*16,16)}"
    def frag_desc(n, qk=True):
        st = n >> 4; m = n & 15
        if m < 8:
            return rd_k(n, st, m), mf_qk(n, st, m)
        idx = m - 8
        return rd_v(n, st, idx >> 2, idx & 3), mf_pv(n, st, idx >> 2, idx & 3)
    def sm_exp(sb, r): return f"v_exp_f32 v{TB + (r % 4)}, v{SB+sb*16+r}"
    def sm_gap(sb, n):
        out = []
        if n + 1 <= 15: out.append(sm_exp(sb, n+1))
        if n == 1: out.append(f"v_add_f32 v{VTS}, v{TB+0}, v{TB+1}")
        elif n > 1: out.append(f"v_add_f32 v{VTS}, v{VTS}, v{TB+(n%4)}")
        if n & 1: out.append(f"v_cvt_pk_bf16_f32 v{PB+sb*8+(n>>1)}, v{TB+((n-1)%4)}, v{TB+(n%4)}")
        return out
    rare = []
    def sm_check(sb, tag):
        g(f"v_cmp_lt_f32 vcc, s{S_THR}, v{VTS}")
        g(f"s_cbranch_vccnz L_rare_{tag}")
        g.lab(f"L_back_{tag}")
        g(f"v_add_f32 v{VL}, v{VL}, v{VTS}")
        rare.append((sb, tag))
    def rowmax(sb, dst, tmp):
        S = SB + sb*16
        g(f"v_max3_f32 v{dst}, v{S}, v{S+1}, v{S+2}")
        for r in range(3, 15, 2):
            g(f"v_max3_f32 v{dst}, v{dst}, v{S+r}, v{S+r+1}")
        g(f"v_max_f32 v{dst}, v{dst}, v{S+15}")
        g(f"v_mov_b32 v{tmp}, v{dst}")
        g("s_nop 1")
        g(f"v_permlane32_swap_b32 v{dst}, v{tmp}")
        g("s_nop 1")
        g(f"v_max_f32 v{dst}, v{dst}, v{tmp}")

    class LQ:
        def __init__(self): self.q = []
        def issue(self, f, instrs):
            for s in instrs:
                g(s); self.q.append(f)
        def need(self, f):
            if f in self.q:
                last = len(self.q) - 1 - self.q[::-1].index(f)
                after = len(self.q) - 1 - last
                g(f"s_waitcnt lgkmcnt({after})")
                self.q = self.q[last+1:]
        def clear(self): self.q = []
    def addr_update_list():
        return [f"v_add_u32 v{KA+s}, s{S_DELTA}, v{KA+s}" for s in range(8)], \
               [f"v_add_u32 v{VA+d}, s{S_DELTA}, v{VA+d}" for d in range(4)]
    lq = LQ()
    for s in range(8): lq.issue(s, rd_k(s, 0, s))
    for s in range(8):
        lq.need(s)
        g(mf_qk(s, 0, s, czero=True))
        if s >= 1: lq.issue(8+s-1, rd_k(8+s-1, 1, s-1))
    lq.issue(15, rd_k(15, 1, 7))
    g("s_nop 7"); g("s_nop 3")
    rowmax(0, VM, VT0)
    for r in range(16): g(f"v_sub_f32 v{NEGM+r}, 0, v{VM}")
    for r in range(16): g(f"v_sub_f32 v{SB+r}, v{SB+r}, v{VM}")
    g(sm_exp(0, 0))
    ku, vu = addr_update_list()
    for s in range(8):
        lq.need(8+s)
        g(mf_qk(8+s, 1, s))
        for n in (2*s, 2*s+1):
            if n & 1: g("s_nop 0")
            for x in sm_gap(0, n): g(x)
    g(f"v_mov_b32 v{VL}, v{VTS}")
    for x in ku + vu: g(x)
    g(f"s_mov_b32 s{S_SLOT}, 1")
    g(f"s_mov_b32 s{S_I}, 1")
    g("s_barrier")
    lq.clear()
    for f in range(7): lq.issue(f, frag_desc(f)[0])
    g("s_branch L_mid")

    g.raw(".p2align 3")
    g.lab("L_top")
    lq = LQ()
    for f in range(3): lq.issue(f, frag_desc(f)[0])
    for n in range(28, 32):
        g(frag_desc(n)[1])
        lq.issue(n - 25, frag_desc(n - 25)[0])
        for x in sm_gap(0, n - 16): g(x)
    sm_check(0, "b")
    g.lab("L_mid")
    g(f"s_cmp_eq_u32 s{S_SLOT}, 4")
    g(f"s_cselect_b32 s{S_DELTA}, {hex((-4*SLOT) & 0xffffffff)}, s{S_DELTA}")
    g(sm_exp(1, 0))
    ku, vu = addr_update_list()
    for n in range(28):
        lq.need(n)
        g(frag_desc(n)[1])
        if n + 7 < 32: lq.issue(n + 7, frag_desc(n + 7)[0])
        if n < 16:
            for x in sm_gap(1, n): g(x)
            if n == 15:
                sm_check(1, "a")
                g(sm_exp(0, 0))
        else:
            for x in sm_gap(0, n - 16): g(x)
        if 17 <= n < 25: g(ku[n - 17])
        if n == 25: g(vu[0]); g(vu[1])
        if n == 26: g(vu[2]); g(vu[3])
    g(f"s_add_u32 s{S_SLOT}, s{S_SLOT}, 1")
    g(f"s_cmp_eq_u32 s{S_SLOT}, 5")
    g(f"s_cselect_b32 s{S_SLOT}, 0, s{S_SLOT}")
    g(f"s_mov_b32 s{S_DELTA}, {SLOT}")
    g(f"s_add_u32 s{S_I}, s{S_I}, 1")
    g(f"s_cmp_lt_u32 s{S_I}, 16")
    g("s_waitcnt lgkmcnt(0)")
    g("s_barrier")
    g("s_cbranch_scc1 L_top")
    stamp(4)
    lq = LQ()
    def edesc(e):
        st = e >> 3; idx = e & 7
        return rd_v(e, st, idx >> 2, idx & 3), mf_pv(e, st, idx >> 2, idx & 3)
    for f in range(3): lq.issue(f, edesc(f)[0])
    for n in range(28, 32):
        g(frag_desc(n)[1])
        lq.issue(n - 25, edesc(n - 25)[0])
        for x in sm_gap(0, n - 16): g(x)
    sm_check(0, "c")
    g(sm_exp(1, 0))
    for e in range(8):
        lq.need(e)
        g(edesc(e)[1])
        lq.issue(e + 7, edesc(e + 7)[0])
        for n in (2*e, 2*e+1):
            if n & 1: g("s_nop 0")
            for x in sm_gap(1, n): g(x)
    sm_check(1, "d")
    g("s_nop 1")
    for e in range(8, 16):
        lq.need(e)
        g(edesc(e)[1])
        if e + 7 < 16: lq.issue(e + 7, edesc(e + 7)[0])
    g(f"v_mov_b32 v{VT0}, v{VL}")
    g("s_nop 1")
    g(f"v_permlane32_swap_b32 v{VL}, v{VT0}")
    g("s_nop 1")
    g(f"v_add_f32 v{VL}, v{VL}, v{VT0}")
    g(f"v_rcp_f32 v{VL}, v{VL}")
    g(f"s_lshl_b32 s{S_T0}, s{S_WAVE}, 13")
    g(f"v_lshlrev_b32 v{VT0}, 4, v{VLANE}")
    g(f"v_add_u32 v{VT0}, s{S_T0}, v{VT0}")
    g("s_nop 7")
    for kap in range(8):
        b = O + kap*8
        for r in range(8): g(f"v_mul_f32 v{b+r}, v{b+r}, v{VL}")
        d = QF + kap*4
        for r in range(4): g(f"v_cvt_pk_bf16_f32 v{d+r}, v{b+2*r}, v{b+2*r+1}")
        g(f"ds_write_b128 v{VT0}, {vr(d,4)} offset:{OFB + kap*1024}")
    g("s_waitcnt lgkmcnt(0)")

    g.lab("L_oproj")
    g("s_barrier")
    stamp(5)
    BF, AB, OA, PK, WA, SV, WV = 0, 96, 128, 144, 160, 161, 164
    LN = 170
    g(f"v_mbcnt_lo_u32_b32 v{LN}, -1, 0")
    g(f"v_mbcnt_hi_u32_b32 v{LN}, -1, v{LN}")
    g(f"v_lshlrev_b32 v{SV}, 4, v{LN}")
    g(f"s_and_b32 s{S_T3}, s{S_WAVE}, 3")
    g(f"v_bfe_u32 v{LN+1}, v{LN}, 4, 1")
    g(f"v_lshrrev_b32 v{LN+2}, 5, v{LN}")
    g(f"v_bfe_u32 v{LN+3}, v{LN}, 2, 2")
    g(f"v_lshl_add_u32 v{WA}, v{LN+2}, 2, v{LN+3}")
    g(f"v_lshl_add_u32 v{WA}, v{LN+1}, 7, v{WA}")
    g(f"v_lshlrev_b32 v{WA}, 7, v{WA}")
    g(f"v_bfe_u32 v{LN+3}, v{LN}, 3, 2")
    g(f"v_xor_b32 v{LN+3}, s{S_T3}, v{LN+3}")
    g(f"v_lshl_add_u32 v{WA}, v{LN+3}, 5, v{WA}")
    g(f"v_and_b32 v{LN+3}, 3, v{LN}")
    g(f"v_lshl_add_u32 v{WA}, v{LN+3}, 3, v{WA}")
    g(f"v_add_u32 v{WA}, {2*SLOT}, v{WA}")
    g(f"s_mul_i32 s{S_SOFF}, s{S_B}, {96*16*1024}")
    g(f"s_lshl_b32 s{S_T0}, s{S_HKV}, 10")
    g(f"s_add_u32 s{S_SOFF}, s{S_SOFF}, s{S_T0}")
    g(f"s_lshl_b32 s{S_T0}, s{S_T3}, 14")
    g(f"s_add_u32 s{S_SOFF}, s{S_SOFF}, s{S_T0}")
    g(f"s_mov_b32 s{S_SLOT}, 2")
    g(f"s_mov_b32 s{S_I}, 0")
    g(f"s_cmp_lt_u32 s{S_WAVE}, 4")
    g("s_cbranch_scc1 L_op_lo")
    stf = opt.stflag
    def chunk_compute(nq):
        lq = LQ()
        def rd(k):
            a = AB + k*4
            return [f"ds_read_b64_tr_b16 {vr(a,2)}, v{WA} offset:{k*2048}",
                    f"ds_read_b64_tr_b16 {vr(a+2,2)}, v{WA} offset:{k*2048+1024}"]
        for k in range(7): lq.issue(k, rd(k))
        for k in range(8):
            lq.need(k)
            for t in range(nq):
                c = "0" if k == 0 else vr(OA+t*4,4)
                g(f"v_mfma_f32_16x16x32_bf16 {vr(OA+t*4,4)}, {vr(AB+k*4,4)}, {vr(BF+(t*8+k)*4,4)}, {c}")
            if k == 0: lq.issue(7, rd(7))
        g(f"s_cmp_eq_u32 s{S_SLOT}, 4")
        g(f"s_cselect_b32 s{S_DELTA}, {hex((-4*SLOT) & 0xffffffff)}, s{S_T2}")
        g(f"s_cselect_b32 s{S_SLOT}, -1, s{S_SLOT}")
        g(f"s_add_u32 s{S_SLOT}, s{S_SLOT}, 1")
        g(f"v_add_u32 v{WA}, s{S_DELTA}, v{WA}")
        g("s_nop 3")
    g(f"s_mov_b32 s{S_T2}, {SLOT}")
    for t in range(2):
        for k in range(8):
            g(f"ds_read_b128 {vr(BF+(t*8+k)*4,4)}, v{SV} offset:{OFB + ((3+t)*8+k)*1024}")
            if k == 7: g("s_waitcnt lgkmcnt(0)")
    g(f"v_lshrrev_b32 v{LN+1}, 3, v{LN}")
    g(f"v_bfe_u32 v{LN+2}, v{LN}, 4, 1")
    g(f"s_and_b32 s{S_T0}, s{S_T3}, 2")
    g(f"v_or_b32 v{LN+2}, s{S_T0}, v{LN+2}")
    g(f"v_bfe_u32 v{LN+3}, v{LN}, 1, 2")
    g(f"v_xor_b32 v{LN+2}, v{LN+2}, v{LN+3}")
    g(f"v_lshlrev_b32 v{LN+2}, 5, v{LN+2}")
    g(f"v_and_b32 v{LN+3}, 1, v{LN}")
    g(f"v_lshl_add_u32 v{LN+2}, v{LN+3}, 4, v{LN+2}")
    g(f"v_mul_u32_u24 v{LN+1}, 1152, v{LN+1}")
    g(f"v_add_u32 v{WV}, v{LN+1}, v{LN+2}")
    for a in range(1, 4): g(f"v_add_u32 v{WV+a}, {a*8192}, v{WV}")
    S_WOFF, S_WM0 = S_E, S_E+1
    g(f"s_mul_i32 s{S_WOFF}, s{S_HKV}, {256*1152}")
    g(f"s_mul_i32 s{S_T0}, s{S_T3}, {64*1152}")
    g(f"s_add_u32 s{S_WOFF}, s{S_WOFF}, s{S_T0}")
    g(f"s_add_u32 s{S_WOFF}, s{S_WOFF}, {3*128}")
    g(f"s_lshl_b32 s{S_WM0}, s{S_T3}, 13")
    def wo_issue():
        g(f"s_mov_b32 m0, s{S_WM0}")
        g(f"s_add_u32 s{S_T0}, s{S_WOFF}, {4*9216}")
        for a in range(4):
            g(f"buffer_load_dwordx4 v{WV+a}, {sr(S_WO,4)}, s{S_WOFF} offen offset:{a*1024} lds")
        g(f"s_add_u32 m0, m0, 4096")
        g(f"s_add_u32 s{S_WOFF}, s{S_WOFF}, 128")
        for a in range(4):
            g(f"buffer_load_dwordx4 v{WV+a}, {sr(S_WO,4)}, s{S_T0} offen offset:{a*1024} lds")
        g(f"s_add_u32 s{S_WM0}, s{S_WM0}, {SLOT}")
        g(f"s_cmp_ge_u32 s{S_WM0}, {5*SLOT}")
        g(f"s_cselect_b32 s{S_T0}, {5*SLOT}, 0")
        g(f"s_sub_u32 s{S_WM0}, s{S_WM0}, s{S_T0}")
    g("s_barrier")
    wo_issue(); wo_issue()
    g.lab("L_ophi_loop")
    chunk_compute(2)
    for t in range(2):
        g(f"v_cvt_pk_bf16_f32 v{PK+2*t}, v{OA+4*t}, v{OA+4*t+1}")
        g(f"v_cvt_pk_bf16_f32 v{PK+2*t+1}, v{OA+4*t+2}, v{OA+4*t+3}")
    g(f"buffer_store_dwordx4 {vr(PK,4)}, v{SV}, {sr(S_WS,4)}, s{S_SOFF} offen{stf}")
    g(f"s_add_u32 s{S_SOFF}, s{S_SOFF}, {4*16384}")
    g("s_waitcnt vmcnt(27)")
    g("s_barrier")
    g(f"s_cmp_eq_u32 s{S_I}, 4")
    g(f"s_cselect_b32 s{S_WOFF}, 0x1000000, s{S_WOFF}")
    wo_issue()
    g(f"s_add_u32 s{S_I}, s{S_I}, 1")
    g(f"s_cmp_lt_u32 s{S_I}, 9")
    g("s_cbranch_scc1 L_ophi_loop")
    g("s_branch L_fin")
    g.lab("L_op_lo")
    g(f"s_mov_b32 s{S_T2}, {SLOT}")
    for t in range(3):
        for k in range(8):
            g(f"ds_read_b128 {vr(BF+(t*8+k)*4,4)}, v{SV} offset:{OFB + (t*8+k)*1024}")
            if k == 7: g("s_waitcnt lgkmcnt(0)")
    S_SOF2 = S_E
    g(f"s_add_u32 s{S_SOF2}, s{S_SOFF}, {72*16384}")
    g(f"s_add_u32 s{S_SOFF}, s{S_SOFF}, {36*16384}")
    g("s_barrier")
    g.lab("L_oplo_loop")
    chunk_compute(3)
    for t in range(2):
        g(f"v_cvt_pk_bf16_f32 v{PK+2*t}, v{OA+4*t}, v{OA+4*t+1}")
        g(f"v_cvt_pk_bf16_f32 v{PK+2*t+1}, v{OA+4*t+2}, v{OA+4*t+3}")
    g(f"buffer_store_dwordx4 {vr(PK,4)}, v{SV}, {sr(S_WS,4)}, s{S_SOFF} offen{stf}")
    g(f"s_add_u32 s{S_SOFF}, s{S_SOFF}, {4*16384}")
    g(f"s_bitcmp1_b32 s{S_I}, 0")
    g("s_cbranch_scc1 L_oplo_odd")
    g(f"v_cvt_pk_bf16_f32 v{PK+4}, v{OA+8}, v{OA+9}")
    g(f"v_cvt_pk_bf16_f32 v{PK+5}, v{OA+10}, v{OA+11}")
    g(f"s_cmp_lt_u32 s{S_I}, 8")
    g("s_cbranch_scc1 L_oplo_next")
    g.lab("L_oplo_odd")
    g(f"v_cvt_pk_bf16_f32 v{PK+6}, v{OA+8}, v{OA+9}")
    g(f"v_cvt_pk_bf16_f32 v{PK+7}, v{OA+10}, v{OA+11}")
    g(f"buffer_store_dwordx4 {vr(PK+4,4)}, v{SV}, {sr(S_WS,4)}, s{S_SOF2} offen{stf}")
    g(f"s_add_u32 s{S_SOF2}, s{S_SOF2}, {4*16384}")
    g.lab("L_oplo_next")
    g("s_barrier")
    g(f"s_add_u32 s{S_I}, s{S_I}, 1")
    g(f"s_cmp_lt_u32 s{S_I}, 9")
    g("s_cbranch_scc1 L_oplo_loop")
    g.lab("L_fin")
    if stamps:
        stamp(6)
        g("s_waitcnt vmcnt(0)")
        stamp(7)
        g(f"s_cmp_lg_u32 s{S_WAVE}, 0")
        g("s_cbranch_scc1 L_end")
        g("s_waitcnt lgkmcnt(0)")
        g(f"s_mul_i32 s{S_T0}, s2, {NSTAMP*8}")
        g(f"s_add_u32 s{S_T0}, s{S_T0}, {STAMP_OFF}")
        g("v_mov_b32 v0, 0")
        g("s_mov_b64 exec, 1")
        for i in range(8):
            g(f"v_mov_b32 v2, s{S_STAMP+2*i}")
            g(f"v_mov_b32 v3, s{S_STAMP+2*i+1}")
            g(f"buffer_store_dwordx2 v[2:3], v0, {sr(S_WS,4)}, s{S_T0} offen offset:{8*i}")
            g("s_nop 1")
    g.lab("L_end")
    g("s_endpgm")

    for sb, tag in rare:
        Sc = SB + sb*16; Sn = SB + (sb^1)*16
        g.lab(f"L_rare_{tag}")
        g("s_nop 7"); g("s_nop 7")
        rowmax(sb, VT1, VT0)
        g(f"v_max_f32 v{VT1}, 0, v{VT1}")
        g(f"v_sub_f32 v{VT2}, 0, v{VT1}")
        g(f"v_exp_f32 v{VT2}, v{VT2}")
        for r in range(16): g(f"v_sub_f32 v{Sc+r}, v{Sc+r}, v{VT1}")
        for r in range(16): g(f"v_sub_f32 v{Sn+r}, v{Sn+r}, v{VT1}")
        for r in range(16): g(f"v_sub_f32 v{NEGM+r}, v{NEGM+r}, v{VT1}")
        for r in range(64): g(f"v_mul_f32 v{O+r}, v{O+r}, v{VT2}")
        g(f"v_mul_f32 v{VL}, v{VL}, v{VT2}")
        g(sm_exp(sb, 0))
        for n in range(16):
            g("s_nop 0")
            for x in sm_gap(sb, n): g(x)
        g("s_nop 1")
        g(f"s_branch L_back_{tag}")

    g.raw(".globl reduce_kernel")
    g.raw(".p2align 8")
    g.raw(".type reduce_kernel,@function")
    g.lab("reduce_kernel")
    g("s_cmp_ge_u32 s2, 184")
    g("s_cbranch_scc1 L_rend")
    g("s_load_dwordx2 s[4:5], s[0:1], 40")
    g("s_load_dwordx2 s[6:7], s[0:1], 56")
    g("v_lshrrev_b32 v1, 6, v0")
    g("s_lshl_b32 s16, s2, 3")
    g("v_readfirstlane_b32 s17, v1")
    g("v_and_b32 v0, 63, v0")
    g("s_add_u32 s16, s16, s17")
    g("s_mul_hi_u32 s18, s16, 46684428")
    g("s_mul_i32 s19, s18, 92")
    g("s_sub_u32 s19, s16, s19")
    g("s_waitcnt lgkmcnt(0)")
    g("s_mov_b32 s8, s4"); g("s_mov_b32 s9, s5"); g("s_mov_b32 s10, 1474560"); g("s_mov_b32 s11, 0x20000")
    g("s_mov_b32 s12, s6"); g("s_mov_b32 s13, s7"); g("s_mov_b32 s14, 268435456"); g("s_mov_b32 s15, 0x20000")
    g("s_mul_i32 s20, s18, 96")
    g("s_add_u32 s20, s20, s19")
    g("s_lshl_b32 s20, s20, 14")
    g("v_lshlrev_b32 v1, 4, v0")
    for p in range(16):
        if p and p % 4 == 0: g("s_add_u32 s20, s20, 4096")
        g(f"buffer_load_dwordx4 {vr(16+4*p,4)}, v1, s[12:15], s20 offen offset:{(p%4)*1024}{opt.ldflag}")
    g("s_and_b32 s21, s19, 3")
    g("s_lshr_b32 s22, s19, 2")
    g("s_cmp_lt_u32 s22, 9")
    g("s_cbranch_scc1 L_r0")
    g("s_cmp_lt_u32 s22, 18")
    g("s_cbranch_scc1 L_r1")
    g("s_sub_u32 s22, s22, 18")
    g("s_lshl_b32 s22, s22, 8")
    g(f"s_add_u32 s23, s22, {2*16*1152}")
    g("s_add_u32 s24, s23, 128")
    g("s_cmp_eq_u32 s22, 1024")
    g("s_cselect_b32 s24, 0x10000000, s24")
    g("s_branch L_r2")
    g.lab("L_r0")
    g("s_lshl_b32 s22, s22, 7")
    g(f"s_add_u32 s23, s22, {3*16*1152}")
    g(f"s_add_u32 s24, s22, {4*16*1152}")
    g("s_branch L_r2")
    g.lab("L_r1")
    g("s_sub_u32 s22, s22, 9")
    g("s_lshl_b32 s23, s22, 7")
    g(f"s_add_u32 s24, s23, {16*1152}")
    g.lab("L_r2")
    g("s_mul_i32 s25, s18, 92160")
    g("s_lshl_b32 s21, s21, 5")
    g("s_add_u32 s25, s25, s21")
    g("s_add_u32 s23, s23, s25")
    g("s_add_u32 s24, s24, s25")
    g("v_and_b32 v2, 15, v0")
    g("v_mul_u32_u24 v2, 1152, v2")
    g("v_lshrrev_b32 v3, 4, v0")
    g("v_lshl_add_u32 v2, v3, 3, v2")
    g("s_mov_b32 s26, 0xffff0000")
    for p in range(16):
        g(f"s_waitcnt vmcnt({15-p})")
        for r in range(4):
            src = 16 + 4*p + r
            if p == 0:
                g(f"v_lshlrev_b32 v{4+2*r}, 16, v{src}")
                g(f"v_and_b32 v{5+2*r}, s26, v{src}")
            else:
                g(f"v_lshlrev_b32 v12, 16, v{src}")
                g(f"v_and_b32 v13, s26, v{src}")
                g(f"v_add_f32 v{4+2*r}, v{4+2*r}, v12")
                g(f"v_add_f32 v{5+2*r}, v{5+2*r}, v13")
    for r in range(4):
        g(f"v_cvt_pk_bf16_f32 v{12+r}, v{4+2*r}, v{5+2*r}")
    g("buffer_store_dwordx2 v[12:13], v2, s[8:11], s23 offen")
    g("buffer_store_dwordx2 v[14:15], v2, s[8:11], s24 offen")
    g.lab("L_rend")
    g("s_endpgm")

    g.raw('.section .rodata,"a"')
    for (k, nv) in ((f"{NAME}_kernel", 256), ("reduce_kernel", 80)):
        g.raw(".p2align 6")
        g.raw(f".amdhsa_kernel {k}")
        for l in [f".amdhsa_next_free_vgpr {nv}", ".amdhsa_next_free_sgpr 96", f".amdhsa_accum_offset {nv}",
                  ".amdhsa_group_segment_fixed_size 0", ".amdhsa_kernarg_size 64", ".amdhsa_user_sgpr_count 2",
                  ".amdhsa_user_sgpr_kernarg_segment_ptr 1", ".amdhsa_system_sgpr_workgroup_id_x 1"]:
            g.raw("  " + l)
        g.raw(".end_amdhsa_kernel")
    return "\n".join(g.L) + "\n"

if __name__ == "__main__":
    ap = argparse.ArgumentParser()
    ap.add_argument("-o", default="k.s")
    ap.add_argument("--stamps", action="store_true")
    ap.add_argument("--stflag", default="")
    ap.add_argument("--ldflag", default="")
    opt = ap.parse_args()
    if opt.stflag: opt.stflag = " " + opt.stflag
    if opt.ldflag: opt.ldflag = " " + opt.ldflag
    open(opt.o, "w").write(build(opt))
```

```python
import sys, struct, argparse

NAME = "standalone__gqa_block_cached__near_ridge"

def f32bits(x):
    return struct.unpack("<I", struct.pack("<f", x))[0]

class G:
    def __init__(self): self.L = []
    def __call__(self, s): self.L.append("    " + s)
    def lab(self, s): self.L.append(s + ":")
    def raw(self, s): self.L.append(s)
    def c(self, s): self.L.append("    ; " + s)

def vr(a, n): return f"v[{a}:{a+n-1}]" if n > 1 else f"v{a}"
def sr(a, n): return f"s[{a}:{a+n-1}]" if n > 1 else f"s{a}"

S_X, S_KV, S_DBG, S_WQ, S_WO, S_WS, S_OUT = 8, 12, 16, 20, 24, 28, 32
S_HKV, S_B, S_WAVE = 36, 37, 38
S_T0, S_T1, S_T2, S_T3 = 39, 40, 41, 42
S_I, S_SLOT, S_DELTA = 43, 44, 45
S_THR, S_SCALE, S_TAG, S_ISV = 46, 47, 48, 50
S_E = 51
S_SOFF, S_M0 = 58, 59
S_KVBASE = 60
S_CLK = 62
S_STAMP = 64
SLOT = 32768
XG = [0, SLOT, 2*SLOT]
WQB = 3*SLOT
QB = 5*SLOT - 40960
QT = [QB + t*8192 for t in range(5)]
S_NXT, S_CUR = 4, 5
OFB = 32768
DUMPA = 81920
DUMPB = 0
MLB = 32768
FLAG_OFF = 0x6000000
STAMP_OFF = 0x8000000
NSTAMP = 16

def build(opt):
    g = G()
    stamps = opt.stamps
    nt = "" if opt.nont else " nt"
    def stamp(i):
        if stamps: g(f"s_memrealtime {sr(S_STAMP+2*i,2)}")
    if opt.red2 or opt.list:
        g.raw(f"; @launch kernel={NAME}_kernel grid=(256,1,1) block=(512,1,1) lds=163840")
        if opt.red2: g.raw(f"; @launch kernel=reduce_kernel grid=(184,1,1) block=(512,1,1) lds=0")
    else:
        g.raw(f"; @launch grid=(256,1,1) block=(512,1,1) lds=163840")
    g.raw('.amdgcn_target "amdgcn-amd-amdhsa--gfx950"')
    g.raw(".text")
    g.raw(f".globl {NAME}_kernel")
    g.raw(".p2align 8")
    g.raw(f".type {NAME}_kernel,@function")
    g.lab(f"{NAME}_kernel")
    g("s_cmp_ge_u32 s2, 256")
    g("s_cbranch_scc1 L_end")
    g("s_load_dwordx16 s[64:79], s[0:1], 0")
    g("v_lshrrev_b32 v1, 6, v0")
    g("s_and_b32 s36, s2, 7")
    g("v_readfirstlane_b32 s38, v1")
    g("s_lshl_b32 s36, s36, 1")
    g("s_bfe_u32 s39, s2, 0x10003")
    g("s_add_u32 s36, s36, s39")
    g("s_lshr_b32 s37, s2, 4")
    g("v_and_b32 v0, 63, v0")
    g(f"s_lshl_b32 s{S_KVBASE}, s{S_B}, 4")
    g(f"s_add_u32 s{S_KVBASE}, s{S_KVBASE}, s{S_HKV}")
    g(f"s_lshl_b32 s{S_KVBASE}, s{S_KVBASE}, 18")
    if opt.fakekv: g(f"s_mov_b32 s{S_KVBASE}, 0")
    g(f"s_and_b32 s{S_ISV}, s{S_WAVE}, 1")
    for (d, size) in ((S_X, 1474560), (S_KV, 67108864), (S_WQ, 4718592), (S_WO, 4718592), (S_OUT, 1474560), (S_DBG, 256), (S_WS, 268435456)):
        g(f"s_mov_b32 s{d+2}, {size}")
        g(f"s_mov_b32 s{d+3}, 0x20000")
    g(f"s_cmp_eq_u32 s{S_ISV}, 0")
    g("s_waitcnt lgkmcnt(0)")
    g(f"s_cselect_b32 s{S_KV}, s66, s68")
    g(f"s_cselect_b32 s{S_KV+1}, s67, s69")
    for (d, src) in ((S_X, 64), (S_WQ, 70), (S_WO, 72), (S_OUT, 74), (S_DBG, 76), (S_WS, 78)):
        g(f"s_mov_b32 s{d}, s{src}")
        g(f"s_mov_b32 s{d+1}, s{src+1}")
    stamp(0)
    g(f"s_cmp_lt_u32 s{S_WAVE}, 4")
    g("s_cbranch_scc1 L_qproj")
    if opt.prio: g(f"s_setprio {opt.prio}")

    O, QF, NEGM, SB, PB, FB, TB, KA, VA = 0, 64, 96, 112, 144, 160, 192, 208, 216
    VL, VTS, VM, VT0, VT1, VT2, VLANE, VFL = 220, 221, 222, 223, 224, 225, 226, 227
    DV = 228
    WV = 232
    XV = 236
    LV = 237
    DUM = 238
    WA = 239
    QV = 240
    AB, BF, OA, PK = 64, 128, 0, 24
    S_J, S_GRP, S_WOFF, S_WM0, S_FL = 61, 3, 54, 55, 56
    LSPLIT = opt.lsplit

    class LQ:
        def __init__(self): self.q = []
        def issue(self, f, instrs):
            for s in instrs:
                g(s); self.q.append(f)
        def need(self, f):
            if f in self.q:
                last = len(self.q) - 1 - self.q[::-1].index(f)
                after = min(15, len(self.q) - 1 - last)
                g(f"s_waitcnt lgkmcnt({after})")
                self.q = self.q[last+1:]
        def clear(self): self.q = []

    def fb(f): return FB + (f % 8)*4
    def rd_k(f, st, s):
        return [f"ds_read_b128 {vr(fb(f),4)}, v{KA+s} offset:{st*8192}"]
    def rd_v(f, st, ks, dt):
        base = 16384 + st*8192 + ks*4096
        return [f"ds_read_b64_tr_b16 {vr(fb(f),2)}, v{VA+dt} offset:{base}",
                f"ds_read_b64_tr_b16 {vr(fb(f)+2,2)}, v{VA+dt} offset:{base+2048}"]
    def mf_qk(f, sb, s, czero=False):
        c = ("0" if czero else vr(NEGM,16)) if s == 0 else vr(SB+sb*16,16)
        return f"v_mfma_f32_32x32x16_bf16 {vr(SB+sb*16,16)}, {vr(fb(f),4)}, {vr(QF+4*s,4)}, {c}"
    def mf_pv(f, pb, ks, dt):
        return f"v_mfma_f32_32x32x16_bf16 {vr(O+dt*16,16)}, {vr(fb(f),4)}, {vr(PB+pb*8+ks*4,4)}, {vr(O+dt*16,16)}"
    def frag_desc(n):
        st = n >> 4; m = n & 15
        if m < 8: return rd_k(n, st, m), mf_qk(n, st, m)
        idx = m - 8
        return rd_v(n, st, idx >> 2, idx & 3), mf_pv(n, st, idx >> 2, idx & 3)
    def sm_exp(sb, r): return f"v_exp_f32 v{TB + (r % 4)}, v{SB+sb*16+r}"
    def sm_gap(sb, n):
        out = []
        if opt.nosm: return out
        if n + 1 <= 15: out.append(sm_exp(sb, n+1))
        if n == 1: out.append(f"v_add_f32 v{VTS}, v{TB+0}, v{TB+1}")
        elif n > 1: out.append(f"v_add_f32 v{VTS}, v{VTS}, v{TB+(n%4)}")
        if opt.noadd: out = [x for x in out if not x.startswith("v_add_f32")]
        if opt.noexp: out = [x.replace("v_exp_f32", "v_mov_b32") for x in out]
        if n & 1: out.append(f"v_cvt_pk_bf16_f32 v{PB+sb*8+(n>>1)}, v{TB+((n-1)%4)}, v{TB+(n%4)}")
        return out
    rare = []
    def sm_check(sb, tag, light=False):
        g(f"v_cmp_lt_f32 vcc, s{S_THR}, v{VTS}")
        g(f"s_cbranch_vccnz L_rare_{tag}")
        g.lab(f"L_back_{tag}")
        g(f"v_add_f32 v{VL}, v{VL}, v{VTS}")
        rare.append((sb, tag, light))
    def rowmax(sb, dst, tmp):
        S = SB + sb*16
        g(f"v_max3_f32 v{dst}, v{S}, v{S+1}, v{S+2}")
        for r in range(3, 15, 2):
            g(f"v_max3_f32 v{dst}, v{dst}, v{S+r}, v{S+r+1}")
        g(f"v_max_f32 v{dst}, v{dst}, v{S+15}")
        g(f"v_mov_b32 v{tmp}, v{dst}")
        g("s_nop 1")
        g(f"v_permlane32_swap_b32 v{dst}, v{tmp}")
        g("s_nop 1")
        g(f"v_max_f32 v{dst}, v{dst}, v{tmp}")
    QA = 227
    def q_read():
        for s in range(8):
            g(f"ds_read_b128 {vr(QF+4*s,4)}, v{QA} offset:{s*1024}")
    def wo_setup(sj):
        g(f"v_lshrrev_b32 v{VT0}, 3, v{VLANE}")
        g(f"v_bfe_u32 v{VT1}, v{VLANE}, 4, 1")
        g(f"s_and_b32 s{S_T0}, s{sj}, 2")
        g(f"v_or_b32 v{VT1}, s{S_T0}, v{VT1}")
        g(f"v_bfe_u32 v{VT2}, v{VLANE}, 1, 2")
        g(f"v_xor_b32 v{VT1}, v{VT1}, v{VT2}")
        g(f"v_lshlrev_b32 v{VT1}, 5, v{VT1}")
        g(f"v_and_b32 v{VT2}, 1, v{VLANE}")
        g(f"v_lshl_add_u32 v{VT1}, v{VT2}, 4, v{VT1}")
        g(f"v_mul_u32_u24 v{VT0}, 1152, v{VT0}")
        g(f"v_add_u32 v{WV}, v{VT0}, v{VT1}")
        for a in range(1, 4): g(f"v_add_u32 v{WV+a}, {a*8192}, v{WV}")
        g(f"s_mul_i32 s{S_WOFF}, s{S_HKV}, {256*1152}")
        g(f"s_mul_i32 s{S_T0}, s{sj}, {64*1152}")
        g(f"s_add_u32 s{S_WOFF}, s{S_WOFF}, s{S_T0}")
        g(f"s_lshl_b32 s{S_WM0}, s{sj}, 13")
    def wo_list(slot):
        n = len(g.L); wo_issue(slot); out = [x.strip() for x in g.L[n:]]; del g.L[n:]
        grp = []; cur = []
        for x in out:
            cur.append(x)
            if x.startswith("buffer_load"): grp.append(cur); cur = []
        return grp
    def wo_issue(slot):
        if isinstance(slot, str): g(f"s_add_u32 m0, s{S_WM0}, {slot}")
        else: g(f"s_add_u32 m0, s{S_WM0}, {slot*SLOT}")
        g(f"s_add_u32 s{S_T0}, s{S_WOFF}, {4*9216}")
        for a in range(4):
            g(f"buffer_load_dwordx4 v{WV+a}, {sr(S_WO,4)}, s{S_WOFF} offen offset:{a*1024} lds")
        g(f"s_add_u32 m0, m0, 4096")
        g(f"s_add_u32 s{S_WOFF}, s{S_WOFF}, 128")
        for a in range(4):
            g(f"buffer_load_dwordx4 v{WV+a}, {sr(S_WO,4)}, s{S_T0} offen offset:{a*1024} lds")
    def attn_setup(light):
        if light:
            g(f"s_mov_b32 s{S_T0}, {QT[4]}")
        else:
            g(f"s_lshl_b32 s{S_T0}, s{S_WAVE}, 13")
            g(f"s_add_u32 s{S_T0}, s{S_T0}, {QB}")
        g(f"v_lshlrev_b32 v{QA}, 4, v{VLANE}")
        g(f"v_add_u32 v{QA}, s{S_T0}, v{QA}")
        g(f"v_and_b32 v{VT1}, 15, v{VLANE}")
        g(f"v_lshrrev_b32 v{VT2}, 5, v{VLANE}")
        g(f"v_xor_b32 v{VT1}, v{VT1}, v{VT2}")
        g(f"v_lshlrev_b32 v{VT1}, 4, v{VT1}")
        g(f"v_and_b32 v{KA}, 31, v{VLANE}")
        g(f"v_lshl_add_u32 v{KA}, v{KA}, 8, v{VT1}")
        g(f"v_bfe_u32 v{VT1}, v{VLANE}, 2, 2")
        g(f"v_lshl_add_u32 v{VA}, v{VT2}, 2, v{VT1}")
        g(f"v_lshlrev_b32 v{VA}, 8, v{VA}")
        g(f"v_lshl_add_u32 v{VA}, v{VT1}, 6, v{VA}")
        g(f"v_bfe_u32 v{VT1}, v{VLANE}, 4, 1")
        g(f"v_lshl_add_u32 v{VA}, v{VT1}, 5, v{VA}")
        g(f"v_and_b32 v{VT1}, 3, v{VLANE}")
        g(f"v_lshl_add_u32 v{VA}, v{VT1}, 3, v{VA}")
        if light:
            g(f"s_lshl_b32 s{S_T0}, s{S_ISV}, 13")
            g(f"s_lshr_b32 s{S_T1}, s{S_J}, 1")
            g(f"s_lshl_b32 s{S_T1}, s{S_T1}, 15")
            g(f"s_add_u32 s{S_T1}, s{S_T1}, s{S_T0}")
            g(f"v_add_u32 v{KA}, s{S_T1}, v{KA}")
            g(f"s_add_u32 s{S_T1}, s{S_T1}, {SLOT}")
            g(f"v_add_u32 v{VA}, s{S_T1}, v{VA}")
        for s in range(1, 8): g(f"v_xor_b32 v{KA+s}, {s*32}, v{KA}")
        for dt in range(1, 4): g(f"v_xor_b32 v{VA+dt}, {dt*64}, v{VA}")
        g(f"s_and_b32 s{S_T0}, s{S_WAVE}, 3")
        g(f"v_bfe_u32 v{VT1}, v{VLANE}, 2, 2")
        g(f"v_lshl_add_u32 v{WA}, v{VT2}, 2, v{VT1}")
        g(f"v_bfe_u32 v{VT1}, v{VLANE}, 4, 1")
        g(f"v_lshl_add_u32 v{WA}, v{VT1}, 7, v{WA}")
        g(f"v_lshlrev_b32 v{WA}, 7, v{WA}")
        g(f"v_bfe_u32 v{VT1}, v{VLANE}, 3, 2")
        g(f"v_xor_b32 v{VT1}, s{S_T0}, v{VT1}")
        g(f"v_lshl_add_u32 v{WA}, v{VT1}, 5, v{WA}")
        g(f"v_and_b32 v{VT1}, 3, v{VLANE}")
        g(f"v_lshl_add_u32 v{WA}, v{VT1}, 3, v{WA}")
        g(f"v_add_u32 v{WA}, {2*SLOT}, v{WA}")
        g(f"v_lshlrev_b32 v{LV}, 4, v{VLANE}")
    def a_read(par, k, so=0):
        a = AB + par*32 + k*4
        return [f"ds_read_b64_tr_b16 {vr(a,2)}, v{WA} offset:{so + k*2048}",
                f"ds_read_b64_tr_b16 {vr(a+2,2)}, v{WA} offset:{so + k*2048+1024}"]
    def light_init():
        for r in range(16): g(f"v_mov_b32 v{NEGM+r}, 0")
        g(f"v_mov_b32 v{VL}, 0")
        g(f"s_mov_b32 s{S_THR}, {hex(f32bits(65536.0))}")
    def light_qk():
        if opt.nolight: return
        lq = LQ()
        for s in range(8): lq.issue(s, rd_k(s, 0, s))
        if opt.mprio: g(f"s_setprio {opt.mprio}")
        for s in range(8):
            if s % 2 == 0: lq.need(s+1)
            g(mf_qk(s, 0, s))
        if opt.mprio: g(f"s_setprio {opt.prio}")
        g(f"s_cmp_ge_u32 s{S_SLOT}, 3")
        g(f"s_cselect_b32 s{S_DELTA}, {hex((-3*SLOT) & 0xffffffff)}, s{S_E}")
        for s in range(8): g(f"v_add_u32 v{KA+s}, s{S_DELTA}, v{KA+s}")
        g(f"s_cmp_ge_u32 s{S_CUR}, 2")
        g("s_nop 0")
        g("s_cbranch_scc0 L_l_first")
        g.lab("L_l_firstd")
        g(sm_exp(0, 0))
        for n in range(LSPLIT):
            for x in sm_gap(0, n): g(x)
    def light_pv(tag):
        if opt.nolight: return
        lq = LQ()
        for e in range(7): lq.issue(e, rd_v(e, 0, e >> 2, e & 3))
        for n in range(LSPLIT, 16):
            for x in sm_gap(0, n): g(x)
        sm_check(0, tag, True)
        lq.need(0)
        lq.issue(7, rd_v(7, 0, 1, 3))
        if opt.mprio: g(f"s_setprio {opt.mprio}")
        for e in range(8):
            if e % 2 == 0: lq.need(e+1)
            g(mf_pv(e, 0, e >> 2, e & 3))
        if opt.mprio: g(f"s_setprio {opt.prio}")
        g(f"s_cmp_ge_u32 s{S_SLOT}, 3")
        g(f"s_cselect_b32 s{S_DELTA}, {hex((-3*SLOT) & 0xffffffff)}, s{S_E}")
        for d in range(4): g(f"v_add_u32 v{VA+d}, s{S_DELTA}, v{VA+d}")
    def slot_next():
        g(f"s_add_u32 s{S_SLOT}, s{S_SLOT}, 1")
        g(f"s_cmp_eq_u32 s{S_SLOT}, 5")
        g(f"s_cselect_b32 s{S_SLOT}, 0, s{S_SLOT}")

    def cstamp(i, reg, val):
        if stamps and opt.loopstamps:
            g(f"s_cmp_lg_u32 s{reg}, {val}")
            g(f"s_cbranch_scc1 L_cs{i}_{reg}_{len(g.L)}")
            n = len(g.L) - 1
            g(f"s_memrealtime {sr(S_STAMP+2*i,2)}")
            g.lab(f"L_cs{i}_{reg}_{n}")
    def light_setup():
        attn_setup(True)
        wo_setup(S_J)
        g(f"s_mul_i32 s{S_E+2}, s{S_HKV}, {256*1152}")
        g(f"s_mul_i32 s{S_T0}, s{S_B}, {16*1152}")
        g(f"s_add_u32 s{S_E+2}, s{S_E+2}, s{S_T0}")
        g(f"s_mul_i32 s{S_T0}, s{S_J}, 4608")
        g(f"s_add_u32 s{S_E+2}, s{S_E+2}, s{S_T0}")
        g(f"s_mov_b32 s{S_E}, {2*SLOT}")
        g(f"s_mov_b32 s{S_SLOT}, 0")
        g(f"s_mov_b32 s{S_CUR}, 0")
        g(f"s_lshr_b32 s{S_E+1}, s{S_J}, 1")
    g.c("light waves: j = wave-4, tensor = j&1 (K/V), half = j>>1")
    g(f"s_sub_u32 s{S_J}, s{S_WAVE}, 4")
    g(f"v_mov_b32 v{VLANE}, v0")
    g("v_lshrrev_b32 v1, 4, v0")
    g("v_and_b32 v2, 15, v0")
    g(f"s_lshl_b32 s{S_T0}, s{S_ISV}, 1")
    g(f"v_lshlrev_b32 v3, s{S_T0}, v1")
    g("v_xor_b32 v3, v3, v2")
    g("v_lshlrev_b32 v3, 4, v3")
    g(f"v_lshl_add_u32 v{DV}, v1, 8, v3")
    g(f"s_cmp_eq_u32 s{S_ISV}, 0")
    for a in range(1, 4):
        g(f"s_cselect_b32 s{S_T0}, {a*64}, 0")
        g(f"v_xor_b32 v{DV+a}, s{S_T0}, v{DV}")
    g(f"s_lshr_b32 s{S_T0}, s{S_J}, 1")
    g(f"s_lshl_b32 s{S_T0}, s{S_T0}, 13")
    g(f"s_add_u32 s{S_KVBASE}, s{S_KVBASE}, s{S_T0}")
    g(f"s_lshl_b32 s{S_FL}, s{S_ISV}, 14")
    g(f"s_add_u32 s{S_FL}, s{S_FL}, s{S_T0}")
    RREG = [64, 96, 128, 0, 32]
    VPERM = [0, 4, 1, 2, 3]
    if opt.grp == "A": g(f"s_mov_b32 s{S_GRP}, 0")
    elif opt.grp == "B": g(f"s_mov_b32 s{S_GRP}, 1")
    else: g(f"s_and_b32 s{S_GRP}, s{S_B}, 1")
    g(f"s_cmp_eq_u32 s{S_GRP}, 0")
    g("s_cbranch_scc1 L_l_noburst")
    for idx in range(5):
        g(f"s_cmp_eq_u32 s{S_ISV}, 0")
        g(f"s_cselect_b32 s{S_T0}, {idx}, {VPERM[idx]}")
        g(f"s_lshl_b32 s{S_T0}, s{S_T0}, 14")
        g(f"s_add_u32 s{S_T0}, s{S_T0}, s{S_KVBASE}")
        g(f"s_add_u32 s{S_T1}, s{S_T0}, 4096")
        for p in range(8):
            g(f"buffer_load_dwordx4 {vr(RREG[idx]+p*4,4)}, v{DV+(p&3)}, {sr(S_KV,4)}, s{S_T1 if p >= 4 else S_T0} offen offset:{(p&3)*1024}{nt}")
    g.lab("L_l_noburst")
    T1, T2, T3 = VT0, VT1, VT2
    g(f"s_cmp_lt_u32 s{S_J}, 2")
    g("s_cbranch_scc1 L_lightA")
    g(f"v_lshrrev_b32 v{T1}, 3, v{VLANE}")
    g(f"s_lshl_b32 s{S_T1}, s{S_ISV}, 3")
    g(f"v_add_u32 v{T1}, s{S_T1}, v{T1}")
    g(f"v_lshrrev_b32 v{T2}, 1, v{T1}")
    g(f"v_and_b32 v{T3}, 7, v{VLANE}")
    g(f"v_xor_b32 v{T2}, v{T2}, v{T3}")
    g(f"v_lshlrev_b32 v{T2}, 4, v{T2}")
    g(f"v_mul_u32_u24 v{T1}, 1152, v{T1}")
    g(f"v_add_u32 v{XV}, v{T1}, v{T2}")
    g(f"s_mul_i32 s{S_SOFF}, s{S_B}, 92160")
    g(f"s_lshl_b32 s{S_M0}, s{S_ISV}, 10")
    def x_kp(gi, kp):
        g(f"s_add_u32 m0, s{S_M0}, {XG[gi] + kp*10240}")
        for t in range(5):
            g(f"s_add_u32 s{S_T2}, s{S_SOFF}, {t*18432 + (gi*3+kp)*128}")
            g(f"buffer_load_dwordx4 v{XV}, {sr(S_X,4)}, s{S_T2} offen lds")
            if t < 4: g("s_add_u32 m0, m0, 2048")
    for kp in range(3): x_kp(0, kp)
    light_setup()
    stamp(11)
    g("s_waitcnt vmcnt(10)")
    stamp(12)
    g("s_barrier")
    for k in range(1, 17):
        if k - 1 < 6: x_kp(1 + (k - 1)//3, (k - 1) % 3)
        if k == 2: g("s_waitcnt vmcnt(15)")
        if k == 4: g("s_waitcnt vmcnt(20)")
        if k == 6: g("s_waitcnt vmcnt(15)")
        if k == 12: g("s_waitcnt vmcnt(0)")
        g("s_barrier")
    g("s_branch L_lc")
    g.lab("L_lightA")
    g(f"v_lshrrev_b32 v{T1}, 5, v{VLANE}")
    g(f"v_bfe_u32 v{T2}, v{VLANE}, 1, 4")
    g(f"v_xor_b32 v{T2}, v{T2}, v{T1}")
    g(f"v_lshlrev_b32 v{T2}, 5, v{T2}")
    g(f"v_and_b32 v{T3}, 1, v{VLANE}")
    g(f"v_lshl_add_u32 v{T2}, v{T3}, 4, v{T2}")
    g(f"v_lshl_add_u32 v{T2}, v{T1}, 13, v{T2}")
    for p in range(8):
        x = ((2*(p & 1)) | (((p >> 2) & 1) << 2)) << 5
        g(f"v_xor_b32 v{QV+p}, {x}, v{T2}")
        if p: g(f"v_add_u32 v{QV+p}, {p*16384 - (p & 3)*1024}, v{QV+p}")
    g(f"s_lshl_b32 s{S_SOFF}, s{S_HKV}, 9")
    g(f"s_lshl_b32 s{S_T0}, s{S_ISV}, 17")
    g(f"s_add_u32 s{S_SOFF}, s{S_SOFF}, s{S_T0}")
    g(f"s_lshl_b32 s{S_M0}, s{S_ISV}, 13")
    def wq_issue():
        g(f"s_add_u32 m0, s{S_M0}, {WQB}")
        g(f"s_add_u32 s{S_M0}, s{S_M0}, 16384")
        for p in range(8):
            if p == 4:
                g("s_add_u32 m0, m0, 4096")
                g(f"s_and_b32 s{S_M0}, s{S_M0}, 0xffff")
            g(f"buffer_load_dwordx4 v{QV+p}, {sr(S_WQ,4)}, s{S_SOFF} offen offset:{(p&3)*1024} lds")
        g(f"s_add_u32 s{S_SOFF}, s{S_SOFF}, 0x40000")
    wq_issue(); wq_issue()
    light_setup()
    stamp(11)
    g("s_waitcnt vmcnt(8)")
    stamp(12)
    g("s_barrier")
    wq_issue(); wq_issue()
    g(f"s_mov_b32 s{S_I}, 1")
    g.lab("L_la_q")
    g("s_waitcnt vmcnt(16)")
    g("s_barrier")
    wq_issue()
    g(f"s_add_u32 s{S_I}, s{S_I}, 1")
    g(f"s_cmp_lt_u32 s{S_I}, 15")
    g("s_cbranch_scc1 L_la_q")
    g("s_waitcnt vmcnt(16)")
    g("s_barrier")
    g("s_waitcnt vmcnt(0)")
    g("s_barrier")
    g.lab("L_lc")
    def kv_issue():
        g(f"s_mov_b32 m0, s{S_M0}")
        g(f"s_add_u32 s{S_T0}, s{S_SOFF}, 4096")
        for p in range(8):
            if p == 4:
                g(f"s_add_u32 m0, m0, 4096")
                g(f"s_add_u32 s{S_M0}, s{S_M0}, {SLOT}")
            g(f"buffer_load_dwordx4 v{DV+(p&3)}, {sr(S_KV,4)}, s{S_T0 if p >= 4 else S_SOFF} offen offset:{(p&3)*1024}{nt} lds")
        g(f"s_add_u32 s{S_SOFF}, s{S_SOFF}, 16384")
        g(f"s_cmp_ge_u32 s{S_M0}, {5*SLOT}")
        g(f"s_cselect_b32 s{S_T0}, {5*SLOT}, 0")
        g(f"s_sub_u32 s{S_M0}, s{S_M0}, s{S_T0}")
    def flush(idx):
        g(f"s_cmp_eq_u32 s{S_ISV}, 0")
        g(f"s_cselect_b32 s{S_T0}, {idx}, {(VPERM[idx]+1) % 5}")
        g(f"s_lshl_b32 s{S_T0}, s{S_T0}, 15")
        g(f"s_add_u32 s{S_T0}, s{S_T0}, s{S_FL}")
        g(f"v_add_u32 v{DUM}, s{S_T0}, v{LV}")
        for p in range(8):
            g(f"ds_write_b128 v{DUM}, {vr(RREG[idx]+p*4,4)} offset:{p*1024}")
    g(f"s_lshl_b32 s{S_M0}, s{S_ISV}, 15")
    g(f"s_add_u32 s{S_M0}, s{S_M0}, s{S_FL}")
    g(f"s_mov_b32 s{S_SOFF}, s{S_KVBASE}")
    g(f"s_cmp_eq_u32 s{S_GRP}, 1")
    g("s_cbranch_scc1 L_lc_B")
    kv_issue()
    g("s_barrier")
    g(f"s_cmp_eq_u32 s{S_ISV}, 1")
    g("s_cbranch_scc1 L_lc_A1")
    kv_issue()
    g.lab("L_lc_A1")
    g("s_barrier")
    kv_issue()
    g(f"s_mov_b32 s{S_NXT}, 3")
    for r in range(64): g(f"v_mov_b32 v{O+r}, 0")
    g("s_branch L_lc_j")
    g.lab("L_lc_B")
    flush(0)
    g("s_barrier")
    flush(1)
    g("s_barrier")
    flush(2)
    g(f"s_add_u32 s{S_SOFF}, s{S_SOFF}, {5*16384}")
    g(f"s_add_u32 s{S_NXT}, s{S_ISV}, 5")
    g.lab("L_lc_j")
    g("s_waitcnt lgkmcnt(0)")
    light_init()
    g("s_waitcnt vmcnt(16)")
    g("s_barrier")
    q_read()
    g("s_waitcnt lgkmcnt(0)")
    g("s_barrier")
    g(f"s_cmp_eq_u32 s{S_GRP}, 0")
    g("s_cbranch_scc1 L_lc_z")
    flush(3); flush(4)
    g("s_waitcnt lgkmcnt(0)")
    g("s_setprio 1")
    for r in range(64): g(f"v_mov_b32 v{O+r}, 0")
    g(f"s_setprio {opt.prio}")
    g.lab("L_lc_z")
    def l_issue(tag):
        g(f"s_cmp_gt_u32 s{S_NXT}, 15")
        g(f"s_cbranch_scc1 L_l_no{tag}")
        g(f"s_sub_u32 s{S_T0}, s{S_NXT}, s{S_CUR}")
        g(f"s_cmp_gt_u32 s{S_T0}, 4")
        g(f"s_cbranch_scc1 L_l_no{tag}")
        g(f"s_cmp_le_u32 s{S_T0}, 2")
        g(f"s_cbranch_scc1 L_l_go{tag}")
        if tag == "a" and opt.stagiss:
            g(f"s_bitcmp{opt.stagiss-1}_b32 s{S_E+1}, 0")
            g(f"s_cbranch_scc1 L_l_no{tag}")
        g(f"s_getreg_b32 s{S_T0}, hwreg(HW_REG_IB_STS)")
        g(f"s_and_b32 s{S_T0}, s{S_T0}, 0xc00008")
        g(f"s_cbranch_scc1 L_l_no{tag}")
        g.lab(f"L_l_go{tag}")
        if not opt.nodma: kv_issue()
        g(f"s_add_u32 s{S_NXT}, s{S_NXT}, 1")
        g.lab(f"L_l_no{tag}")
    g.lab("L_l_loop")
    if opt.loopstamps:
        g(f"s_memrealtime s[96:97]")
    g(f"s_cmp_ge_u32 s{S_CUR}, 14")
    g("s_cbranch_scc1 L_l_late")
    l_issue("a")
    g(f"s_cmp_eq_u32 s{S_CUR}, 8")
    g("s_cbranch_scc1 L_l_x8")
    g.lab("L_l_cmp")
    if opt.loopstamps:
        g(f"s_memrealtime s[98:99]")
    g(f"s_bitcmp1_b32 s{S_E+1}, 0")
    g("s_cbranch_scc1 L_l_pv")
    light_qk()
    g(f"s_cmp_lg_u32 s{S_CUR}, 15")
    g("s_cbranch_scc1 L_l_end")
    if not opt.nolight:
        for n in range(LSPLIT, 16):
            for x in sm_gap(0, n): g(x)
        sm_check(0, "l2", True)
    g("s_branch L_l_ml")
    g.lab("L_l_pv")
    g(f"s_cmp_eq_u32 s{S_CUR}, 0")
    g("s_cbranch_scc1 L_l_end")
    light_pv("l")
    g(f"s_cmp_eq_u32 s{S_CUR}, 15")
    g("s_cbranch_scc1 L_l_ml")
    g.lab("L_l_end")
    if opt.loopstamps:
        g(f"s_memrealtime s[100:101]")
    slot_next()
    g(f"s_add_u32 s{S_E+1}, s{S_E+1}, 1")
    l_issue("b")
    g(f"s_sub_u32 s{S_T0}, s{S_NXT}, s{S_CUR}")
    g(f"s_add_u32 s{S_CUR}, s{S_CUR}, 1")
    g("s_waitcnt vmcnt(24)")
    g(f"s_cmp_ge_u32 s{S_T0}, 5")
    g(f"s_cbranch_scc1 L_l_wd")
    g("s_waitcnt vmcnt(16)")
    g(f"s_cmp_eq_u32 s{S_T0}, 4")
    g(f"s_cbranch_scc1 L_l_wd")
    g("s_waitcnt vmcnt(8)")
    g(f"s_cmp_eq_u32 s{S_T0}, 3")
    g(f"s_cbranch_scc1 L_l_wd")
    g("s_waitcnt vmcnt(0)")
    g.lab("L_l_wd")
    if opt.loopstamps:
        g(f"s_memrealtime s[6:7]")
        g("s_waitcnt lgkmcnt(0)")
        for (cur, base) in ((7, 1), (8, 11)):
            g(f"s_cmp_eq_u32 s{S_CUR}, {cur}")
            for k, src in enumerate((96, 98, 100, 6)):
                g(f"s_cselect_b64 {sr(S_STAMP+2*(base+k),2)}, {sr(src,2)}, {sr(S_STAMP+2*(base+k),2)}")
        g(f"s_cmp_eq_u32 s{S_CUR}, 9")
        g(f"s_cselect_b64 {sr(S_STAMP+2*15,2)}, s[96:97], {sr(S_STAMP+2*15,2)}")
    g("s_barrier")
    g("s_branch L_l_loop")
    if not opt.nolight:
        g.lab("L_l_first")
        g("s_setprio 1")
        rowmax(0, VM, VT0)
        for r in range(16): g(f"v_sub_f32 v{SB+r}, v{SB+r}, v{VM}")
        for r in range(16): g(f"v_sub_f32 v{NEGM+r}, 0, v{VM}")
        g(f"s_setprio {opt.prio}")
        g("s_branch L_l_firstd")
    g.lab("L_l_x8")
    g(f"v_lshlrev_b32 v{XV}, 7, v{VLANE}")
    g(f"buffer_load_dword v{DUM}, v{XV}, {sr(S_WO,4)}, s{S_E+2} offen")
    if not opt.red2:
        g(f"s_lshl_b32 s{S_T0}, s{S_B}, 3")
        g(f"buffer_load_dwordx2 {vr(QV,2)}, off, {sr(S_DBG,4)}, s{S_T0} sc1")
    g("s_branch L_l_cmp")
    g.lab("L_l_late")
    g(f"s_mov_b32 s{S_NXT}, 17")
    g(f"s_sub_u32 s{S_T0}, s{S_CUR}, s{S_ISV}")
    g(f"s_cmp_lg_u32 s{S_T0}, 13")
    g("s_cbranch_scc1 L_l_late1")
    if not opt.nodma: kv_issue()
    g(f"s_mov_b32 s{S_NXT}, 18")
    g.lab("L_l_late1")
    g(f"s_sub_u32 s{S_T1}, s{S_CUR}, 12")
    g(f"s_lshl_b32 s{S_T1}, s{S_T1}, 15")
    wo_issue(f"s{S_T1}")
    g("s_branch L_l_cmp")

    ML, OWN, MA = 200, 128, 202
    g.lab("L_l_ml")
    g(f"v_mov_b32 v{VT0}, v{VL}")
    g(f"v_mov_b32 v{ML}, v{NEGM}")
    g("s_nop 0")
    g(f"v_permlane32_swap_b32 v{VL}, v{VT0}")
    g("s_nop 1")
    g(f"v_add_f32 v{ML+1}, v{VL}, v{VT0}")
    g(f"s_lshl_b32 s{S_T0}, s{S_J}, 9")
    g(f"v_lshrrev_b32 v{VT1}, 1, v{LV}")
    g(f"v_add_u32 v{VT2}, s{S_T0}, v{VT1}")
    g(f"ds_write_b64 v{VT2}, {vr(ML,2)} offset:{MLB}")
    def blk_addr(idx_sreg, vdst):
        g(f"s_lshl_b32 s{S_T1}, s{idx_sreg}, 12")
        g(f"s_add_u32 s{S_T1}, s{S_T1}, {DUMPA}")
        g(f"v_add_u32 v{vdst}, s{S_T1}, v{LV}")
    for k in range(1, 4):
        g(f"s_mul_i32 s{S_T0}, s{S_J}, 3")
        g(f"s_add_u32 s{S_T0}, s{S_T0}, {k-1}")
        blk_addr(S_T0, MA + k - 1)
        g(f"s_add_u32 s{S_T0}, s{S_J}, {k}")
        g(f"s_and_b32 s{S_T0}, s{S_T0}, 3")
        g(f"s_lshl_b32 s{S_T3}, s{S_T0}, 9")
        g(f"v_add_u32 v{KA+k}, s{S_T3}, v{VT1}")
        g(f"s_mul_i32 s{S_T0}, s{S_T0}, 3")
        g(f"s_add_u32 s{S_T0}, s{S_T0}, {3-k}")
        blk_addr(S_T0, MA + 2 + k)
    wo_issue(4)
    g("s_waitcnt vmcnt(8) lgkmcnt(0)")
    g("s_setprio 1")
    g("s_barrier")
    stamp(1)
    W = PB + 8
    for k in range(1, 4):
        g(f"ds_read_b64 {vr(W+2*k-2,2)}, v{KA+k} offset:{MLB}")
    g(f"s_cmp_lt_u32 s{S_J}, 2")
    g("s_cbranch_scc1 L_mg_nopv")
    lq = LQ()
    for e in range(6): lq.issue(e, rd_v(e, 0, e >> 2, e & 3))
    for e in range(8):
        lq.need(e)
        if not opt.nolight: g(mf_pv(e, 0, e >> 2, e & 3))
        if e < 2: lq.issue(6 + e, rd_v(6 + e, 0, 1, 2 + e))
        for kk in (2*e, 2*e+1): lq.issue(100 + kk, a_read(kk >> 3, kk & 7, (kk >> 3)*SLOT))
    g("s_branch L_mg_pvd")
    g.lab("L_mg_nopv")
    for par in range(2):
        for k in range(8):
            for x in a_read(par, k, par*SLOT): g(x)
    g.lab("L_mg_pvd")
    wo_issue(0)
    g("s_waitcnt lgkmcnt(0)")
    g("s_barrier")
    g(f"v_min3_f32 v{VM}, v{W}, v{W+2}, v{W+4}")
    g(f"v_min_f32 v{VM}, v{VM}, v{ML}")
    g(f"v_sub_f32 v{TB}, v{VM}, v{ML}")
    for k in range(1, 4): g(f"v_sub_f32 v{TB+k}, v{VM}, v{W+2*k-2}")
    for k in range(4): g(f"v_exp_f32 v{TB+k}, v{TB+k}")
    for jj in range(4):
        if jj < 3:
            g(f"s_cmp_lg_u32 s{S_J}, {jj}")
            g(f"s_cbranch_scc1 L_mg_d{jj+1}")
        for k in range(1, 4):
            dt = (jj + k) & 3
            for q in range(4):
                g(f"ds_write_b128 v{MA+k-1}, {vr(O+dt*16+q*4,4)} offset:{q*1024}")
        g(f"v_mul_f32 v{VL}, v{TB}, v{ML+1}")
        for k in range(1, 4): g(f"v_fmac_f32 v{VL}, v{TB+k}, v{W+2*k-1}")
        g(f"v_rcp_f32 v{VL}, v{VL}")
        g("s_nop 0")
        for k in range(4): g(f"v_mul_f32 v{TB+k}, v{TB+k}, v{VL}")
        for r in range(16): g(f"v_mul_f32 v{OWN+r}, v{O+jj*16+r}, v{TB}")
        if jj < 3:
            g("s_branch L_mg_dd")
            g.lab(f"L_mg_d{jj+1}")
    g.lab("L_mg_dd")
    g(f"s_lshl_b32 s{S_T0}, s{S_J}, 11")
    g(f"s_add_u32 s{S_T0}, s{S_T0}, {OFB + 4*8192}")
    g(f"v_add_u32 v{VT2}, s{S_T0}, v{LV}")
    g(f"v_add_u32 v{QA}, {OFB + 3*8192}, v{LV}")
    g("s_waitcnt lgkmcnt(0)")
    stamp(2)
    g("s_barrier")
    stamp(3)
    for k in range(1, 4):
        for q in range(4):
            g(f"ds_read_b128 {vr(O+(k-1)*16+q*4,4)}, v{MA+2+k} offset:{q*1024}")
    for k in range(1, 4):
        g(f"s_waitcnt lgkmcnt({12-4*k})")
        for r in range(16): g(f"v_fmac_f32 v{OWN+r}, v{O+(k-1)*16+r}, v{TB+k}")
    for r in range(8): g(f"v_cvt_pk_bf16_f32 v{FB+r}, v{OWN+2*r}, v{OWN+2*r+1}")
    g(f"ds_write_b128 v{VT2}, {vr(FB,4)}")
    g(f"ds_write_b128 v{VT2}, {vr(FB+4,4)} offset:1024")
    g(f"s_setprio {opt.oprio}")
    stamp(4)
    g("s_branch L_oproj")

    ACC, XF, AF, WA4, XA = 0, 80, 120, 152, 156
    def acc(j, t): return ACC + (j*5 + t)*4
    g.lab("L_qproj")
    if opt.hprio: g(f"s_setprio {opt.hprio}")
    g(f"s_mul_i32 s{S_T0}, s{S_B}, 36")
    g(f"s_lshl_b32 s{S_T1}, s{S_WAVE}, 4")
    g(f"s_add_u32 s{S_T0}, s{S_T0}, s{S_T1}")
    g(f"s_lshl_b32 s{S_T0}, s{S_T0}, 13")
    g(f"s_lshl_b32 s{S_T1}, s{S_HKV}, 9")
    g(f"s_add_u32 s{S_T0}, s{S_T0}, s{S_T1}")
    g("v_lshrrev_b32 v1, 2, v0")
    g("v_and_b32 v2, 3, v0")
    g("v_lshlrev_b32 v1, 13, v1")
    g("v_lshl_add_u32 v1, v2, 7, v1")
    g(f"s_cmp_eq_u32 s{S_WAVE}, 3")
    g("s_cbranch_scc1 L_q_nopf")
    if not opt.nocoop:
        g(f"buffer_load_dword v255, v1, {sr(S_WQ,4)}, s{S_T0} offen")
        g(f"s_mul_i32 s{S_T0}, s{S_B}, 92160")
        g(f"s_and_b32 s{S_T1}, s{S_HKV}, 1")
        g(f"s_mul_i32 s{S_T1}, s{S_T1}, 46080")
        g(f"s_add_u32 s{S_T0}, s{S_T0}, s{S_T1}")
        g(f"s_mul_i32 s{S_T1}, s{S_WAVE}, 15360")
        g(f"s_add_u32 s{S_T0}, s{S_T0}, s{S_T1}")
        g(f"s_add_u32 s{S_T1}, s{S_T0}, 7168")
        g("v_lshlrev_b32 v1, 7, v0")
        g(f"buffer_load_dword v255, v1, {sr(S_X,4)}, s{S_T0} offen")
        g(f"buffer_load_dword v255, v1, {sr(S_X,4)}, s{S_T1} offen")
    g("s_branch L_q_notag")
    g.lab("L_q_nopf")
    if not opt.red2:
        g(f"s_cmp_lg_u32 s{S_HKV}, 0")
        g("s_cbranch_scc1 L_q_notag")
        g(f"s_memrealtime {sr(S_CLK,2)}")
        g(f"s_lshl_b32 s{S_T0}, s{S_B}, 3")
        g("s_waitcnt lgkmcnt(0)")
        g(f"s_or_b32 s{S_T1}, s{S_CLK}, 1")
        g(f"v_mov_b32 v252, s{S_T1}")
        g(f"v_mov_b32 v253, s{S_CLK+1}")
        g("s_mov_b64 exec, 1")
        g(f"buffer_store_dwordx2 v[252:253], off, {sr(S_DBG,4)}, s{S_T0} sc1")
        g("s_mov_b64 exec, -1")
    g.lab("L_q_notag")
    g("v_and_b32 v1, 15, v0")
    g("v_lshrrev_b32 v2, 4, v0")
    g("v_lshrrev_b32 v3, 1, v1")
    g("v_xor_b32 v3, v3, v2")
    g("v_lshlrev_b32 v3, 4, v3")
    g(f"v_lshl_add_u32 v{XA}, v1, 7, v3")
    g(f"v_add_u32 v{XA}, {XG[0]}, v{XA}")
    g(f"v_xor_b32 v{XA+1}, 64, v{XA}")
    g("v_bfe_u32 v3, v0, 2, 2")
    g("v_lshl_add_u32 v4, v2, 3, v3")
    g("v_lshlrev_b32 v4, 9, v4")
    g("v_bfe_u32 v3, v0, 2, 3")
    g(f"s_lshl_b32 s{S_T0}, s{S_WAVE}, 2")
    g(f"v_xor_b32 v3, s{S_T0}, v3")
    g("v_lshl_add_u32 v4, v3, 5, v4")
    g("v_and_b32 v3, 3, v0")
    g(f"v_lshl_add_u32 v{WA4}, v3, 3, v4")
    g(f"v_add_u32 v{WA4}, {WQB}, v{WA4}")
    for j in range(1, 4): g(f"v_xor_b32 v{WA4+j}, {j*32}, v{WA4}")
    g(f"v_mov_b32 v{VLANE}, v0")
    attn_setup(None)
    QW = 160
    g(f"s_and_b32 s{S_T0}, s{S_WAVE}, 1")
    g(f"s_lshl_b32 s{S_T0}, s{S_T0}, 12")
    g(f"s_lshr_b32 s{S_T1}, s{S_WAVE}, 1")
    g(f"s_lshl_b32 s{S_T1}, s{S_T1}, 8")
    g(f"s_add_u32 s{S_T0}, s{S_T0}, s{S_T1}")
    g(f"s_add_u32 s{S_T0}, s{S_T0}, {QB}")
    g(f"v_and_b32 v{QW}, 47, v0")
    g(f"v_lshlrev_b32 v{QW}, 4, v{QW}")
    g(f"v_bfe_u32 v{QW+1}, v0, 4, 1")
    g(f"v_lshl_add_u32 v{QW}, v{QW+1}, 3, v{QW}")
    g(f"v_add_u32 v{QW}, s{S_T0}, v{QW}")
    g(f"s_mov_b32 s{S_SCALE}, {hex(f32bits(1.4426950408889634 * 128 ** -0.5))}")
    g(f"s_mov_b32 s{S_THR}, {hex(f32bits(65536.0))}")
    for r in range(80): g(f"v_mov_b32 v{ACC+r}, 0")
    def q_reads(par):
        out = []
        for j in range(4):
            a = AF + par*16 + j*4
            out.append(f"ds_read_b64_tr_b16 {vr(a,2)}, v{WA4+j} offset:{par*16384}")
            out.append(f"ds_read_b64_tr_b16 {vr(a+2,2)}, v{WA4+j} offset:{par*16384+2048}")
        for t in range(5):
            out.append(f"ds_read_b128 {vr(XF+par*20+t*4,4)}, v{XA+par} offset:{t*2048}")
        return out
    def q_mfmas(par, fill):
        k = 0
        for j in range(4):
            for t in range(5):
                g(f"v_mfma_f32_16x16x32_bf16 {vr(acc(j,t),4)}, {vr(AF+par*16+j*4,4)}, {vr(XF+par*20+t*4,4)}, {vr(acc(j,t),4)}")
                for _ in range(2):
                    if k < len(fill): g(fill[k]); k += 1
        while k < len(fill): g(fill[k]); k += 1
    g(f"s_mov_b32 s{S_I}, 0")
    g("s_barrier")
    stamp(1)
    for s in q_reads(0): g(s)
    g("s_branch L_q_mid")
    g.lab("L_q_top")
    q_mfmas(1, q_reads(0))
    g.lab("L_q_mid")
    g(f"s_mov_b32 s{S_T0}, 10240")
    g(f"s_cmp_eq_u32 s{S_I}, 2")
    g(f"s_cselect_b32 s{S_T0}, {XG[1]-XG[0]-20480}, s{S_T0}")
    g(f"s_cmp_eq_u32 s{S_I}, 5")
    g(f"s_cselect_b32 s{S_T0}, {hex((XG[2]-XG[1]-20480) & 0xffffffff)}, s{S_T0}")
    g("s_waitcnt lgkmcnt(0)")
    g("s_barrier")
    upd = [f"v_xor_b32 v{WA4+j}, {hex(WQB ^ (WQB+32768))}, v{WA4+j}" for j in range(4)] + \
          [f"v_add_u32 v{XA+s}, s{S_T0}, v{XA+s}" for s in range(2)]
    q_mfmas(0, q_reads(1) + upd)
    g(f"s_add_u32 s{S_I}, s{S_I}, 1")
    g(f"s_cmp_lt_u32 s{S_I}, 9")
    g("s_waitcnt lgkmcnt(0)")
    g("s_barrier")
    g("s_cbranch_scc1 L_q_top")
    def q_out(j, t):
        a = acc(j, t)
        return [f"v_mul_f32 v{a+r}, s{S_SCALE}, v{a+r}" for r in range(4)] + \
               [f"v_cvt_pk_bf16_f32 v{a}, v{a}, v{a+1}", f"v_cvt_pk_bf16_f32 v{a+1}, v{a+2}, v{a+3}",
                f"ds_write_b64 v{QW}, {vr(a,2)} offset:{t*8192 + j*1024}"]
    outs = []
    for j in range(4):
        grp = [q_out(j, t) for t in range(5)]
        for x in grp: outs += x[:4]
        for x in grp: outs += x[4:6]
        for x in grp: outs += x[6:]
    q_mfmas(1, ["s_nop 0"]*8 + outs)
    stamp(2)
    g("s_waitcnt vmcnt(0) lgkmcnt(0)")
    g("s_barrier")
    ORDER = "QQQPQPQPQPQPQPPP"
    def hdesc(n, so):
        st = n >> 4; m = n & 15
        k = ORDER[:m].count(ORDER[m])
        if ORDER[m] == "Q":
            return [f"ds_read_b128 {vr(fb(n),4)}, v{KA+k} offset:{so + st*8192}"], mf_qk(n, st, k)
        base = so + 16384 + st*8192 + (k >> 2)*4096
        return [f"ds_read_b64_tr_b16 {vr(fb(n),2)}, v{VA+(k&3)} offset:{base}",
                f"ds_read_b64_tr_b16 {vr(fb(n)+2,2)}, v{VA+(k&3)} offset:{base+2048}"], mf_pv(n, st, k >> 2, k & 3)
    def h_exp(sb, r): return ("v_mov_b32" if opt.noexp else "v_exp_f32") + f" v{TB + (r % 8)}, v{SB+sb*16+r}"
    def h_add(r):
        if r == 1: return f"v_add_f32 v{VTS}, v{TB}, v{TB+1}"
        return f"v_add_f32 v{VTS}, v{VTS}, v{TB+(r%8)}"
    def h_cvt(sb, k): return f"v_cvt_pk_bf16_f32 v{PB+sb*8+k}, v{TB+((2*k)%8)}, v{TB+((2*k+1)%8)}"
    CVT_AT = {1: 0, 3: 1, 5: 2, 9: 3, 10: 4, 11: 5, 13: 6, 15: 7}
    tramp = []
    def h_branch(sb):
        k = len(tramp)
        g(f"s_cbranch_vccnz L_tr{k}")
        g.lab(f"L_bk{k}")
        g(f"v_add_f32 v{VL}, v{VL}, v{VTS}")
        tramp.append(sb)
    def h_gap(sb, m, reads):
        if opt.nosm:
            reads(); return
        reads()
        if m <= 13: g(h_exp(sb, m + 2))
        if m == 14: g(h_exp(sb ^ 1, 0))
        if m <= 14 and not opt.noadd: g(h_add(m + 1))
        if m in CVT_AT: g(h_cvt(sb, CVT_AT[m]))
        if m == 14: g(f"v_cmp_lt_f32 vcc, s{S_THR}, v{VTS}")
        if m == 15:
            h_branch(sb)
            g(h_exp(sb ^ 1, 1))
    def plain_softmax(sb, first=0):
        for r in range(first, 2): g(h_exp(sb, r))
        for m in range(15):
            if m <= 13: g(h_exp(sb, m + 2))
            else: g("s_nop 0")
            g(h_add(m + 1))
            if (m + 1) & 1: g(h_cvt(sb, (m + 1) >> 1))
    WAITS = {4: {0: 1, 2: 4, 5: 8, 9: 12, 13: 16, 17: 20, 21: 24, 25: 27},
             3: {0: 0, 1: 2, 3: 5, 6: 8, 9: 11, 12: 14, 15: 17, 18: 20, 21: 23, 24: 27},
             2: {0: 0, **{n: n + 1 for n in range(1, 28, 2)}}}[opt.wgrp]
    POST = [[0, 1], [2, 3], [4, 5], [6]]
    SO = {0: 0, 1: SLOT, 2: 0, 3: SLOT, 4: 0}
    UPD = {1: 2*SLOT, 3: 2*SLOT, 4: (-4*SLOT) & 0xffffffff}
    lq = LQ()
    for s in range(8):
        lq.issue(s, [f"ds_read_b128 {vr(QF+4*s,4)}, v{QA} offset:{s*1024}"] + rd_k(s, 0, s))
    for r in range(16): g(f"v_mov_b32 v{O+r}, 0")
    for s in range(8):
        lq.need(s)
        g(mf_qk(s, 0, s, czero=True))
        if s >= 1: lq.issue(8+s-1, rd_k(8+s-1, 1, s-1))
        for r in range(5):
            if s < 7: g(f"v_mov_b32 v{O+16+5*s+r}, 0")
    lq.issue(15, rd_k(15, 1, 7))
    g("s_barrier")
    stamp(3)
    for r in range(51, 64): g(f"v_mov_b32 v{O+r}, 0")
    rowmax(0, VM, VT0)
    for r in range(16): g(f"v_sub_f32 v{NEGM+r}, 0, v{VM}")
    for r in range(16): g(f"v_sub_f32 v{SB+r}, v{SB+r}, v{VM}")
    g(sm_exp(0, 0))
    for s in range(8):
        lq.need(8+s)
        g(mf_qk(8+s, 1, s))
        for n in (2*s, 2*s+1):
            for x in sm_gap(0, n): g(x)
    g(f"v_mov_b32 v{VL}, v{VTS}")
    g(f"s_mov_b32 s{S_I}, 0")
    g("s_barrier")
    lq.clear()
    for f in range(7): lq.issue(f, hdesc(f, SO[1])[0])
    g(h_exp(1, 0)); g(h_exp(1, 1))
    g("s_branch L_mid")
    g.raw(".p2align 3")
    g.lab("L_top")
    for it in range(5):
        slot = (it + 1) % 5
        so = SO[slot]
        lq = LQ()
        for n in range(28, 32):
            g(hdesc(n, 0)[1])
            h_gap(0, n - 16, lambda: [lq.issue(f, hdesc(f, so)[0]) for f in POST[n - 28]])
        if it == 0: g.lab("L_mid")
        upd = []
        if slot in UPD:
            upd = [f"v_add_u32 v{KA+k}, {hex(UPD[slot])}, v{KA+k}" for k in range(8)] + \
                  [f"v_add_u32 v{VA+d}, {hex(UPD[slot])}, v{VA+d}" for d in range(4)]
        def rds(n):
            if n + 7 < 32: lq.issue(n + 7, hdesc(n + 7, so)[0])
            if n + 1 in WAITS: lq.need(WAITS[n + 1])
            if n == 27: g("s_waitcnt lgkmcnt(0)")
        lq.need(WAITS[0])
        for n in range(28):
            g(hdesc(n, so)[1])
            h_gap(1 if n < 16 else 0, n & 15, lambda: rds(n))
            if upd:
                if n in (17, 19, 21): g(upd.pop(0))
                if n in (25, 26, 27):
                    for _ in range(3): g(upd.pop(0))
            if stamps and n == 20:
                g(f"s_cmp_eq_u32 s{S_I}, {opt.hit}")
                g(f"s_cbranch_scc0 L_hs{it}")
                g(f"s_memrealtime {sr(S_STAMP+2*(11+it),2)}")
                g.lab(f"L_hs{it}")
            if it == 4 and n == 25:
                g(f"s_add_u32 s{S_I}, s{S_I}, 1")
                g(f"s_cmp_lt_u32 s{S_I}, 3")
        g("s_barrier")
    g("s_cbranch_scc1 L_top")
    stamp(4)
    lq = LQ()
    def edesc(e):
        st = e >> 3; idx = e & 7
        if st: idx = (idx & 1)*4 + (idx >> 1)
        base = SO[1] + 16384 + st*8192 + (idx >> 2)*4096
        return [f"ds_read_b64_tr_b16 {vr(fb(e),2)}, v{VA+(idx&3)} offset:{base}",
                f"ds_read_b64_tr_b16 {vr(fb(e)+2,2)}, v{VA+(idx&3)} offset:{base+2048}"], mf_pv(e, st, idx >> 2, idx & 3)
    for n in range(28, 32):
        g(hdesc(n, 0)[1])
        h_gap(0, n - 16, lambda: [lq.issue(f, edesc(f)[0]) for f in POST[n - 28]])
    for e in range(8):
        lq.need(e)
        g(edesc(e)[1])
        lq.issue(e + 7, edesc(e + 7)[0])
        if e < 6:
            for kk in range([0,3,6,9,12,14][e], [3,6,9,12,14,16][e]):
                lq.issue(100 + kk, a_read(kk >> 3, kk & 7, (kk >> 3)*SLOT))
        for m in (2*e, 2*e+1):
            if m <= 13: g(h_exp(1, m + 2))
            if m <= 14: g(h_add(m + 1))
            if m <= 14 and (m + 1) & 1: g(h_cvt(1, (m + 1) >> 1))
    g(f"v_cmp_lt_f32 vcc, s{S_THR}, v{VTS}")
    lq.need(115)
    g("s_barrier")
    h_branch(2)
    g(f"v_mov_b32 v{VT0}, v{VL}")
    g(f"s_lshl_b32 s{S_T0}, s{S_WAVE}, 13")
    def norm(kap):
        b = O + kap*8
        d = SB + 16 + kap*4 if kap < 4 else TB + (kap-4)*4
        return [f"v_mul_f32 v{b+r}, v{b+r}, v{VL}" for r in range(8)] + \
               [f"v_cvt_pk_bf16_f32 v{d+r}, v{b+2*r}, v{b+2*r+1}" for r in range(4)]
    fill = [f"v_permlane32_swap_b32 v{VL}, v{VT0}", "s_nop 1", f"v_add_f32 v{VL}, v{VL}, v{VT0}",
            f"v_rcp_f32 v{VL}, v{VL}", f"v_add_u32 v{VT0}, s{S_T0}, v{LV}"]
    for e in range(8, 16):
        lq.need(e)
        g(edesc(e)[1])
        if e + 7 < 16: lq.issue(e + 7, edesc(e + 7)[0])
        if e == 9: fill += ["s_nop 4"]
        if e == 10: fill += ["s_nop 4"]
        if e == 11:
            for kap in range(8): fill += norm(kap)
        for _ in range(6):
            if fill: g(fill.pop(0))
    while fill: g(fill.pop(0))
    g("s_waitcnt lgkmcnt(0)")
    if opt.hit == 9: stamp(11)
    g("s_barrier")
    if opt.hit == 9: stamp(12)
    for kap in range(8):
        g(f"ds_write_b128 v{VT0}, {vr(SB + 16 + kap*4 if kap < 4 else TB + (kap-4)*4,4)} offset:{OFB + kap*1024}")

    SV = LV
    LN = VLANE
    def o_base():
        g(f"s_and_b32 s{S_T3}, s{S_WAVE}, 3")
        g(f"s_mul_i32 s{S_SOFF}, s{S_B}, {96*16*1024}")
        g(f"s_lshl_b32 s{S_T0}, s{S_HKV}, 10")
        g(f"s_add_u32 s{S_SOFF}, s{S_SOFF}, s{S_T0}")
        g(f"s_lshl_b32 s{S_T0}, s{S_T3}, 14")
        g(f"s_add_u32 s{S_SOFF}, s{S_SOFF}, s{S_T0}")
    stf = opt.stflag
    def pk(dst, src):
        return [f"v_cvt_pk_bf16_f32 v{dst}, v{src}, v{src+1}", f"v_cvt_pk_bf16_f32 v{dst+1}, v{src+2}, v{src+3}"]
    def out_ops(nq, c):
        oa = OA + (c & 1)*12
        p = PK + (c & 1)*4
        if nq == 2: p = PK + c*4
        ops = pk(p, oa) + pk(p+2, oa+4)
        for cc in ([c] if nq == 3 or not opt.defer else {4: [0, 1, 2], 5: [3, 4, 5]}.get(c, [c] if c > 5 else [])):
            if nq == 2: p = PK + cc*4
            ops.append(f"buffer_store_dwordx4 {vr(p,4)}, v{SV}, {sr(S_WS,4)}, s{S_SOFF} offen{stf}")
            ops.append(f"s_add_u32 s{S_SOFF}, s{S_SOFF}, {4*16384}")
        if nq == 3:
            ops += pk(PK + 8 + 2*(c & 1), oa+8)
            if (c & 1) or c == 8:
                ops.append(f"buffer_store_dwordx4 {vr(PK+8,4)}, v{SV}, {sr(S_WS,4)}, s{S_M0} offen{stf}")
                ops.append(f"s_add_u32 s{S_M0}, s{S_M0}, {4*16384}")
        return ops
    CSLOT = [2, 3, 4, 0, 3, 1, 2, 4, 0]
    def o_step(nq, c, hi, dma, vq):
        par = c & 1
        oa = OA + par*12
        outs = out_ops(nq, c - 1) if c >= 1 else [f"v_add_u32 v{WA}, {2*SLOT}, v{WA}"]
        rds = []
        if 1 <= c <= 7:
            for k in range(8): rds += a_read(par ^ 1, k)
        lq = LQ()
        def bread(k):
            return [f"ds_read_b128 {vr(BF+(t*8+k)*4,4)}, v{QA if hi else SV} offset:{(0 if hi else OFB) + (t*8+k)*1024}" for t in range(nq)]
        if c == 0:
            for k in range(4): lq.issue(k, bread(k))
        for k in range(8):
            if c == 0: lq.need(k)
            for t in range(nq):
                cc = "0" if k == 0 else vr(oa+t*4,4)
                g(f"v_mfma_f32_16x16x32_bf16 {vr(oa+t*4,4)}, {vr(AB+par*32+k*4,4)}, {vr(BF+(t*8+k)*4,4)}, {cc}")
                if c == 0 and t == 0 and k < 4: lq.issue(k + 4, bread(k + 4))
                if dma and t == 1:
                    nm, grp = dma.pop(0)
                    for x in grp: g(x)
                    vq.append(nm)
                if rds:
                    g(rds.pop(0)); g(rds.pop(0))
                    if not rds and c < 7:
                        d = ((CSLOT[c + 2] - CSLOT[c + 1])*SLOT) & 0xffffffff
                        outs.insert(0, f"v_add_u32 v{WA}, {hex(d)}, v{WA}")
                elif k*nq + t >= 8:
                    for _ in range(2):
                        if outs:
                            if outs[0].startswith("buffer_store"): vq.append("st")
                            g(outs.pop(0))
        while outs:
            if outs[0].startswith("buffer_store"): vq.append("st")
            g(outs.pop(0))
    def o_all(nq, hi):
        vq = ["c3"]*8
        g("s_waitcnt lgkmcnt(0)")
        g("s_barrier")
        stamp(5)
        for c in range(9):
            dma = [(f"c{c+4}", x) for x in wo_list(CSLOT[c+4])] if hi and c <= 4 else []
            o_step(nq, c, hi, dma, vq)
            if c in (0, 2, 4, 6):
                if hi:
                    need = f"c{min(c+3, 8)}"
                    last = len(vq) - 1 - vq[::-1].index(need)
                    g(f"s_waitcnt vmcnt({len(vq)-1-last}) lgkmcnt(0)")
                else:
                    g("s_waitcnt lgkmcnt(0)")
                g("s_barrier")
                if c == 0 and opt.hit == 9: stamp(13)
            elif c < 8:
                g("s_waitcnt lgkmcnt(0)")
        g("s_nop 7")
        for x in out_ops(nq, 8): g(x)
    o_base()
    g(f"s_add_u32 s{S_M0}, s{S_SOFF}, {72*16384}")
    g(f"s_add_u32 s{S_SOFF}, s{S_SOFF}, {36*16384}")
    o_all(3, False)
    g("s_branch L_fin")
    g.lab("L_oproj")
    o_base()
    o_all(2, True)
    g.lab("L_fin")
    stamp(6)

    def reduce_body(s_b, s_u, s_ws, s_out, vlane, lab, ldf, t0):
        g(f"s_mul_i32 s{t0}, s{s_b}, 96")
        g(f"s_add_u32 s{t0}, s{t0}, s{s_u}")
        g(f"s_lshl_b32 s{t0}, s{t0}, 14")
        g(f"v_lshlrev_b32 v1, 4, v{vlane}")
        g(f"v_and_b32 v2, 15, v{vlane}")
        g(f"v_lshrrev_b32 v3, 4, v{vlane}")
        for p in range(16):
            if p and p % 4 == 0: g(f"s_add_u32 s{t0}, s{t0}, 4096")
            g(f"buffer_load_dwordx4 {vr(16+4*p,4)}, v1, {sr(s_ws,4)}, s{t0} offen offset:{(p%4)*1024}{ldf}")
        a, b_, c_, d_, e_, f_ = t0+1, t0+2, t0+3, t0+4, t0+5, t0+6
        g(f"s_and_b32 s{a}, s{s_u}, 3")
        g(f"s_lshr_b32 s{b_}, s{s_u}, 2")
        g(f"s_cmp_lt_u32 s{b_}, 9")
        g(f"s_cbranch_scc1 {lab}0")
        g(f"s_cmp_lt_u32 s{b_}, 18")
        g(f"s_cbranch_scc1 {lab}1")
        g(f"s_sub_u32 s{b_}, s{b_}, 18")
        g(f"s_lshl_b32 s{b_}, s{b_}, 8")
        g(f"s_add_u32 s{c_}, s{b_}, {2*16*1152}")
        g(f"s_add_u32 s{d_}, s{c_}, 128")
        g(f"s_cmp_eq_u32 s{b_}, 1024")
        g(f"s_cselect_b32 s{d_}, 0x10000000, s{d_}")
        g(f"s_branch {lab}2")
        g.lab(f"{lab}0")
        g(f"s_lshl_b32 s{b_}, s{b_}, 7")
        g(f"s_add_u32 s{c_}, s{b_}, {3*16*1152}")
        g(f"s_add_u32 s{d_}, s{b_}, {4*16*1152}")
        g(f"s_branch {lab}2")
        g.lab(f"{lab}1")
        g(f"s_sub_u32 s{b_}, s{b_}, 9")
        g(f"s_lshl_b32 s{c_}, s{b_}, 7")
        g(f"s_add_u32 s{d_}, s{c_}, {16*1152}")
        g.lab(f"{lab}2")
        g(f"s_mul_i32 s{e_}, s{s_b}, 92160")
        g(f"s_lshl_b32 s{a}, s{a}, 5")
        g(f"s_add_u32 s{e_}, s{e_}, s{a}")
        g(f"s_add_u32 s{c_}, s{c_}, s{e_}")
        g(f"s_add_u32 s{d_}, s{d_}, s{e_}")
        g("v_mul_u32_u24 v2, 1152, v2")
        g("v_lshl_add_u32 v2, v3, 3, v2")
        g(f"s_mov_b32 s{f_}, 0xffff0000")
        for p in range(16):
            g(f"s_waitcnt vmcnt({15-p})")
            for r in range(4):
                src = 16 + 4*p + r
                if p == 0:
                    g(f"v_lshlrev_b32 v{4+2*r}, 16, v{src}")
                    g(f"v_and_b32 v{5+2*r}, s{f_}, v{src}")
                else:
                    g(f"v_lshlrev_b32 v12, 16, v{src}")
                    g(f"v_and_b32 v13, s{f_}, v{src}")
                    g(f"v_add_f32 v{4+2*r}, v{4+2*r}, v12")
                    g(f"v_add_f32 v{5+2*r}, v{5+2*r}, v13")
        for r in range(4):
            g(f"v_cvt_pk_bf16_f32 v{12+r}, v{4+2*r}, v{5+2*r}")
        g(f"buffer_store_dwordx2 v[12:13], v2, {sr(s_out,4)}, s{c_} offen")
        g(f"buffer_store_dwordx2 v[14:15], v2, {sr(s_out,4)}, s{d_} offen")

    if not opt.red2:
        g("s_waitcnt vmcnt(0)")
        g("s_barrier")
        stamp(7)
        g(f"s_cmp_lg_u32 s{S_WAVE}, 4")
        g("s_cbranch_scc1 L_nopoll")
        g(f"s_lshl_b32 s{S_T0}, s{S_B}, 12")
        g(f"s_add_u32 s{S_T0}, s{S_T0}, {FLAG_OFF}")
        g(f"s_lshl_b32 s{S_T1}, s{S_B}, 3")
        g(f"s_mov_b32 s{S_I}, 0")
        g.lab("L_tagw")
        g(f"v_cmp_ne_u32 vcc, 0, v{QV}")
        g("s_cbranch_vccnz L_tagok")
        g(f"buffer_load_dwordx2 {vr(QV,2)}, off, {sr(S_DBG,4)}, s{S_T1} sc1")
        g(f"s_add_u32 s{S_I}, s{S_I}, 1")
        g(f"s_cmp_gt_u32 s{S_I}, 0x200000")
        g("s_waitcnt vmcnt(0)")
        g("s_cbranch_scc0 L_tagw")
        g.lab("L_tagok")
        g(f"v_mov_b32 v2, v{QV}")
        g(f"v_mov_b32 v3, v{QV+1}")
        g(f"s_lshl_b32 s{S_T1}, s{S_HKV}, 3")
        g(f"v_mov_b32 v1, s{S_T1}")
        g(f"v_lshlrev_b32 v6, 3, v{LN}")
        g("s_mov_b64 exec, 1")
        g(f"buffer_store_dwordx2 v[2:3], v1, {sr(S_WS,4)}, s{S_T0} offen sc1")
        g("s_mov_b64 exec, 0xffff")
        g(f"s_mov_b32 s{S_I}, 0")
        g.lab("L_poll")
        g(f"buffer_load_dwordx2 v[4:5], v6, {sr(S_WS,4)}, s{S_T0} offen sc1")
        g(f"s_add_u32 s{S_I}, s{S_I}, 1")
        g(f"s_cmp_gt_u32 s{S_I}, 0x200000")
        g("s_cbranch_scc1 L_polld")
        g("s_waitcnt vmcnt(0)")
        g("v_cmp_ne_u64 vcc, v[4:5], v[2:3]")
        g("s_cbranch_vccnz L_poll")
        g.lab("L_polld")
        g("s_mov_b64 exec, -1")
        g.lab("L_nopoll")
        g("s_barrier")
        stamp(8)
        g(f"s_lshl_b32 s{S_T0}, s{S_WAVE}, 4")
        g(f"s_add_u32 s{S_T0}, s{S_T0}, s{S_HKV}")
        g(f"s_cmp_ge_u32 s{S_T0}, 92")
        g("s_cbranch_scc1 L_reddone")
        reduce_body(S_B, S_T0, S_WS, S_OUT, LN, "L_r", " sc1", S_E)
        g.lab("L_reddone")
        stamp(9)
    if stamps:
        g("s_waitcnt vmcnt(0)")
        stamp(10 if not opt.red2 else 7)
        g(f"s_cmp_lg_u32 s{S_WAVE}, {opt.stampwave}")
        g("s_cbranch_scc1 L_end")
        g("s_waitcnt lgkmcnt(0)")
        g(f"s_mul_i32 s{S_T0}, s2, {NSTAMP*8}")
        g(f"s_add_u32 s{S_T0}, s{S_T0}, {STAMP_OFF}")
        g("v_mov_b32 v0, 0")
        g("s_mov_b64 exec, 1")
        for i in (list(range(16)) if not opt.red2 else list(range(8)) + [11, 12, 13, 14, 15]):
            g(f"v_mov_b32 v2, s{S_STAMP+2*i}")
            g(f"v_mov_b32 v3, s{S_STAMP+2*i+1}")
            g(f"buffer_store_dwordx2 v[2:3], v0, {sr(S_WS,4)}, s{S_T0} offen offset:{8*i}")
            g("s_nop 1")
    g.lab("L_end")
    g("s_endpgm")

    for sb, tag, light in rare:
        Sc = SB + sb*16; Sn = SB + (sb^1)*16
        g.lab(f"L_rare_{tag}")
        g("s_nop 7"); g("s_nop 7")
        rowmax(sb, VT1, VT0)
        g(f"v_max_f32 v{VT2}, 0, v{VT1}")
        g(f"v_mov_b32 v{VT1}, v{VT2}")
        g(f"v_sub_f32 v{VT2}, 0, v{VT2}")
        g(f"v_exp_f32 v{VT2}, v{VT2}")
        for r in range(16): g(f"v_sub_f32 v{Sc+r}, v{Sc+r}, v{VT1}")
        if not light:
            for r in range(16): g(f"v_sub_f32 v{Sn+r}, v{Sn+r}, v{VT1}")
        for r in range(16): g(f"v_sub_f32 v{NEGM+r}, v{NEGM+r}, v{VT1}")
        for r in range(64): g(f"v_mul_f32 v{O+r}, v{O+r}, v{VT2}")
        g(f"v_mul_f32 v{VL}, v{VL}, v{VT2}")
        g(sm_exp(sb, 0))
        for n in range(16):
            for x in sm_gap(sb, n): g(x)
        g("s_nop 1")
        g(f"s_branch L_back_{tag}")

    for k, sb in enumerate(tramp):
        g.lab(f"L_tr{k}")
        g(f"s_call_b64 s[6:7], L_hrare{sb}")
        g(f"s_branch L_bk{k}")
    for var in range(3):
        sb = min(var, 1)
        Sc = SB + sb*16; Sn = SB + (sb^1)*16
        g.lab(f"L_hrare{var}")
        g("s_nop 7"); g("s_nop 7")
        rowmax(sb, VT1, VT0)
        g(f"v_max_f32 v{VT1}, 0, v{VT1}")
        g(f"v_sub_f32 v{VT2}, 0, v{VT1}")
        g(f"v_exp_f32 v{VT2}, v{VT2}")
        for r in range(16): g(f"v_sub_f32 v{Sc+r}, v{Sc+r}, v{VT1}")
        if var < 2:
            for r in range(16): g(f"v_sub_f32 v{Sn+r}, v{Sn+r}, v{VT1}")
            for r in range(16): g(f"v_sub_f32 v{NEGM+r}, v{NEGM+r}, v{VT1}")
        for r in range(64): g(f"v_mul_f32 v{O+r}, v{O+r}, v{VT2}")
        g(f"v_mul_f32 v{VL}, v{VL}, v{VT2}")
        plain_softmax(sb)
        if var < 2: g(h_exp(sb ^ 1, 0))
        g("s_nop 1")
        g("s_setpc_b64 s[6:7]")

    kernels = [(f"{NAME}_kernel", 256)]
    if opt.red2:
        kernels.append(("reduce_kernel", 80))
        g.raw(".globl reduce_kernel")
        g.raw(".p2align 8")
        g.raw(".type reduce_kernel,@function")
        g.lab("reduce_kernel")
        g("s_cmp_ge_u32 s2, 184")
        g("s_cbranch_scc1 L_rend")
        if stamps: g("s_memrealtime s[40:41]")
        g("s_load_dwordx2 s[4:5], s[0:1], 40")
        g("s_load_dwordx2 s[6:7], s[0:1], 56")
        g("v_lshrrev_b32 v1, 6, v0")
        g("s_lshl_b32 s16, s2, 3")
        g("v_readfirstlane_b32 s17, v1")
        g("v_and_b32 v0, 63, v0")
        g("s_add_u32 s16, s16, s17")
        g("s_mul_hi_u32 s18, s16, 46684428")
        g("s_mul_i32 s19, s18, 92")
        g("s_sub_u32 s19, s16, s19")
        g("s_waitcnt lgkmcnt(0)")
        g("s_mov_b32 s8, s4"); g("s_mov_b32 s9, s5"); g("s_mov_b32 s10, 1474560"); g("s_mov_b32 s11, 0x20000")
        g("s_mov_b32 s12, s6"); g("s_mov_b32 s13, s7"); g("s_mov_b32 s14, 268435456"); g("s_mov_b32 s15, 0x20000")
        reduce_body(18, 19, 12, 8, 0, "L_rr", opt.ldflag, 20)
        if stamps:
            g("s_memrealtime s[42:43]")
            g("s_waitcnt vmcnt(0)")
            g("s_memrealtime s[44:45]")
            g("s_cmp_lg_u32 s17, 0")
            g("s_cbranch_scc1 L_rend")
            g("s_waitcnt lgkmcnt(0)")
            g(f"s_mul_i32 s20, s2, {NSTAMP*8}")
            g(f"s_add_u32 s20, s20, {STAMP_OFF}")
            g("v_mov_b32 v0, 0")
            g("s_mov_b64 exec, 1")
            for i in range(3):
                g(f"v_mov_b32 v2, s{40+2*i}")
                g(f"v_mov_b32 v3, s{41+2*i}")
                g(f"buffer_store_dwordx2 v[2:3], v0, s[12:15], s20 offen offset:{64+8*i}")
                g("s_nop 1")
        g.lab("L_rend")
        g("s_endpgm")

    g.raw('.section .rodata,"a"')
    for (k, nv) in kernels:
        g.raw(".p2align 6")
        g.raw(f".amdhsa_kernel {k}")
        for l in [f".amdhsa_next_free_vgpr {nv}", ".amdhsa_next_free_sgpr 102", f".amdhsa_accum_offset {nv}",
                  ".amdhsa_group_segment_fixed_size 0", ".amdhsa_kernarg_size 64", ".amdhsa_user_sgpr_count 2",
                  ".amdhsa_user_sgpr_kernarg_segment_ptr 1", ".amdhsa_system_sgpr_workgroup_id_x 1"]:
            g.raw("  " + l)
        g.raw(".end_amdhsa_kernel")
    return "\n".join(g.L) + "\n"

if __name__ == "__main__":
    ap = argparse.ArgumentParser()
    ap.add_argument("-o", default="k.s")
    ap.add_argument("--stamps", action="store_true")
    ap.add_argument("--stampwave", type=int, default=0)
    ap.add_argument("--loopstamps", action="store_true")
    ap.add_argument("--nolight", action="store_true")
    ap.add_argument("--nosm", action="store_true")
    ap.add_argument("--nodma", action="store_true")
    ap.add_argument("--kvstart", type=int, default=15)
    ap.add_argument("--wgrp", type=int, default=4)
    ap.add_argument("--lsplit", type=int, default=8)
    ap.add_argument("--hprio", type=int, default=0)
    ap.add_argument("--noadd", action="store_true")
    ap.add_argument("--noexp", action="store_true")
    ap.add_argument("--mprio", type=int, default=1)
    ap.add_argument("--grp", default="AB")
    ap.add_argument("--stagiss", type=int, default=1)
    ap.add_argument("--hit", type=int, default=0)
    ap.add_argument("--oprio", type=int, default=0)
    ap.add_argument("--defer", type=int, default=1)
    ap.add_argument("--fakekv", action="store_true")
    ap.add_argument("--nont", action="store_true")
    ap.add_argument("--nocoop", action="store_true")
    ap.add_argument("--red2", action="store_true")
    ap.add_argument("--list", action="store_true")
    ap.add_argument("--prio", type=int, default=0)
    ap.add_argument("--stflag", default=None)
    ap.add_argument("--ldflag", default="")
    opt = ap.parse_args()
    if opt.stflag is None: opt.stflag = "" if opt.red2 else "sc1"
    if opt.stflag: opt.stflag = " " + opt.stflag
    if opt.ldflag: opt.ldflag = " " + opt.ldflag
    open(opt.o, "w").write(build(opt))
```

```python
import sys, struct, argparse

NAME = "standalone__gqa_block_cached__near_ridge"

def f32bits(x):
    return struct.unpack("<I", struct.pack("<f", x))[0]

class G:
    def __init__(self): self.L = []
    def __call__(self, s): self.L.append("    " + s)
    def lab(self, s): self.L.append(s + ":")
    def raw(self, s): self.L.append(s)
    def c(self, s): self.L.append("    ; " + s)

def vr(a, n): return f"v[{a}:{a+n-1}]" if n > 1 else f"v{a}"
def sr(a, n): return f"s[{a}:{a+n-1}]" if n > 1 else f"s{a}"

S_X, S_KV, S_DBG, S_WQ, S_WO, S_WS, S_OUT = 8, 12, 16, 20, 24, 28, 32
S_HKV, S_B, S_WAVE = 36, 37, 38
S_T0, S_T1, S_T2, S_T3 = 39, 40, 41, 42
S_I, S_SLOT, S_DELTA = 43, 44, 45
S_THR, S_SCALE, S_TAG, S_ISV = 46, 47, 48, 50
S_E = 51
S_SOFF, S_M0 = 58, 59
S_KVBASE = 60
S_CLK = 62
S_STAMP = 64
SLOT = 32768
XG = [0, SLOT, 2*SLOT]
WQB = 3*SLOT
QB = 5*SLOT - 40960
QT = [QB + t*8192 for t in range(5)]
S_NXT, S_CUR = 4, 5
OFB = 32768
DUMPA = 81920
DUMPB = 0
MLB = 32768
FLAG_OFF = 0x6000000
STAMP_OFF = 0x8000000
NSTAMP = 16

def build(opt):
    g = G()
    stamps = opt.stamps
    nt = "" if opt.nont else " nt"
    def stamp(i):
        if stamps: g(f"s_memrealtime {sr(S_STAMP+2*i,2)}")
    if opt.red2 or opt.list:
        g.raw(f"; @launch kernel={NAME}_kernel grid=(256,1,1) block=(512,1,1) lds=163840")
        if opt.red2: g.raw(f"; @launch kernel=reduce_kernel grid=(184,1,1) block=(512,1,1) lds=0")
    else:
        g.raw(f"; @launch grid=(256,1,1) block=(512,1,1) lds=163840")
    g.raw('.amdgcn_target "amdgcn-amd-amdhsa--gfx950"')
    g.raw(".text")
    g.raw(f".globl {NAME}_kernel")
    g.raw(".p2align 8")
    g.raw(f".type {NAME}_kernel,@function")
    g.lab(f"{NAME}_kernel")
    g("s_cmp_ge_u32 s2, 256")
    g("s_cbranch_scc1 L_end")
    g("s_load_dwordx16 s[64:79], s[0:1], 0")
    g("v_lshrrev_b32 v1, 6, v0")
    g("s_and_b32 s36, s2, 7")
    g("v_readfirstlane_b32 s38, v1")
    g("s_lshl_b32 s36, s36, 1")
    g("s_bfe_u32 s39, s2, 0x10003")
    g("s_add_u32 s36, s36, s39")
    g("s_lshr_b32 s37, s2, 4")
    g("v_and_b32 v0, 63, v0")
    g(f"s_lshl_b32 s{S_KVBASE}, s{S_B}, 4")
    g(f"s_add_u32 s{S_KVBASE}, s{S_KVBASE}, s{S_HKV}")
    g(f"s_lshl_b32 s{S_KVBASE}, s{S_KVBASE}, 18")
    if opt.fakekv: g(f"s_mov_b32 s{S_KVBASE}, 0")
    g(f"s_and_b32 s{S_ISV}, s{S_WAVE}, 1")
    for (d, size) in ((S_X, 1474560), (S_KV, 67108864), (S_WQ, 4718592), (S_WO, 4718592), (S_OUT, 1474560), (S_DBG, 256), (S_WS, 268435456)):
        g(f"s_mov_b32 s{d+2}, {size}")
        g(f"s_mov_b32 s{d+3}, 0x20000")
    g(f"s_cmp_eq_u32 s{S_ISV}, 0")
    g("s_waitcnt lgkmcnt(0)")
    g(f"s_cselect_b32 s{S_KV}, s66, s68")
    g(f"s_cselect_b32 s{S_KV+1}, s67, s69")
    for (d, src) in ((S_X, 64), (S_WQ, 70), (S_WO, 72), (S_OUT, 74), (S_DBG, 76), (S_WS, 78)):
        g(f"s_mov_b32 s{d}, s{src}")
        g(f"s_mov_b32 s{d+1}, s{src+1}")
    stamp(0)
    g(f"s_cmp_lt_u32 s{S_WAVE}, 4")
    g("s_cbranch_scc1 L_qproj")
    if opt.prio: g(f"s_setprio {opt.prio}")

    O, QF, NEGM, SB, PB, FB, TB, KA, VA = 0, 64, 96, 112, 144, 160, 192, 208, 216
    VL, VTS, VM, VT0, VT1, VT2, VLANE, VFL = 220, 221, 222, 223, 224, 225, 226, 227
    DV = 228
    WV = 232
    XV = 236
    LV = 237
    DUM = 238
    WA = 239
    QV = 240
    AB, BF, OA, PK = 64, 128, 0, 24
    S_J, S_GRP, S_WOFF, S_WM0, S_FL = 61, 3, 54, 55, 56
    LSPLIT = opt.lsplit

    class LQ:
        def __init__(self): self.q = []
        def issue(self, f, instrs):
            for s in instrs:
                g(s); self.q.append(f)
        def need(self, f):
            if f in self.q:
                last = len(self.q) - 1 - self.q[::-1].index(f)
                after = min(15, len(self.q) - 1 - last)
                g(f"s_waitcnt lgkmcnt({after})")
                self.q = self.q[last+1:]
        def clear(self): self.q = []

    def fb(f): return FB + (f % 8)*4
    def rd_k(f, st, s):
        return [f"ds_read_b128 {vr(fb(f),4)}, v{KA+s} offset:{st*8192}"]
    def rd_v(f, st, ks, dt):
        base = 16384 + st*8192 + ks*4096
        return [f"ds_read_b64_tr_b16 {vr(fb(f),2)}, v{VA+dt} offset:{base}",
                f"ds_read_b64_tr_b16 {vr(fb(f)+2,2)}, v{VA+dt} offset:{base+2048}"]
    def mf_qk(f, sb, s, czero=False):
        c = ("0" if czero else vr(NEGM,16)) if s == 0 else vr(SB+sb*16,16)
        return f"v_mfma_f32_32x32x16_bf16 {vr(SB+sb*16,16)}, {vr(fb(f),4)}, {vr(QF+4*s,4)}, {c}"
    def mf_pv(f, pb, ks, dt):
        return f"v_mfma_f32_32x32x16_bf16 {vr(O+dt*16,16)}, {vr(fb(f),4)}, {vr(PB+pb*8+ks*4,4)}, {vr(O+dt*16,16)}"
    def frag_desc(n):
        st = n >> 4; m = n & 15
        if m < 8: return rd_k(n, st, m), mf_qk(n, st, m)
        idx = m - 8
        return rd_v(n, st, idx >> 2, idx & 3), mf_pv(n, st, idx >> 2, idx & 3)
    def sm_exp(sb, r): return f"v_exp_f32 v{TB + (r % 4)}, v{SB+sb*16+r}"
    def sm_gap(sb, n):
        out = []
        if opt.nosm: return out
        if n + 1 <= 15: out.append(sm_exp(sb, n+1))
        if n == 1: out.append(f"v_add_f32 v{VTS}, v{TB+0}, v{TB+1}")
        elif n > 1: out.append(f"v_add_f32 v{VTS}, v{VTS}, v{TB+(n%4)}")
        if opt.noadd: out = [x for x in out if not x.startswith("v_add_f32")]
        if opt.noexp: out = [x.replace("v_exp_f32", "v_mov_b32") for x in out]
        if n & 1: out.append(f"v_cvt_pk_bf16_f32 v{PB+sb*8+(n>>1)}, v{TB+((n-1)%4)}, v{TB+(n%4)}")
        return out
    rare = []
    def sm_check(sb, tag, light=False):
        g(f"v_cmp_lt_f32 vcc, s{S_THR}, v{VTS}")
        g(f"s_cbranch_vccnz L_rare_{tag}")
        g.lab(f"L_back_{tag}")
        g(f"v_add_f32 v{VL}, v{VL}, v{VTS}")
        rare.append((sb, tag, light))
    def rowmax(sb, dst, tmp):
        S = SB + sb*16
        g(f"v_max3_f32 v{dst}, v{S}, v{S+1}, v{S+2}")
        for r in range(3, 15, 2):
            g(f"v_max3_f32 v{dst}, v{dst}, v{S+r}, v{S+r+1}")
        g(f"v_max_f32 v{dst}, v{dst}, v{S+15}")
        g(f"v_mov_b32 v{tmp}, v{dst}")
        g("s_nop 1")
        g(f"v_permlane32_swap_b32 v{dst}, v{tmp}")
        g("s_nop 1")
        g(f"v_max_f32 v{dst}, v{dst}, v{tmp}")
    QA = 227
    def q_read():
        for s in range(8):
            g(f"ds_read_b128 {vr(QF+4*s,4)}, v{QA} offset:{s*1024}")
    def wo_setup(sj):
        g(f"v_lshrrev_b32 v{VT0}, 3, v{VLANE}")
        g(f"v_bfe_u32 v{VT1}, v{VLANE}, 4, 1")
        g(f"s_and_b32 s{S_T0}, s{sj}, 2")
        g(f"v_or_b32 v{VT1}, s{S_T0}, v{VT1}")
        g(f"v_bfe_u32 v{VT2}, v{VLANE}, 1, 2")
        g(f"v_xor_b32 v{VT1}, v{VT1}, v{VT2}")
        g(f"v_lshlrev_b32 v{VT1}, 5, v{VT1}")
        g(f"v_and_b32 v{VT2}, 1, v{VLANE}")
        g(f"v_lshl_add_u32 v{VT1}, v{VT2}, 4, v{VT1}")
        g(f"v_mul_u32_u24 v{VT0}, 1152, v{VT0}")
        g(f"v_add_u32 v{WV}, v{VT0}, v{VT1}")
        for a in range(1, 4): g(f"v_add_u32 v{WV+a}, {a*8192}, v{WV}")
        g(f"s_mul_i32 s{S_WOFF}, s{S_HKV}, {256*1152}")
        g(f"s_mul_i32 s{S_T0}, s{sj}, {64*1152}")
        g(f"s_add_u32 s{S_WOFF}, s{S_WOFF}, s{S_T0}")
        g(f"s_lshl_b32 s{S_WM0}, s{sj}, 13")
    def wo_list(slot):
        n = len(g.L); wo_issue(slot); out = [x.strip() for x in g.L[n:]]; del g.L[n:]
        grp = []; cur = []
        for x in out:
            cur.append(x)
            if x.startswith("buffer_load"): grp.append(cur); cur = []
        return grp
    def wo_issue(slot):
        if isinstance(slot, str): g(f"s_add_u32 m0, s{S_WM0}, {slot}")
        else: g(f"s_add_u32 m0, s{S_WM0}, {slot*SLOT}")
        g(f"s_add_u32 s{S_T0}, s{S_WOFF}, {4*9216}")
        for a in range(4):
            g(f"buffer_load_dwordx4 v{WV+a}, {sr(S_WO,4)}, s{S_WOFF} offen offset:{a*1024} lds")
        g(f"s_add_u32 m0, m0, 4096")
        g(f"s_add_u32 s{S_WOFF}, s{S_WOFF}, 128")
        for a in range(4):
            g(f"buffer_load_dwordx4 v{WV+a}, {sr(S_WO,4)}, s{S_T0} offen offset:{a*1024} lds")
    def attn_setup(light):
        if light:
            g(f"s_mov_b32 s{S_T0}, {QT[4]}")
        else:
            g(f"s_lshl_b32 s{S_T0}, s{S_WAVE}, 13")
            g(f"s_add_u32 s{S_T0}, s{S_T0}, {QB}")
        g(f"v_lshlrev_b32 v{QA}, 4, v{VLANE}")
        g(f"v_add_u32 v{QA}, s{S_T0}, v{QA}")
        g(f"v_and_b32 v{VT1}, 15, v{VLANE}")
        g(f"v_lshrrev_b32 v{VT2}, 5, v{VLANE}")
        g(f"v_xor_b32 v{VT1}, v{VT1}, v{VT2}")
        g(f"v_lshlrev_b32 v{VT1}, 4, v{VT1}")
        g(f"v_and_b32 v{KA}, 31, v{VLANE}")
        g(f"v_lshl_add_u32 v{KA}, v{KA}, 8, v{VT1}")
        g(f"v_bfe_u32 v{VT1}, v{VLANE}, 2, 2")
        g(f"v_lshl_add_u32 v{VA}, v{VT2}, 2, v{VT1}")
        g(f"v_lshlrev_b32 v{VA}, 8, v{VA}")
        g(f"v_lshl_add_u32 v{VA}, v{VT1}, 6, v{VA}")
        g(f"v_bfe_u32 v{VT1}, v{VLANE}, 4, 1")
        g(f"v_lshl_add_u32 v{VA}, v{VT1}, 5, v{VA}")
        g(f"v_and_b32 v{VT1}, 3, v{VLANE}")
        g(f"v_lshl_add_u32 v{VA}, v{VT1}, 3, v{VA}")
        if light:
            g(f"s_lshl_b32 s{S_T0}, s{S_ISV}, 13")
            g(f"s_lshr_b32 s{S_T1}, s{S_J}, 1")
            g(f"s_lshl_b32 s{S_T1}, s{S_T1}, 15")
            g(f"s_add_u32 s{S_T1}, s{S_T1}, s{S_T0}")
            g(f"v_add_u32 v{KA}, s{S_T1}, v{KA}")
            g(f"s_add_u32 s{S_T1}, s{S_T1}, {SLOT}")
            g(f"v_add_u32 v{VA}, s{S_T1}, v{VA}")
        for s in range(1, 8): g(f"v_xor_b32 v{KA+s}, {s*32}, v{KA}")
        for dt in range(1, 4): g(f"v_xor_b32 v{VA+dt}, {dt*64}, v{VA}")
        g(f"s_and_b32 s{S_T0}, s{S_WAVE}, 3")
        g(f"v_bfe_u32 v{VT1}, v{VLANE}, 2, 2")
        g(f"v_lshl_add_u32 v{WA}, v{VT2}, 2, v{VT1}")
        g(f"v_bfe_u32 v{VT1}, v{VLANE}, 4, 1")
        g(f"v_lshl_add_u32 v{WA}, v{VT1}, 7, v{WA}")
        g(f"v_lshlrev_b32 v{WA}, 7, v{WA}")
        g(f"v_bfe_u32 v{VT1}, v{VLANE}, 3, 2")
        g(f"v_xor_b32 v{VT1}, s{S_T0}, v{VT1}")
        g(f"v_lshl_add_u32 v{WA}, v{VT1}, 5, v{WA}")
        g(f"v_and_b32 v{VT1}, 3, v{VLANE}")
        g(f"v_lshl_add_u32 v{WA}, v{VT1}, 3, v{WA}")
        g(f"v_add_u32 v{WA}, {2*SLOT}, v{WA}")
        g(f"v_lshlrev_b32 v{LV}, 4, v{VLANE}")
    def a_read(par, k, so=0):
        a = AB + par*32 + k*4
        return [f"ds_read_b64_tr_b16 {vr(a,2)}, v{WA} offset:{so + k*2048}",
                f"ds_read_b64_tr_b16 {vr(a+2,2)}, v{WA} offset:{so + k*2048+1024}"]
    def light_init():
        for r in range(16): g(f"v_mov_b32 v{NEGM+r}, 0")
        g(f"v_mov_b32 v{VL}, 0")
        g(f"s_mov_b32 s{S_THR}, {hex(f32bits(65536.0))}")
    def light_qk():
        if opt.nolight: return
        lq = LQ()
        for s in range(8): lq.issue(s, rd_k(s, 0, s))
        if opt.mprio: g(f"s_setprio {opt.mprio}")
        for s in range(8):
            if s % 2 == 0: lq.need(s+1)
            g(mf_qk(s, 0, s))
        if opt.mprio: g(f"s_setprio {opt.prio}")
        g(f"s_cmp_ge_u32 s{S_SLOT}, 3")
        g(f"s_cselect_b32 s{S_DELTA}, {hex((-3*SLOT) & 0xffffffff)}, s{S_E}")
        for s in range(8): g(f"v_add_u32 v{KA+s}, s{S_DELTA}, v{KA+s}")
        g(f"s_cmp_ge_u32 s{S_CUR}, 2")
        g("s_nop 0")
        g("s_cbranch_scc0 L_l_first")
        g.lab("L_l_firstd")
        g(sm_exp(0, 0))
        for n in range(LSPLIT):
            for x in sm_gap(0, n): g(x)
    def light_pv(tag):
        if opt.nolight: return
        lq = LQ()
        for e in range(7): lq.issue(e, rd_v(e, 0, e >> 2, e & 3))
        for n in range(LSPLIT, 16):
            for x in sm_gap(0, n): g(x)
        sm_check(0, tag, True)
        lq.need(0)
        lq.issue(7, rd_v(7, 0, 1, 3))
        if opt.mprio: g(f"s_setprio {opt.mprio}")
        for e in range(8):
            if e % 2 == 0: lq.need(e+1)
            g(mf_pv(e, 0, e >> 2, e & 3))
        if opt.mprio: g(f"s_setprio {opt.prio}")
        g(f"s_cmp_ge_u32 s{S_SLOT}, 3")
        g(f"s_cselect_b32 s{S_DELTA}, {hex((-3*SLOT) & 0xffffffff)}, s{S_E}")
        for d in range(4): g(f"v_add_u32 v{VA+d}, s{S_DELTA}, v{VA+d}")
    def slot_next():
        g(f"s_add_u32 s{S_SLOT}, s{S_SLOT}, 1")
        g(f"s_cmp_eq_u32 s{S_SLOT}, 5")
        g(f"s_cselect_b32 s{S_SLOT}, 0, s{S_SLOT}")

    def cstamp(i, reg, val):
        if stamps and opt.loopstamps:
            g(f"s_cmp_lg_u32 s{reg}, {val}")
            g(f"s_cbranch_scc1 L_cs{i}_{reg}_{len(g.L)}")
            n = len(g.L) - 1
            g(f"s_memrealtime {sr(S_STAMP+2*i,2)}")
            g.lab(f"L_cs{i}_{reg}_{n}")
    def light_setup():
        attn_setup(True)
        wo_setup(S_J)
        g(f"s_mul_i32 s{S_E+2}, s{S_HKV}, {256*1152}")
        g(f"s_mul_i32 s{S_T0}, s{S_B}, {16*1152}")
        g(f"s_add_u32 s{S_E+2}, s{S_E+2}, s{S_T0}")
        g(f"s_mul_i32 s{S_T0}, s{S_J}, 4608")
        g(f"s_add_u32 s{S_E+2}, s{S_E+2}, s{S_T0}")
        g(f"s_mov_b32 s{S_E}, {2*SLOT}")
        g(f"s_mov_b32 s{S_SLOT}, 0")
        g(f"s_mov_b32 s{S_CUR}, 0")
        g(f"s_lshr_b32 s{S_E+1}, s{S_J}, 1")
    g.c("light waves: j = wave-4, tensor = j&1 (K/V), half = j>>1")
    g(f"s_sub_u32 s{S_J}, s{S_WAVE}, 4")
    g(f"v_mov_b32 v{VLANE}, v0")
    g("v_lshrrev_b32 v1, 4, v0")
    g("v_and_b32 v2, 15, v0")
    g(f"s_lshl_b32 s{S_T0}, s{S_ISV}, 1")
    g(f"v_lshlrev_b32 v3, s{S_T0}, v1")
    g("v_xor_b32 v3, v3, v2")
    g("v_lshlrev_b32 v3, 4, v3")
    g(f"v_lshl_add_u32 v{DV}, v1, 8, v3")
    g(f"s_cmp_eq_u32 s{S_ISV}, 0")
    for a in range(1, 4):
        g(f"s_cselect_b32 s{S_T0}, {a*64}, 0")
        g(f"v_xor_b32 v{DV+a}, s{S_T0}, v{DV}")
    g(f"s_lshr_b32 s{S_T0}, s{S_J}, 1")
    g(f"s_lshl_b32 s{S_T0}, s{S_T0}, 13")
    g(f"s_add_u32 s{S_KVBASE}, s{S_KVBASE}, s{S_T0}")
    g(f"s_lshl_b32 s{S_FL}, s{S_ISV}, 14")
    g(f"s_add_u32 s{S_FL}, s{S_FL}, s{S_T0}")
    RREG = [64, 96, 128, 0, 32]
    VPERM = [0, 4, 1, 2, 3]
    if opt.grp == "A": g(f"s_mov_b32 s{S_GRP}, 0")
    elif opt.grp == "B": g(f"s_mov_b32 s{S_GRP}, 1")
    else: g(f"s_and_b32 s{S_GRP}, s{S_B}, 1")
    g(f"s_cmp_eq_u32 s{S_GRP}, 0")
    g("s_cbranch_scc1 L_l_noburst")
    for idx in range(5):
        g(f"s_cmp_eq_u32 s{S_ISV}, 0")
        g(f"s_cselect_b32 s{S_T0}, {idx}, {VPERM[idx]}")
        g(f"s_lshl_b32 s{S_T0}, s{S_T0}, 14")
        g(f"s_add_u32 s{S_T0}, s{S_T0}, s{S_KVBASE}")
        g(f"s_add_u32 s{S_T1}, s{S_T0}, 4096")
        for p in range(8):
            g(f"buffer_load_dwordx4 {vr(RREG[idx]+p*4,4)}, v{DV+(p&3)}, {sr(S_KV,4)}, s{S_T1 if p >= 4 else S_T0} offen offset:{(p&3)*1024}{nt}")
    g.lab("L_l_noburst")
    T1, T2, T3 = VT0, VT1, VT2
    g(f"s_cmp_lt_u32 s{S_J}, 2")
    g("s_cbranch_scc1 L_lightA")
    g(f"v_lshrrev_b32 v{T1}, 3, v{VLANE}")
    g(f"s_lshl_b32 s{S_T1}, s{S_ISV}, 3")
    g(f"v_add_u32 v{T1}, s{S_T1}, v{T1}")
    g(f"v_lshrrev_b32 v{T2}, 1, v{T1}")
    g(f"v_and_b32 v{T3}, 7, v{VLANE}")
    g(f"v_xor_b32 v{T2}, v{T2}, v{T3}")
    g(f"v_lshlrev_b32 v{T2}, 4, v{T2}")
    g(f"v_mul_u32_u24 v{T1}, 1152, v{T1}")
    g(f"v_add_u32 v{XV}, v{T1}, v{T2}")
    g(f"s_mul_i32 s{S_SOFF}, s{S_B}, 92160")
    g(f"s_lshl_b32 s{S_M0}, s{S_ISV}, 10")
    def x_kp(gi, kp):
        g(f"s_add_u32 m0, s{S_M0}, {XG[gi] + kp*10240}")
        for t in range(5):
            g(f"s_add_u32 s{S_T2}, s{S_SOFF}, {t*18432 + (gi*3+kp)*128}")
            g(f"buffer_load_dwordx4 v{XV}, {sr(S_X,4)}, s{S_T2} offen lds")
            if t < 4: g("s_add_u32 m0, m0, 2048")
    for kp in range(3): x_kp(0, kp)
    light_setup()
    stamp(11)
    g("s_waitcnt vmcnt(10)")
    stamp(12)
    g("s_barrier")
    for k in range(1, 17):
        if k - 1 < 6: x_kp(1 + (k - 1)//3, (k - 1) % 3)
        if k == 2: g("s_waitcnt vmcnt(15)")
        if k == 4: g("s_waitcnt vmcnt(20)")
        if k == 6: g("s_waitcnt vmcnt(15)")
        if k == 12: g("s_waitcnt vmcnt(0)")
        g("s_barrier")
    g("s_branch L_lc")
    g.lab("L_lightA")
    g(f"v_lshrrev_b32 v{T1}, 5, v{VLANE}")
    g(f"v_bfe_u32 v{T2}, v{VLANE}, 1, 4")
    g(f"v_xor_b32 v{T2}, v{T2}, v{T1}")
    g(f"v_lshlrev_b32 v{T2}, 5, v{T2}")
    g(f"v_and_b32 v{T3}, 1, v{VLANE}")
    g(f"v_lshl_add_u32 v{T2}, v{T3}, 4, v{T2}")
    g(f"v_lshl_add_u32 v{T2}, v{T1}, 13, v{T2}")
    for p in range(8):
        x = ((2*(p & 1)) | (((p >> 2) & 1) << 2)) << 5
        g(f"v_xor_b32 v{QV+p}, {x}, v{T2}")
        if p: g(f"v_add_u32 v{QV+p}, {p*16384 - (p & 3)*1024}, v{QV+p}")
    g(f"s_lshl_b32 s{S_SOFF}, s{S_HKV}, 9")
    g(f"s_lshl_b32 s{S_T0}, s{S_ISV}, 17")
    g(f"s_add_u32 s{S_SOFF}, s{S_SOFF}, s{S_T0}")
    g(f"s_lshl_b32 s{S_M0}, s{S_ISV}, 13")
    def wq_issue():
        g(f"s_add_u32 m0, s{S_M0}, {WQB}")
        g(f"s_add_u32 s{S_M0}, s{S_M0}, 16384")
        for p in range(8):
            if p == 4:
                g("s_add_u32 m0, m0, 4096")
                g(f"s_and_b32 s{S_M0}, s{S_M0}, 0xffff")
            g(f"buffer_load_dwordx4 v{QV+p}, {sr(S_WQ,4)}, s{S_SOFF} offen offset:{(p&3)*1024} lds")
        g(f"s_add_u32 s{S_SOFF}, s{S_SOFF}, 0x40000")
    wq_issue(); wq_issue()
    light_setup()
    stamp(11)
    g("s_waitcnt vmcnt(8)")
    stamp(12)
    g("s_barrier")
    wq_issue(); wq_issue()
    g(f"s_mov_b32 s{S_I}, 1")
    g.lab("L_la_q")
    g("s_waitcnt vmcnt(16)")
    g("s_barrier")
    wq_issue()
    g(f"s_add_u32 s{S_I}, s{S_I}, 1")
    g(f"s_cmp_lt_u32 s{S_I}, 15")
    g("s_cbranch_scc1 L_la_q")
    g("s_waitcnt vmcnt(16)")
    g("s_barrier")
    g("s_waitcnt vmcnt(0)")
    g("s_barrier")
    g.lab("L_lc")
    def kv_issue():
        g(f"s_mov_b32 m0, s{S_M0}")
        g(f"s_add_u32 s{S_T0}, s{S_SOFF}, 4096")
        for p in range(8):
            if p == 4:
                g(f"s_add_u32 m0, m0, 4096")
                g(f"s_add_u32 s{S_M0}, s{S_M0}, {SLOT}")
            g(f"buffer_load_dwordx4 v{DV+(p&3)}, {sr(S_KV,4)}, s{S_T0 if p >= 4 else S_SOFF} offen offset:{(p&3)*1024}{nt} lds")
        g(f"s_add_u32 s{S_SOFF}, s{S_SOFF}, 16384")
        g(f"s_cmp_ge_u32 s{S_M0}, {5*SLOT}")
        g(f"s_cselect_b32 s{S_T0}, {5*SLOT}, 0")
        g(f"s_sub_u32 s{S_M0}, s{S_M0}, s{S_T0}")
    def flush(idx):
        g(f"s_cmp_eq_u32 s{S_ISV}, 0")
        g(f"s_cselect_b32 s{S_T0}, {idx}, {(VPERM[idx]+1) % 5}")
        g(f"s_lshl_b32 s{S_T0}, s{S_T0}, 15")
        g(f"s_add_u32 s{S_T0}, s{S_T0}, s{S_FL}")
        g(f"v_add_u32 v{DUM}, s{S_T0}, v{LV}")
        for p in range(8):
            g(f"ds_write_b128 v{DUM}, {vr(RREG[idx]+p*4,4)} offset:{p*1024}")
    g(f"s_lshl_b32 s{S_M0}, s{S_ISV}, 15")
    g(f"s_add_u32 s{S_M0}, s{S_M0}, s{S_FL}")
    g(f"s_mov_b32 s{S_SOFF}, s{S_KVBASE}")
    g(f"s_cmp_eq_u32 s{S_GRP}, 1")
    g("s_cbranch_scc1 L_lc_B")
    kv_issue()
    g("s_barrier")
    g(f"s_cmp_eq_u32 s{S_ISV}, 1")
    g("s_cbranch_scc1 L_lc_A1")
    kv_issue()
    g.lab("L_lc_A1")
    g("s_barrier")
    kv_issue()
    g(f"s_mov_b32 s{S_NXT}, 3")
    for r in range(64): g(f"v_mov_b32 v{O+r}, 0")
    g("s_branch L_lc_j")
    g.lab("L_lc_B")
    flush(0)
    g("s_barrier")
    flush(1)
    g("s_barrier")
    flush(2)
    g(f"s_add_u32 s{S_SOFF}, s{S_SOFF}, {5*16384}")
    g(f"s_add_u32 s{S_NXT}, s{S_ISV}, 5")
    g.lab("L_lc_j")
    g("s_waitcnt lgkmcnt(0)")
    light_init()
    g("s_waitcnt vmcnt(16)")
    g("s_barrier")
    q_read()
    g("s_waitcnt lgkmcnt(0)")
    g("s_barrier")
    g(f"s_cmp_eq_u32 s{S_GRP}, 0")
    g("s_cbranch_scc1 L_lc_z")
    flush(3); flush(4)
    g("s_waitcnt lgkmcnt(0)")
    g("s_setprio 1")
    for r in range(64): g(f"v_mov_b32 v{O+r}, 0")
    g(f"s_setprio {opt.prio}")
    g.lab("L_lc_z")
    def l_issue(tag):
        g(f"s_cmp_gt_u32 s{S_NXT}, 15")
        g(f"s_cbranch_scc1 L_l_no{tag}")
        g(f"s_sub_u32 s{S_T0}, s{S_NXT}, s{S_CUR}")
        g(f"s_cmp_gt_u32 s{S_T0}, 4")
        g(f"s_cbranch_scc1 L_l_no{tag}")
        g(f"s_cmp_le_u32 s{S_T0}, {opt.sda if tag == 'a' else opt.sdb}")
        g(f"s_cbranch_scc1 L_l_go{tag}")
        if tag == "a" and opt.stagiss:
            g(f"s_bitcmp{opt.stagiss-1}_b32 s{S_E+1}, 0")
            g(f"s_cbranch_scc1 L_l_no{tag}")
        g(f"s_getreg_b32 s{S_T0}, hwreg(HW_REG_IB_STS)")
        g(f"s_and_b32 s{S_T0}, s{S_T0}, {opt.vmask}")
        g(f"s_cbranch_scc1 L_l_no{tag}")
        g.lab(f"L_l_go{tag}")
        if not opt.nodma: kv_issue()
        g(f"s_add_u32 s{S_NXT}, s{S_NXT}, 1")
        g.lab(f"L_l_no{tag}")
    g.lab("L_l_loop")
    if opt.loopstamps:
        g(f"s_memrealtime s[96:97]")
    g(f"s_cmp_ge_u32 s{S_CUR}, 14")
    g("s_cbranch_scc1 L_l_late")
    l_issue("a")
    g(f"s_cmp_eq_u32 s{S_CUR}, 8")
    g("s_cbranch_scc1 L_l_x8")
    g.lab("L_l_cmp")
    if opt.loopstamps:
        g(f"s_memrealtime s[98:99]")
    g(f"s_bitcmp1_b32 s{S_E+1}, 0")
    g("s_cbranch_scc1 L_l_pv")
    light_qk()
    g(f"s_cmp_lg_u32 s{S_CUR}, 15")
    g("s_cbranch_scc1 L_l_end")
    if not opt.nolight:
        for n in range(LSPLIT, 16):
            for x in sm_gap(0, n): g(x)
        sm_check(0, "l2", True)
    g("s_branch L_l_ml")
    g.lab("L_l_pv")
    g(f"s_cmp_eq_u32 s{S_CUR}, 0")
    g("s_cbranch_scc1 L_l_end")
    light_pv("l")
    g(f"s_cmp_eq_u32 s{S_CUR}, 15")
    g("s_cbranch_scc1 L_l_ml")
    g.lab("L_l_end")
    if opt.loopstamps:
        g(f"s_memrealtime s[100:101]")
    slot_next()
    g(f"s_add_u32 s{S_E+1}, s{S_E+1}, 1")
    l_issue("b")
    g(f"s_sub_u32 s{S_T0}, s{S_NXT}, s{S_CUR}")
    g(f"s_add_u32 s{S_CUR}, s{S_CUR}, 1")
    g("s_waitcnt vmcnt(24)")
    g(f"s_cmp_ge_u32 s{S_T0}, 5")
    g(f"s_cbranch_scc1 L_l_wd")
    g("s_waitcnt vmcnt(16)")
    g(f"s_cmp_eq_u32 s{S_T0}, 4")
    g(f"s_cbranch_scc1 L_l_wd")
    g("s_waitcnt vmcnt(8)")
    g(f"s_cmp_eq_u32 s{S_T0}, 3")
    g(f"s_cbranch_scc1 L_l_wd")
    g("s_waitcnt vmcnt(0)")
    g.lab("L_l_wd")
    if opt.loopstamps:
        g(f"s_memrealtime s[6:7]")
        g("s_waitcnt lgkmcnt(0)")
        for (cur, base) in ((7, 1), (8, 11)):
            g(f"s_cmp_eq_u32 s{S_CUR}, {cur}")
            for k, src in enumerate((96, 98, 100, 6)):
                g(f"s_cselect_b64 {sr(S_STAMP+2*(base+k),2)}, {sr(src,2)}, {sr(S_STAMP+2*(base+k),2)}")
        g(f"s_cmp_eq_u32 s{S_CUR}, 9")
        g(f"s_cselect_b64 {sr(S_STAMP+2*15,2)}, s[96:97], {sr(S_STAMP+2*15,2)}")
    g("s_barrier")
    g("s_branch L_l_loop")
    if not opt.nolight:
        g.lab("L_l_first")
        g("s_setprio 1")
        rowmax(0, VM, VT0)
        for r in range(16): g(f"v_sub_f32 v{SB+r}, v{SB+r}, v{VM}")
        for r in range(16): g(f"v_sub_f32 v{NEGM+r}, 0, v{VM}")
        g(f"s_setprio {opt.prio}")
        g("s_branch L_l_firstd")
    g.lab("L_l_x8")
    g(f"v_lshlrev_b32 v{XV}, 7, v{VLANE}")
    g(f"buffer_load_dword v{DUM}, v{XV}, {sr(S_WO,4)}, s{S_E+2} offen")
    if not opt.red2:
        g(f"s_lshl_b32 s{S_T0}, s{S_B}, 3")
        g(f"buffer_load_dwordx2 {vr(QV,2)}, off, {sr(S_DBG,4)}, s{S_T0} sc1")
    g("s_branch L_l_cmp")
    g.lab("L_l_late")
    g(f"s_mov_b32 s{S_NXT}, 17")
    g(f"s_sub_u32 s{S_T0}, s{S_CUR}, s{S_ISV}")
    g(f"s_cmp_lg_u32 s{S_T0}, 13")
    g("s_cbranch_scc1 L_l_late1")
    if not opt.nodma: kv_issue()
    g(f"s_mov_b32 s{S_NXT}, 18")
    g.lab("L_l_late1")
    g(f"s_sub_u32 s{S_T1}, s{S_CUR}, 12")
    g(f"s_lshl_b32 s{S_T1}, s{S_T1}, 15")
    wo_issue(f"s{S_T1}")
    g("s_branch L_l_cmp")

    ML, OWN, MA = 200, 128, 202
    g.lab("L_l_ml")
    g(f"v_mov_b32 v{VT0}, v{VL}")
    g(f"v_mov_b32 v{ML}, v{NEGM}")
    g("s_nop 0")
    g(f"v_permlane32_swap_b32 v{VL}, v{VT0}")
    g("s_nop 1")
    g(f"v_add_f32 v{ML+1}, v{VL}, v{VT0}")
    g(f"s_lshl_b32 s{S_T0}, s{S_J}, 9")
    g(f"v_lshrrev_b32 v{VT1}, 1, v{LV}")
    g(f"v_add_u32 v{VT2}, s{S_T0}, v{VT1}")
    g(f"ds_write_b64 v{VT2}, {vr(ML,2)} offset:{MLB}")
    def blk_addr(idx_sreg, vdst):
        g(f"s_lshl_b32 s{S_T1}, s{idx_sreg}, 12")
        g(f"s_add_u32 s{S_T1}, s{S_T1}, {DUMPA}")
        g(f"v_add_u32 v{vdst}, s{S_T1}, v{LV}")
    for k in range(1, 4):
        g(f"s_mul_i32 s{S_T0}, s{S_J}, 3")
        g(f"s_add_u32 s{S_T0}, s{S_T0}, {k-1}")
        blk_addr(S_T0, MA + k - 1)
        g(f"s_add_u32 s{S_T0}, s{S_J}, {k}")
        g(f"s_and_b32 s{S_T0}, s{S_T0}, 3")
        g(f"s_lshl_b32 s{S_T3}, s{S_T0}, 9")
        g(f"v_add_u32 v{KA+k}, s{S_T3}, v{VT1}")
        g(f"s_mul_i32 s{S_T0}, s{S_T0}, 3")
        g(f"s_add_u32 s{S_T0}, s{S_T0}, {3-k}")
        blk_addr(S_T0, MA + 2 + k)
    wo_issue(4)
    g("s_waitcnt vmcnt(8) lgkmcnt(0)")
    g("s_setprio 1")
    g("s_barrier")
    stamp(1)
    W = PB + 8
    for k in range(1, 4):
        g(f"ds_read_b64 {vr(W+2*k-2,2)}, v{KA+k} offset:{MLB}")
    g(f"s_cmp_lt_u32 s{S_J}, 2")
    g("s_cbranch_scc1 L_mg_nopv")
    lq = LQ()
    for e in range(6): lq.issue(e, rd_v(e, 0, e >> 2, e & 3))
    for e in range(8):
        lq.need(e)
        if not opt.nolight: g(mf_pv(e, 0, e >> 2, e & 3))
        if e < 2: lq.issue(6 + e, rd_v(6 + e, 0, 1, 2 + e))
        for kk in (2*e, 2*e+1): lq.issue(100 + kk, a_read(kk >> 3, kk & 7, (kk >> 3)*SLOT))
    g("s_branch L_mg_pvd")
    g.lab("L_mg_nopv")
    for par in range(2):
        for k in range(8):
            for x in a_read(par, k, par*SLOT): g(x)
    g.lab("L_mg_pvd")
    wo_issue(0)
    g("s_waitcnt lgkmcnt(0)")
    g("s_barrier")
    g(f"v_min3_f32 v{VM}, v{W}, v{W+2}, v{W+4}")
    g(f"v_min_f32 v{VM}, v{VM}, v{ML}")
    g(f"v_sub_f32 v{TB}, v{VM}, v{ML}")
    for k in range(1, 4): g(f"v_sub_f32 v{TB+k}, v{VM}, v{W+2*k-2}")
    for k in range(4): g(f"v_exp_f32 v{TB+k}, v{TB+k}")
    for jj in range(4):
        if jj < 3:
            g(f"s_cmp_lg_u32 s{S_J}, {jj}")
            g(f"s_cbranch_scc1 L_mg_d{jj+1}")
        for k in range(1, 4):
            dt = (jj + k) & 3
            for q in range(4):
                g(f"ds_write_b128 v{MA+k-1}, {vr(O+dt*16+q*4,4)} offset:{q*1024}")
        g(f"v_mul_f32 v{VL}, v{TB}, v{ML+1}")
        for k in range(1, 4): g(f"v_fmac_f32 v{VL}, v{TB+k}, v{W+2*k-1}")
        g(f"v_rcp_f32 v{VL}, v{VL}")
        g("s_nop 0")
        for k in range(4): g(f"v_mul_f32 v{TB+k}, v{TB+k}, v{VL}")
        for r in range(16): g(f"v_mul_f32 v{OWN+r}, v{O+jj*16+r}, v{TB}")
        if jj < 3:
            g("s_branch L_mg_dd")
            g.lab(f"L_mg_d{jj+1}")
    g.lab("L_mg_dd")
    g(f"s_lshl_b32 s{S_T0}, s{S_J}, 11")
    g(f"s_add_u32 s{S_T0}, s{S_T0}, {OFB + 4*8192}")
    g(f"v_add_u32 v{VT2}, s{S_T0}, v{LV}")
    g(f"v_add_u32 v{QA}, {OFB + 3*8192}, v{LV}")
    g("s_waitcnt lgkmcnt(0)")
    stamp(2)
    g("s_barrier")
    stamp(3)
    for k in range(1, 4):
        for q in range(4):
            g(f"ds_read_b128 {vr(O+(k-1)*16+q*4,4)}, v{MA+2+k} offset:{q*1024}")
    for k in range(1, 4):
        g(f"s_waitcnt lgkmcnt({12-4*k})")
        for r in range(16): g(f"v_fmac_f32 v{OWN+r}, v{O+(k-1)*16+r}, v{TB+k}")
    for r in range(8): g(f"v_cvt_pk_bf16_f32 v{FB+r}, v{OWN+2*r}, v{OWN+2*r+1}")
    g(f"ds_write_b128 v{VT2}, {vr(FB,4)}")
    g(f"ds_write_b128 v{VT2}, {vr(FB+4,4)} offset:1024")
    g(f"s_setprio {opt.oprio}")
    stamp(4)
    g("s_branch L_oproj")

    ACC, XF, AF, WA4, XA = 0, 80, 120, 152, 156
    def acc(j, t): return ACC + (j*5 + t)*4
    g.lab("L_qproj")
    if opt.hprio: g(f"s_setprio {opt.hprio}")
    g(f"s_mul_i32 s{S_T0}, s{S_B}, 36")
    g(f"s_lshl_b32 s{S_T1}, s{S_WAVE}, 4")
    g(f"s_add_u32 s{S_T0}, s{S_T0}, s{S_T1}")
    g(f"s_lshl_b32 s{S_T0}, s{S_T0}, 13")
    g(f"s_lshl_b32 s{S_T1}, s{S_HKV}, 9")
    g(f"s_add_u32 s{S_T0}, s{S_T0}, s{S_T1}")
    g("v_lshrrev_b32 v1, 2, v0")
    g("v_and_b32 v2, 3, v0")
    g("v_lshlrev_b32 v1, 13, v1")
    g("v_lshl_add_u32 v1, v2, 7, v1")
    g(f"s_cmp_eq_u32 s{S_WAVE}, 3")
    g("s_cbranch_scc1 L_q_nopf")
    if not opt.nocoop:
        g(f"buffer_load_dword v255, v1, {sr(S_WQ,4)}, s{S_T0} offen")
        g(f"s_mul_i32 s{S_T0}, s{S_B}, 92160")
        g(f"s_and_b32 s{S_T1}, s{S_HKV}, 1")
        g(f"s_mul_i32 s{S_T1}, s{S_T1}, 46080")
        g(f"s_add_u32 s{S_T0}, s{S_T0}, s{S_T1}")
        g(f"s_mul_i32 s{S_T1}, s{S_WAVE}, 15360")
        g(f"s_add_u32 s{S_T0}, s{S_T0}, s{S_T1}")
        g(f"s_add_u32 s{S_T1}, s{S_T0}, 7168")
        g("v_lshlrev_b32 v1, 7, v0")
        g(f"buffer_load_dword v255, v1, {sr(S_X,4)}, s{S_T0} offen")
        g(f"buffer_load_dword v255, v1, {sr(S_X,4)}, s{S_T1} offen")
    g("s_branch L_q_notag")
    g.lab("L_q_nopf")
    if not opt.red2:
        g(f"s_cmp_lg_u32 s{S_HKV}, 0")
        g("s_cbranch_scc1 L_q_notag")
        g(f"s_memrealtime {sr(S_CLK,2)}")
        g(f"s_lshl_b32 s{S_T0}, s{S_B}, 3")
        g("s_waitcnt lgkmcnt(0)")
        g(f"s_or_b32 s{S_T1}, s{S_CLK}, 1")
        g(f"v_mov_b32 v252, s{S_T1}")
        g(f"v_mov_b32 v253, s{S_CLK+1}")
        g("s_mov_b64 exec, 1")
        g(f"buffer_store_dwordx2 v[252:253], off, {sr(S_DBG,4)}, s{S_T0} sc1")
        g("s_mov_b64 exec, -1")
    g.lab("L_q_notag")
    g("v_and_b32 v1, 15, v0")
    g("v_lshrrev_b32 v2, 4, v0")
    g("v_lshrrev_b32 v3, 1, v1")
    g("v_xor_b32 v3, v3, v2")
    g("v_lshlrev_b32 v3, 4, v3")
    g(f"v_lshl_add_u32 v{XA}, v1, 7, v3")
    g(f"v_add_u32 v{XA}, {XG[0]}, v{XA}")
    g(f"v_xor_b32 v{XA+1}, 64, v{XA}")
    g("v_bfe_u32 v3, v0, 2, 2")
    g("v_lshl_add_u32 v4, v2, 3, v3")
    g("v_lshlrev_b32 v4, 9, v4")
    g("v_bfe_u32 v3, v0, 2, 3")
    g(f"s_lshl_b32 s{S_T0}, s{S_WAVE}, 2")
    g(f"v_xor_b32 v3, s{S_T0}, v3")
    g("v_lshl_add_u32 v4, v3, 5, v4")
    g("v_and_b32 v3, 3, v0")
    g(f"v_lshl_add_u32 v{WA4}, v3, 3, v4")
    g(f"v_add_u32 v{WA4}, {WQB}, v{WA4}")
    for j in range(1, 4): g(f"v_xor_b32 v{WA4+j}, {j*32}, v{WA4}")
    g(f"v_mov_b32 v{VLANE}, v0")
    attn_setup(None)
    QW = 160
    g(f"s_and_b32 s{S_T0}, s{S_WAVE}, 1")
    g(f"s_lshl_b32 s{S_T0}, s{S_T0}, 12")
    g(f"s_lshr_b32 s{S_T1}, s{S_WAVE}, 1")
    g(f"s_lshl_b32 s{S_T1}, s{S_T1}, 8")
    g(f"s_add_u32 s{S_T0}, s{S_T0}, s{S_T1}")
    g(f"s_add_u32 s{S_T0}, s{S_T0}, {QB}")
    g(f"v_and_b32 v{QW}, 47, v0")
    g(f"v_lshlrev_b32 v{QW}, 4, v{QW}")
    g(f"v_bfe_u32 v{QW+1}, v0, 4, 1")
    g(f"v_lshl_add_u32 v{QW}, v{QW+1}, 3, v{QW}")
    g(f"v_add_u32 v{QW}, s{S_T0}, v{QW}")
    g(f"s_mov_b32 s{S_SCALE}, {hex(f32bits(1.4426950408889634 * 128 ** -0.5))}")
    g(f"s_mov_b32 s{S_THR}, {hex(f32bits(65536.0))}")
    for r in range(80): g(f"v_mov_b32 v{ACC+r}, 0")
    def q_reads(par):
        out = []
        for j in range(4):
            a = AF + par*16 + j*4
            out.append(f"ds_read_b64_tr_b16 {vr(a,2)}, v{WA4+j} offset:{par*16384}")
            out.append(f"ds_read_b64_tr_b16 {vr(a+2,2)}, v{WA4+j} offset:{par*16384+2048}")
        for t in range(5):
            out.append(f"ds_read_b128 {vr(XF+par*20+t*4,4)}, v{XA+par} offset:{t*2048}")
        return out
    def q_mfmas(par, fill):
        k = 0
        for j in range(4):
            for t in range(5):
                g(f"v_mfma_f32_16x16x32_bf16 {vr(acc(j,t),4)}, {vr(AF+par*16+j*4,4)}, {vr(XF+par*20+t*4,4)}, {vr(acc(j,t),4)}")
                for _ in range(2):
                    if k < len(fill): g(fill[k]); k += 1
        while k < len(fill): g(fill[k]); k += 1
    g(f"s_mov_b32 s{S_I}, 0")
    g("s_barrier")
    stamp(1)
    for s in q_reads(0): g(s)
    g("s_branch L_q_mid")
    g.lab("L_q_top")
    q_mfmas(1, q_reads(0))
    g.lab("L_q_mid")
    g(f"s_mov_b32 s{S_T0}, 10240")
    g(f"s_cmp_eq_u32 s{S_I}, 2")
    g(f"s_cselect_b32 s{S_T0}, {XG[1]-XG[0]-20480}, s{S_T0}")
    g(f"s_cmp_eq_u32 s{S_I}, 5")
    g(f"s_cselect_b32 s{S_T0}, {hex((XG[2]-XG[1]-20480) & 0xffffffff)}, s{S_T0}")
    g("s_waitcnt lgkmcnt(0)")
    g("s_barrier")
    upd = [f"v_xor_b32 v{WA4+j}, {hex(WQB ^ (WQB+32768))}, v{WA4+j}" for j in range(4)] + \
          [f"v_add_u32 v{XA+s}, s{S_T0}, v{XA+s}" for s in range(2)]
    q_mfmas(0, q_reads(1) + upd)
    g(f"s_add_u32 s{S_I}, s{S_I}, 1")
    g(f"s_cmp_lt_u32 s{S_I}, 9")
    g("s_waitcnt lgkmcnt(0)")
    g("s_barrier")
    g("s_cbranch_scc1 L_q_top")
    def q_out(j, t):
        a = acc(j, t)
        return [f"v_mul_f32 v{a+r}, s{S_SCALE}, v{a+r}" for r in range(4)] + \
               [f"v_cvt_pk_bf16_f32 v{a}, v{a}, v{a+1}", f"v_cvt_pk_bf16_f32 v{a+1}, v{a+2}, v{a+3}",
                f"ds_write_b64 v{QW}, {vr(a,2)} offset:{t*8192 + j*1024}"]
    outs = []
    for j in range(4):
        grp = [q_out(j, t) for t in range(5)]
        for x in grp: outs += x[:4]
        for x in grp: outs += x[4:6]
        for x in grp: outs += x[6:]
    q_mfmas(1, ["s_nop 0"]*8 + outs)
    stamp(2)
    g("s_waitcnt vmcnt(0) lgkmcnt(0)")
    g("s_barrier")
    ORDER = "QQQPQPQPQPQPQPPP"
    def hdesc(n, so):
        st = n >> 4; m = n & 15
        k = ORDER[:m].count(ORDER[m])
        if ORDER[m] == "Q":
            return [f"ds_read_b128 {vr(fb(n),4)}, v{KA+k} offset:{so + st*8192}"], mf_qk(n, st, k)
        base = so + 16384 + st*8192 + (k >> 2)*4096
        return [f"ds_read_b64_tr_b16 {vr(fb(n),2)}, v{VA+(k&3)} offset:{base}",
                f"ds_read_b64_tr_b16 {vr(fb(n)+2,2)}, v{VA+(k&3)} offset:{base+2048}"], mf_pv(n, st, k >> 2, k & 3)
    def h_exp(sb, r): return ("v_mov_b32" if opt.noexp else "v_exp_f32") + f" v{TB + (r % 8)}, v{SB+sb*16+r}"
    def h_add(r):
        if r == 1: return f"v_add_f32 v{VTS}, v{TB}, v{TB+1}"
        return f"v_add_f32 v{VTS}, v{VTS}, v{TB+(r%8)}"
    def h_cvt(sb, k): return f"v_cvt_pk_bf16_f32 v{PB+sb*8+k}, v{TB+((2*k)%8)}, v{TB+((2*k+1)%8)}"
    CVT_AT = {1: 0, 3: 1, 5: 2, 9: 3, 10: 4, 11: 5, 13: 6, 15: 7}
    tramp = []
    def h_branch(sb):
        k = len(tramp)
        g(f"s_cbranch_vccnz L_tr{k}")
        g.lab(f"L_bk{k}")
        g(f"v_add_f32 v{VL}, v{VL}, v{VTS}")
        tramp.append(sb)
    def h_gap(sb, m, reads):
        if opt.nosm:
            reads(); return
        reads()
        if m <= 13: g(h_exp(sb, m + 2))
        if m == 14: g(h_exp(sb ^ 1, 0))
        if m <= 14 and not opt.noadd: g(h_add(m + 1))
        if m in CVT_AT: g(h_cvt(sb, CVT_AT[m]))
        if m == 14: g(f"v_cmp_lt_f32 vcc, s{S_THR}, v{VTS}")
        if m == 15:
            h_branch(sb)
            g(h_exp(sb ^ 1, 1))
    def plain_softmax(sb, first=0):
        for r in range(first, 2): g(h_exp(sb, r))
        for m in range(15):
            if m <= 13: g(h_exp(sb, m + 2))
            else: g("s_nop 0")
            g(h_add(m + 1))
            if (m + 1) & 1: g(h_cvt(sb, (m + 1) >> 1))
    WAITS = {4: {0: 1, 2: 4, 5: 8, 9: 12, 13: 16, 17: 20, 21: 24, 25: 27},
             3: {0: 0, 1: 2, 3: 5, 6: 8, 9: 11, 12: 14, 15: 17, 18: 20, 21: 23, 24: 27},
             2: {0: 0, **{n: n + 1 for n in range(1, 28, 2)}}}[opt.wgrp]
    POST = [[0, 1], [2, 3], [4, 5], [6]]
    SO = {0: 0, 1: SLOT, 2: 0, 3: SLOT, 4: 0}
    UPD = {1: 2*SLOT, 3: 2*SLOT, 4: (-4*SLOT) & 0xffffffff}
    lq = LQ()
    for s in range(8):
        lq.issue(s, [f"ds_read_b128 {vr(QF+4*s,4)}, v{QA} offset:{s*1024}"] + rd_k(s, 0, s))
    for r in range(16): g(f"v_mov_b32 v{O+r}, 0")
    for s in range(8):
        lq.need(s)
        g(mf_qk(s, 0, s, czero=True))
        if s >= 1: lq.issue(8+s-1, rd_k(8+s-1, 1, s-1))
        for r in range(5):
            if s < 7: g(f"v_mov_b32 v{O+16+5*s+r}, 0")
    lq.issue(15, rd_k(15, 1, 7))
    g("s_barrier")
    stamp(3)
    for r in range(51, 64): g(f"v_mov_b32 v{O+r}, 0")
    rowmax(0, VM, VT0)
    for r in range(16): g(f"v_sub_f32 v{NEGM+r}, 0, v{VM}")
    for r in range(16): g(f"v_sub_f32 v{SB+r}, v{SB+r}, v{VM}")
    g(sm_exp(0, 0))
    for s in range(8):
        lq.need(8+s)
        g(mf_qk(8+s, 1, s))
        for n in (2*s, 2*s+1):
            for x in sm_gap(0, n): g(x)
    g(f"v_mov_b32 v{VL}, v{VTS}")
    g(f"s_mov_b32 s{S_I}, 0")
    g("s_barrier")
    lq.clear()
    for f in range(7): lq.issue(f, hdesc(f, SO[1])[0])
    g(h_exp(1, 0)); g(h_exp(1, 1))
    g("s_branch L_mid")
    g.raw(".p2align 3")
    g.lab("L_top")
    for it in range(5):
        slot = (it + 1) % 5
        so = SO[slot]
        lq = LQ()
        for n in range(28, 32):
            g(hdesc(n, 0)[1])
            h_gap(0, n - 16, lambda: [lq.issue(f, hdesc(f, so)[0]) for f in POST[n - 28]])
        if it == 0: g.lab("L_mid")
        upd = []
        if slot in UPD:
            upd = [f"v_add_u32 v{KA+k}, {hex(UPD[slot])}, v{KA+k}" for k in range(8)] + \
                  [f"v_add_u32 v{VA+d}, {hex(UPD[slot])}, v{VA+d}" for d in range(4)]
        def rds(n):
            if n + 7 < 32: lq.issue(n + 7, hdesc(n + 7, so)[0])
            if n + 1 in WAITS: lq.need(WAITS[n + 1])
            if n == 27: g("s_waitcnt lgkmcnt(0)")
        lq.need(WAITS[0])
        for n in range(28):
            g(hdesc(n, so)[1])
            h_gap(1 if n < 16 else 0, n & 15, lambda: rds(n))
            if upd:
                if n in (17, 19, 21): g(upd.pop(0))
                if n in (25, 26, 27):
                    for _ in range(3): g(upd.pop(0))
            if stamps and n == 20:
                g(f"s_cmp_eq_u32 s{S_I}, {opt.hit}")
                g(f"s_cbranch_scc0 L_hs{it}")
                g(f"s_memrealtime {sr(S_STAMP+2*(11+it),2)}")
                g.lab(f"L_hs{it}")
            if it == 4 and n == 25:
                g(f"s_add_u32 s{S_I}, s{S_I}, 1")
                g(f"s_cmp_lt_u32 s{S_I}, 3")
        g("s_barrier")
    g("s_cbranch_scc1 L_top")
    stamp(4)
    lq = LQ()
    def edesc(e):
        st = e >> 3; idx = e & 7
        if st: idx = (idx & 1)*4 + (idx >> 1)
        base = SO[1] + 16384 + st*8192 + (idx >> 2)*4096
        return [f"ds_read_b64_tr_b16 {vr(fb(e),2)}, v{VA+(idx&3)} offset:{base}",
                f"ds_read_b64_tr_b16 {vr(fb(e)+2,2)}, v{VA+(idx&3)} offset:{base+2048}"], mf_pv(e, st, idx >> 2, idx & 3)
    for n in range(28, 32):
        g(hdesc(n, 0)[1])
        h_gap(0, n - 16, lambda: [lq.issue(f, edesc(f)[0]) for f in POST[n - 28]])
    for e in range(8):
        lq.need(e)
        g(edesc(e)[1])
        lq.issue(e + 7, edesc(e + 7)[0])
        if e < 6:
            for kk in range([0,3,6,9,12,14][e], [3,6,9,12,14,16][e]):
                lq.issue(100 + kk, a_read(kk >> 3, kk & 7, (kk >> 3)*SLOT))
        for m in (2*e, 2*e+1):
            if m <= 13: g(h_exp(1, m + 2))
            if m <= 14: g(h_add(m + 1))
            if m <= 14 and (m + 1) & 1: g(h_cvt(1, (m + 1) >> 1))
    g(f"v_cmp_lt_f32 vcc, s{S_THR}, v{VTS}")
    lq.need(115)
    g("s_barrier")
    h_branch(2)
    g(f"v_mov_b32 v{VT0}, v{VL}")
    g(f"s_lshl_b32 s{S_T0}, s{S_WAVE}, 13")
    def norm(kap):
        b = O + kap*8
        d = SB + 16 + kap*4 if kap < 4 else TB + (kap-4)*4
        return [f"v_mul_f32 v{b+r}, v{b+r}, v{VL}" for r in range(8)] + \
               [f"v_cvt_pk_bf16_f32 v{d+r}, v{b+2*r}, v{b+2*r+1}" for r in range(4)]
    fill = [f"v_permlane32_swap_b32 v{VL}, v{VT0}", "s_nop 1", f"v_add_f32 v{VL}, v{VL}, v{VT0}",
            f"v_rcp_f32 v{VL}, v{VL}", f"v_add_u32 v{VT0}, s{S_T0}, v{LV}"]
    for e in range(8, 16):
        lq.need(e)
        g(edesc(e)[1])
        if e + 7 < 16: lq.issue(e + 7, edesc(e + 7)[0])
        if e == 9: fill += ["s_nop 4"]
        if e == 10: fill += ["s_nop 4"]
        if e == 11:
            for kap in range(8): fill += norm(kap)
        for _ in range(6):
            if fill: g(fill.pop(0))
    while fill: g(fill.pop(0))
    g("s_waitcnt lgkmcnt(0)")
    if opt.hit == 9: stamp(11)
    g("s_barrier")
    if opt.hit == 9: stamp(12)
    for kap in range(8):
        g(f"ds_write_b128 v{VT0}, {vr(SB + 16 + kap*4 if kap < 4 else TB + (kap-4)*4,4)} offset:{OFB + kap*1024}")

    SV = LV
    LN = VLANE
    def o_base():
        g(f"s_and_b32 s{S_T3}, s{S_WAVE}, 3")
        g(f"s_mul_i32 s{S_SOFF}, s{S_B}, {96*16*1024}")
        g(f"s_lshl_b32 s{S_T0}, s{S_HKV}, 10")
        g(f"s_add_u32 s{S_SOFF}, s{S_SOFF}, s{S_T0}")
        g(f"s_lshl_b32 s{S_T0}, s{S_T3}, 14")
        g(f"s_add_u32 s{S_SOFF}, s{S_SOFF}, s{S_T0}")
    stf = opt.stflag
    def pk(dst, src):
        return [f"v_cvt_pk_bf16_f32 v{dst}, v{src}, v{src+1}", f"v_cvt_pk_bf16_f32 v{dst+1}, v{src+2}, v{src+3}"]
    def out_ops(nq, c):
        oa = OA + (c & 1)*12
        p = PK + (c & 1)*4
        if nq == 2: p = PK + c*4
        ops = pk(p, oa) + pk(p+2, oa+4)
        for cc in ([c] if nq == 3 or not opt.defer else {4: [0, 1, 2], 5: [3, 4, 5]}.get(c, [c] if c > 5 else [])):
            if nq == 2: p = PK + cc*4
            ops.append(f"buffer_store_dwordx4 {vr(p,4)}, v{SV}, {sr(S_WS,4)}, s{S_SOFF} offen{stf}")
            ops.append(f"s_add_u32 s{S_SOFF}, s{S_SOFF}, {4*16384}")
        if nq == 3:
            ops += pk(PK + 8 + 2*(c & 1), oa+8)
            if (c & 1) or c == 8:
                ops.append(f"buffer_store_dwordx4 {vr(PK+8,4)}, v{SV}, {sr(S_WS,4)}, s{S_M0} offen{stf}")
                ops.append(f"s_add_u32 s{S_M0}, s{S_M0}, {4*16384}")
        return ops
    CSLOT = [2, 3, 4, 0, 3, 1, 2, 4, 0]
    def o_step(nq, c, hi, dma, vq):
        par = c & 1
        oa = OA + par*12
        outs = out_ops(nq, c - 1) if c >= 1 else [f"v_add_u32 v{WA}, {2*SLOT}, v{WA}"]
        rds = []
        if 1 <= c <= 7:
            for k in range(8): rds += a_read(par ^ 1, k)
        lq = LQ()
        def bread(k):
            return [f"ds_read_b128 {vr(BF+(t*8+k)*4,4)}, v{QA if hi else SV} offset:{(0 if hi else OFB) + (t*8+k)*1024}" for t in range(nq)]
        if c == 0:
            for k in range(4): lq.issue(k, bread(k))
        for k in range(8):
            if c == 0: lq.need(k)
            for t in range(nq):
                cc = "0" if k == 0 else vr(oa+t*4,4)
                g(f"v_mfma_f32_16x16x32_bf16 {vr(oa+t*4,4)}, {vr(AB+par*32+k*4,4)}, {vr(BF+(t*8+k)*4,4)}, {cc}")
                if c == 0 and t == 0 and k < 4: lq.issue(k + 4, bread(k + 4))
                if dma and t == 1:
                    nm, grp = dma.pop(0)
                    for x in grp: g(x)
                    vq.append(nm)
                if rds:
                    g(rds.pop(0)); g(rds.pop(0))
                    if not rds and c < 7:
                        d = ((CSLOT[c + 2] - CSLOT[c + 1])*SLOT) & 0xffffffff
                        outs.insert(0, f"v_add_u32 v{WA}, {hex(d)}, v{WA}")
                elif k*nq + t >= 8:
                    for _ in range(2):
                        if outs:
                            if outs[0].startswith("buffer_store"): vq.append("st")
                            g(outs.pop(0))
        while outs:
            if outs[0].startswith("buffer_store"): vq.append("st")
            g(outs.pop(0))
    def o_all(nq, hi):
        vq = ["c3"]*8
        g("s_waitcnt lgkmcnt(0)")
        g("s_barrier")
        stamp(5)
        for c in range(9):
            dma = [(f"c{c+4}", x) for x in wo_list(CSLOT[c+4])] if hi and c <= 4 else []
            o_step(nq, c, hi, dma, vq)
            if c in (0, 2, 4, 6):
                if hi:
                    need = f"c{min(c+3, 8)}"
                    last = len(vq) - 1 - vq[::-1].index(need)
                    g(f"s_waitcnt vmcnt({len(vq)-1-last}) lgkmcnt(0)")
                else:
                    g("s_waitcnt lgkmcnt(0)")
                g("s_barrier")
                if c == 0 and opt.hit == 9: stamp(13)
            elif c < 8:
                g("s_waitcnt lgkmcnt(0)")
        g("s_nop 7")
        for x in out_ops(nq, 8): g(x)
    o_base()
    g(f"s_add_u32 s{S_M0}, s{S_SOFF}, {72*16384}")
    g(f"s_add_u32 s{S_SOFF}, s{S_SOFF}, {36*16384}")
    o_all(3, False)
    g("s_branch L_fin")
    g.lab("L_oproj")
    o_base()
    o_all(2, True)
    g.lab("L_fin")
    stamp(6)

    def reduce_body(s_b, s_u, s_ws, s_out, vlane, lab, ldf, t0):
        g(f"s_mul_i32 s{t0}, s{s_b}, 96")
        g(f"s_add_u32 s{t0}, s{t0}, s{s_u}")
        g(f"s_lshl_b32 s{t0}, s{t0}, 14")
        g(f"v_lshlrev_b32 v1, 4, v{vlane}")
        g(f"v_and_b32 v2, 15, v{vlane}")
        g(f"v_lshrrev_b32 v3, 4, v{vlane}")
        for p in range(16):
            if p and p % 4 == 0: g(f"s_add_u32 s{t0}, s{t0}, 4096")
            g(f"buffer_load_dwordx4 {vr(16+4*p,4)}, v1, {sr(s_ws,4)}, s{t0} offen offset:{(p%4)*1024}{ldf}")
        a, b_, c_, d_, e_, f_ = t0+1, t0+2, t0+3, t0+4, t0+5, t0+6
        g(f"s_and_b32 s{a}, s{s_u}, 3")
        g(f"s_lshr_b32 s{b_}, s{s_u}, 2")
        g(f"s_cmp_lt_u32 s{b_}, 9")
        g(f"s_cbranch_scc1 {lab}0")
        g(f"s_cmp_lt_u32 s{b_}, 18")
        g(f"s_cbranch_scc1 {lab}1")
        g(f"s_sub_u32 s{b_}, s{b_}, 18")
        g(f"s_lshl_b32 s{b_}, s{b_}, 8")
        g(f"s_add_u32 s{c_}, s{b_}, {2*16*1152}")
        g(f"s_add_u32 s{d_}, s{c_}, 128")
        g(f"s_cmp_eq_u32 s{b_}, 1024")
        g(f"s_cselect_b32 s{d_}, 0x10000000, s{d_}")
        g(f"s_branch {lab}2")
        g.lab(f"{lab}0")
        g(f"s_lshl_b32 s{b_}, s{b_}, 7")
        g(f"s_add_u32 s{c_}, s{b_}, {3*16*1152}")
        g(f"s_add_u32 s{d_}, s{b_}, {4*16*1152}")
        g(f"s_branch {lab}2")
        g.lab(f"{lab}1")
        g(f"s_sub_u32 s{b_}, s{b_}, 9")
        g(f"s_lshl_b32 s{c_}, s{b_}, 7")
        g(f"s_add_u32 s{d_}, s{c_}, {16*1152}")
        g.lab(f"{lab}2")
        g(f"s_mul_i32 s{e_}, s{s_b}, 92160")
        g(f"s_lshl_b32 s{a}, s{a}, 5")
        g(f"s_add_u32 s{e_}, s{e_}, s{a}")
        g(f"s_add_u32 s{c_}, s{c_}, s{e_}")
        g(f"s_add_u32 s{d_}, s{d_}, s{e_}")
        g("v_mul_u32_u24 v2, 1152, v2")
        g("v_lshl_add_u32 v2, v3, 3, v2")
        g(f"s_mov_b32 s{f_}, 0xffff0000")
        for p in range(16):
            g(f"s_waitcnt vmcnt({15-p})")
            for r in range(4):
                src = 16 + 4*p + r
                if p == 0:
                    g(f"v_lshlrev_b32 v{4+2*r}, 16, v{src}")
                    g(f"v_and_b32 v{5+2*r}, s{f_}, v{src}")
                else:
                    g(f"v_lshlrev_b32 v12, 16, v{src}")
                    g(f"v_and_b32 v13, s{f_}, v{src}")
                    g(f"v_add_f32 v{4+2*r}, v{4+2*r}, v12")
                    g(f"v_add_f32 v{5+2*r}, v{5+2*r}, v13")
        for r in range(4):
            g(f"v_cvt_pk_bf16_f32 v{12+r}, v{4+2*r}, v{5+2*r}")
        g(f"buffer_store_dwordx2 v[12:13], v2, {sr(s_out,4)}, s{c_} offen")
        g(f"buffer_store_dwordx2 v[14:15], v2, {sr(s_out,4)}, s{d_} offen")

    if not opt.red2:
        g("s_waitcnt vmcnt(0)")
        g("s_barrier")
        stamp(7)
        g(f"s_cmp_lg_u32 s{S_WAVE}, 4")
        g("s_cbranch_scc1 L_nopoll")
        g(f"s_lshl_b32 s{S_T0}, s{S_B}, 12")
        g(f"s_add_u32 s{S_T0}, s{S_T0}, {FLAG_OFF}")
        g(f"s_lshl_b32 s{S_T1}, s{S_B}, 3")
        g(f"s_mov_b32 s{S_I}, 0")
        g.lab("L_tagw")
        g(f"v_cmp_ne_u32 vcc, 0, v{QV}")
        g("s_cbranch_vccnz L_tagok")
        g(f"buffer_load_dwordx2 {vr(QV,2)}, off, {sr(S_DBG,4)}, s{S_T1} sc1")
        g(f"s_add_u32 s{S_I}, s{S_I}, 1")
        g(f"s_cmp_gt_u32 s{S_I}, 0x200000")
        g("s_waitcnt vmcnt(0)")
        g("s_cbranch_scc0 L_tagw")
        g.lab("L_tagok")
        g(f"v_mov_b32 v2, v{QV}")
        g(f"v_mov_b32 v3, v{QV+1}")
        g(f"s_lshl_b32 s{S_T1}, s{S_HKV}, 3")
        g(f"v_mov_b32 v1, s{S_T1}")
        g(f"v_lshlrev_b32 v6, 3, v{LN}")
        g("s_mov_b64 exec, 1")
        g(f"buffer_store_dwordx2 v[2:3], v1, {sr(S_WS,4)}, s{S_T0} offen sc1")
        g("s_mov_b64 exec, 0xffff")
        g(f"s_mov_b32 s{S_I}, 0")
        g.lab("L_poll")
        g(f"buffer_load_dwordx2 v[4:5], v6, {sr(S_WS,4)}, s{S_T0} offen sc1")
        g(f"s_add_u32 s{S_I}, s{S_I}, 1")
        g(f"s_cmp_gt_u32 s{S_I}, 0x200000")
        g("s_cbranch_scc1 L_polld")
        g("s_waitcnt vmcnt(0)")
        g("v_cmp_ne_u64 vcc, v[4:5], v[2:3]")
        g("s_cbranch_vccnz L_poll")
        g.lab("L_polld")
        g("s_mov_b64 exec, -1")
        g.lab("L_nopoll")
        g("s_barrier")
        stamp(8)
        g(f"s_lshl_b32 s{S_T0}, s{S_WAVE}, 4")
        g(f"s_add_u32 s{S_T0}, s{S_T0}, s{S_HKV}")
        g(f"s_cmp_ge_u32 s{S_T0}, 92")
        g("s_cbranch_scc1 L_reddone")
        reduce_body(S_B, S_T0, S_WS, S_OUT, LN, "L_r", " sc1", S_E)
        g.lab("L_reddone")
        stamp(9)
    if stamps:
        g("s_waitcnt vmcnt(0)")
        stamp(10 if not opt.red2 else 7)
        g(f"s_cmp_lg_u32 s{S_WAVE}, {opt.stampwave}")
        g("s_cbranch_scc1 L_end")
        g("s_waitcnt lgkmcnt(0)")
        g(f"s_mul_i32 s{S_T0}, s2, {NSTAMP*8}")
        g(f"s_add_u32 s{S_T0}, s{S_T0}, {STAMP_OFF}")
        g("v_mov_b32 v0, 0")
        g("s_mov_b64 exec, 1")
        for i in (list(range(16)) if not opt.red2 else list(range(8)) + [11, 12, 13, 14, 15]):
            g(f"v_mov_b32 v2, s{S_STAMP+2*i}")
            g(f"v_mov_b32 v3, s{S_STAMP+2*i+1}")
            g(f"buffer_store_dwordx2 v[2:3], v0, {sr(S_WS,4)}, s{S_T0} offen offset:{8*i}")
            g("s_nop 1")
    g.lab("L_end")
    g("s_endpgm")

    for sb, tag, light in rare:
        Sc = SB + sb*16; Sn = SB + (sb^1)*16
        g.lab(f"L_rare_{tag}")
        g("s_nop 7"); g("s_nop 7")
        rowmax(sb, VT1, VT0)
        g(f"v_max_f32 v{VT2}, 0, v{VT1}")
        g(f"v_mov_b32 v{VT1}, v{VT2}")
        g(f"v_sub_f32 v{VT2}, 0, v{VT2}")
        g(f"v_exp_f32 v{VT2}, v{VT2}")
        for r in range(16): g(f"v_sub_f32 v{Sc+r}, v{Sc+r}, v{VT1}")
        if not light:
            for r in range(16): g(f"v_sub_f32 v{Sn+r}, v{Sn+r}, v{VT1}")
        for r in range(16): g(f"v_sub_f32 v{NEGM+r}, v{NEGM+r}, v{VT1}")
        for r in range(64): g(f"v_mul_f32 v{O+r}, v{O+r}, v{VT2}")
        g(f"v_mul_f32 v{VL}, v{VL}, v{VT2}")
        g(sm_exp(sb, 0))
        for n in range(16):
            for x in sm_gap(sb, n): g(x)
        g("s_nop 1")
        g(f"s_branch L_back_{tag}")

    for k, sb in enumerate(tramp):
        g.lab(f"L_tr{k}")
        g(f"s_call_b64 s[6:7], L_hrare{sb}")
        g(f"s_branch L_bk{k}")
    for var in range(3):
        sb = min(var, 1)
        Sc = SB + sb*16; Sn = SB + (sb^1)*16
        g.lab(f"L_hrare{var}")
        g("s_nop 7"); g("s_nop 7")
        rowmax(sb, VT1, VT0)
        g(f"v_max_f32 v{VT1}, 0, v{VT1}")
        g(f"v_sub_f32 v{VT2}, 0, v{VT1}")
        g(f"v_exp_f32 v{VT2}, v{VT2}")
        for r in range(16): g(f"v_sub_f32 v{Sc+r}, v{Sc+r}, v{VT1}")
        if var < 2:
            for r in range(16): g(f"v_sub_f32 v{Sn+r}, v{Sn+r}, v{VT1}")
            for r in range(16): g(f"v_sub_f32 v{NEGM+r}, v{NEGM+r}, v{VT1}")
        for r in range(64): g(f"v_mul_f32 v{O+r}, v{O+r}, v{VT2}")
        g(f"v_mul_f32 v{VL}, v{VL}, v{VT2}")
        plain_softmax(sb)
        if var < 2: g(h_exp(sb ^ 1, 0))
        g("s_nop 1")
        g("s_setpc_b64 s[6:7]")

    kernels = [(f"{NAME}_kernel", 256)]
    if opt.red2:
        kernels.append(("reduce_kernel", 80))
        g.raw(".globl reduce_kernel")
        g.raw(".p2align 8")
        g.raw(".type reduce_kernel,@function")
        g.lab("reduce_kernel")
        g("s_cmp_ge_u32 s2, 184")
        g("s_cbranch_scc1 L_rend")
        if stamps: g("s_memrealtime s[40:41]")
        g("s_load_dwordx2 s[4:5], s[0:1], 40")
        g("s_load_dwordx2 s[6:7], s[0:1], 56")
        g("v_lshrrev_b32 v1, 6, v0")
        g("s_lshl_b32 s16, s2, 3")
        g("v_readfirstlane_b32 s17, v1")
        g("v_and_b32 v0, 63, v0")
        g("s_add_u32 s16, s16, s17")
        g("s_mul_hi_u32 s18, s16, 46684428")
        g("s_mul_i32 s19, s18, 92")
        g("s_sub_u32 s19, s16, s19")
        g("s_waitcnt lgkmcnt(0)")
        g("s_mov_b32 s8, s4"); g("s_mov_b32 s9, s5"); g("s_mov_b32 s10, 1474560"); g("s_mov_b32 s11, 0x20000")
        g("s_mov_b32 s12, s6"); g("s_mov_b32 s13, s7"); g("s_mov_b32 s14, 268435456"); g("s_mov_b32 s15, 0x20000")
        reduce_body(18, 19, 12, 8, 0, "L_rr", opt.ldflag, 20)
        if stamps:
            g("s_memrealtime s[42:43]")
            g("s_waitcnt vmcnt(0)")
            g("s_memrealtime s[44:45]")
            g("s_cmp_lg_u32 s17, 0")
            g("s_cbranch_scc1 L_rend")
            g("s_waitcnt lgkmcnt(0)")
            g(f"s_mul_i32 s20, s2, {NSTAMP*8}")
            g(f"s_add_u32 s20, s20, {STAMP_OFF}")
            g("v_mov_b32 v0, 0")
            g("s_mov_b64 exec, 1")
            for i in range(3):
                g(f"v_mov_b32 v2, s{40+2*i}")
                g(f"v_mov_b32 v3, s{41+2*i}")
                g(f"buffer_store_dwordx2 v[2:3], v0, s[12:15], s20 offen offset:{64+8*i}")
                g("s_nop 1")
        g.lab("L_rend")
        g("s_endpgm")

    g.raw('.section .rodata,"a"')
    for (k, nv) in kernels:
        g.raw(".p2align 6")
        g.raw(f".amdhsa_kernel {k}")
        for l in [f".amdhsa_next_free_vgpr {nv}", ".amdhsa_next_free_sgpr 102", f".amdhsa_accum_offset {nv}",
                  ".amdhsa_group_segment_fixed_size 0", ".amdhsa_kernarg_size 64", ".amdhsa_user_sgpr_count 2",
                  ".amdhsa_user_sgpr_kernarg_segment_ptr 1", ".amdhsa_system_sgpr_workgroup_id_x 1"]:
            g.raw("  " + l)
        g.raw(".end_amdhsa_kernel")
    return "\n".join(g.L) + "\n"

if __name__ == "__main__":
    ap = argparse.ArgumentParser()
    ap.add_argument("-o", default="k.s")
    ap.add_argument("--stamps", action="store_true")
    ap.add_argument("--stampwave", type=int, default=0)
    ap.add_argument("--loopstamps", action="store_true")
    ap.add_argument("--nolight", action="store_true")
    ap.add_argument("--nosm", action="store_true")
    ap.add_argument("--nodma", action="store_true")
    ap.add_argument("--kvstart", type=int, default=15)
    ap.add_argument("--wgrp", type=int, default=4)
    ap.add_argument("--lsplit", type=int, default=8)
    ap.add_argument("--hprio", type=int, default=0)
    ap.add_argument("--noadd", action="store_true")
    ap.add_argument("--noexp", action="store_true")
    ap.add_argument("--mprio", type=int, default=1)
    ap.add_argument("--grp", default="AB")
    ap.add_argument("--stagiss", type=int, default=1)
    ap.add_argument("--hit", type=int, default=0)
    ap.add_argument("--oprio", type=int, default=0)
    ap.add_argument("--defer", type=int, default=1)
    ap.add_argument("--sda", type=int, default=2)
    ap.add_argument("--sdb", type=int, default=2)
    ap.add_argument("--vmask", default="0xc00008")
    ap.add_argument("--fakekv", action="store_true")
    ap.add_argument("--nont", action="store_true")
    ap.add_argument("--nocoop", action="store_true")
    ap.add_argument("--red2", action="store_true")
    ap.add_argument("--list", action="store_true")
    ap.add_argument("--prio", type=int, default=0)
    ap.add_argument("--stflag", default=None)
    ap.add_argument("--ldflag", default="")
    opt = ap.parse_args()
    if opt.stflag is None: opt.stflag = "" if opt.red2 else "sc1"
    if opt.stflag: opt.stflag = " " + opt.stflag
    if opt.ldflag: opt.ldflag = " " + opt.ldflag
    open(opt.o, "w").write(build(opt))
```

```python
import sys, struct, argparse

NAME = "standalone__gqa_block_cached__near_ridge"

def f32bits(x):
    return struct.unpack("<I", struct.pack("<f", x))[0]

class G:
    def __init__(self): self.L = []
    def __call__(self, s): self.L.append("    " + s)
    def lab(self, s): self.L.append(s + ":")
    def raw(self, s): self.L.append(s)
    def c(self, s): self.L.append("    ; " + s)

def vr(a, n): return f"v[{a}:{a+n-1}]" if n > 1 else f"v{a}"
def sr(a, n): return f"s[{a}:{a+n-1}]" if n > 1 else f"s{a}"

S_X, S_KV, S_DBG, S_WQ, S_WO, S_WS, S_OUT = 8, 12, 16, 20, 24, 28, 32
S_HKV, S_B, S_WAVE = 36, 37, 38
S_T0, S_T1, S_T2, S_T3 = 39, 40, 41, 42
S_I, S_SLOT, S_DELTA = 43, 44, 45
S_THR, S_SCALE, S_TAG, S_ISV = 46, 47, 48, 50
S_E = 51
S_SOFF, S_M0 = 58, 59
S_KVBASE = 60
S_CLK = 62
S_STAMP = 64
SLOT = 32768
XG = [0, SLOT, 2*SLOT]
WQB = 3*SLOT
QB = 5*SLOT - 40960
QT = [QB + t*8192 for t in range(5)]
S_NXT, S_CUR = 4, 5
OFB = 8192
DUMPA = 81920
DUMPB = 0
MLB = 32768
FLAG_OFF = 0x6000000
STAMP_OFF = 0x8000000
NSTAMP = 16

def build(opt):
    g = G()
    stamps = opt.stamps
    nt = "" if opt.nont else " nt"
    def stamp(i):
        if stamps: g(f"s_memrealtime {sr(S_STAMP+2*i,2)}")
    if opt.red2 or opt.list:
        g.raw(f"; @launch kernel={NAME}_kernel grid=(256,1,1) block=(512,1,1) lds=163840")
        if opt.red2: g.raw(f"; @launch kernel=reduce_kernel grid=(184,1,1) block=(512,1,1) lds=0")
    else:
        g.raw(f"; @launch grid=(256,1,1) block=(512,1,1) lds=163840")
    g.raw('.amdgcn_target "amdgcn-amd-amdhsa--gfx950"')
    g.raw(".text")
    g.raw(f".globl {NAME}_kernel")
    g.raw(".p2align 8")
    g.raw(f".type {NAME}_kernel,@function")
    g.lab(f"{NAME}_kernel")
    g("s_cmp_ge_u32 s2, 256")
    g("s_cbranch_scc1 L_end")
    g("s_load_dwordx16 s[64:79], s[0:1], 0")
    g("v_lshrrev_b32 v1, 6, v0")
    g("s_and_b32 s36, s2, 7")
    g("v_readfirstlane_b32 s38, v1")
    g("s_lshl_b32 s36, s36, 1")
    g("s_bfe_u32 s39, s2, 0x10003")
    g("s_add_u32 s36, s36, s39")
    g("s_lshr_b32 s37, s2, 4")
    g("v_and_b32 v0, 63, v0")
    g(f"s_lshl_b32 s{S_KVBASE}, s{S_B}, 4")
    g(f"s_add_u32 s{S_KVBASE}, s{S_KVBASE}, s{S_HKV}")
    g(f"s_lshl_b32 s{S_KVBASE}, s{S_KVBASE}, 18")
    if opt.fakekv: g(f"s_mov_b32 s{S_KVBASE}, 0")
    g(f"s_and_b32 s{S_ISV}, s{S_WAVE}, 1")
    for (d, size) in ((S_X, 1474560), (S_KV, 67108864), (S_WQ, 4718592), (S_WO, 4718592), (S_OUT, 1474560), (S_DBG, 256), (S_WS, 268435456)):
        g(f"s_mov_b32 s{d+2}, {size}")
        g(f"s_mov_b32 s{d+3}, 0x20000")
    g(f"s_cmp_eq_u32 s{S_ISV}, 0")
    g("s_waitcnt lgkmcnt(0)")
    g(f"s_cselect_b32 s{S_KV}, s66, s68")
    g(f"s_cselect_b32 s{S_KV+1}, s67, s69")
    for (d, src) in ((S_X, 64), (S_WQ, 70), (S_WO, 72), (S_OUT, 74), (S_DBG, 76), (S_WS, 78)):
        g(f"s_mov_b32 s{d}, s{src}")
        g(f"s_mov_b32 s{d+1}, s{src+1}")
    stamp(0)
    g(f"s_cmp_lt_u32 s{S_WAVE}, 4")
    g("s_cbranch_scc1 L_qproj")
    if opt.prio: g(f"s_setprio {opt.prio}")

    O, QF, NEGM, SB, PB, FB, TB, KA, VA = 0, 64, 96, 112, 144, 160, 192, 208, 216
    VL, VTS, VM, VT0, VT1, VT2, VLANE, VFL = 220, 221, 222, 223, 224, 225, 226, 227
    DV = 228
    WV = 232
    XV = 236
    LV = 237
    DUM = 238
    WA = 239
    QV = 240
    AB, BF, OA, PK = 64, 128, 0, 24
    S_J, S_GRP, S_WOFF, S_WM0, S_FL = 61, 3, 54, 55, 56
    LSPLIT = opt.lsplit

    class LQ:
        def __init__(self): self.q = []
        def issue(self, f, instrs):
            for s in instrs:
                g(s); self.q.append(f)
        def need(self, f):
            if f in self.q:
                last = len(self.q) - 1 - self.q[::-1].index(f)
                after = min(15, len(self.q) - 1 - last)
                g(f"s_waitcnt lgkmcnt({after})")
                self.q = self.q[last+1:]
        def clear(self): self.q = []

    def fb(f): return FB + (f % 8)*4
    def rd_k(f, st, s):
        return [f"ds_read_b128 {vr(fb(f),4)}, v{KA+s} offset:{st*8192}"]
    def rd_v(f, st, ks, dt):
        base = 16384 + st*8192 + ks*4096
        return [f"ds_read_b64_tr_b16 {vr(fb(f),2)}, v{VA+dt} offset:{base}",
                f"ds_read_b64_tr_b16 {vr(fb(f)+2,2)}, v{VA+dt} offset:{base+2048}"]
    def mf_qk(f, sb, s, czero=False):
        c = ("0" if czero else vr(NEGM,16)) if s == 0 else vr(SB+sb*16,16)
        return f"v_mfma_f32_32x32x16_bf16 {vr(SB+sb*16,16)}, {vr(fb(f),4)}, {vr(QF+4*s,4)}, {c}"
    def mf_pv(f, pb, ks, dt):
        return f"v_mfma_f32_32x32x16_bf16 {vr(O+dt*16,16)}, {vr(fb(f),4)}, {vr(PB+pb*8+ks*4,4)}, {vr(O+dt*16,16)}"
    def frag_desc(n):
        st = n >> 4; m = n & 15
        if m < 8: return rd_k(n, st, m), mf_qk(n, st, m)
        idx = m - 8
        return rd_v(n, st, idx >> 2, idx & 3), mf_pv(n, st, idx >> 2, idx & 3)
    def sm_exp(sb, r): return f"v_exp_f32 v{TB + (r % 4)}, v{SB+sb*16+r}"
    def sm_gap(sb, n):
        out = []
        if opt.nosm: return out
        if n + 1 <= 15: out.append(sm_exp(sb, n+1))
        if n == 1: out.append(f"v_add_f32 v{VTS}, v{TB+0}, v{TB+1}")
        elif n > 1: out.append(f"v_add_f32 v{VTS}, v{VTS}, v{TB+(n%4)}")
        if opt.noadd: out = [x for x in out if not x.startswith("v_add_f32")]
        if opt.noexp: out = [x.replace("v_exp_f32", "v_mov_b32") for x in out]
        if n & 1: out.append(f"v_cvt_pk_bf16_f32 v{PB+sb*8+(n>>1)}, v{TB+((n-1)%4)}, v{TB+(n%4)}")
        return out
    rare = []
    def sm_check(sb, tag, light=False):
        g(f"v_cmp_lt_f32 vcc, s{S_THR}, v{VTS}")
        g(f"s_cbranch_vccnz L_rare_{tag}")
        g.lab(f"L_back_{tag}")
        g(f"v_add_f32 v{VL}, v{VL}, v{VTS}")
        rare.append((sb, tag, light))
    def rowmax(sb, dst, tmp):
        S = SB + sb*16
        g(f"v_max3_f32 v{dst}, v{S}, v{S+1}, v{S+2}")
        for r in range(3, 15, 2):
            g(f"v_max3_f32 v{dst}, v{dst}, v{S+r}, v{S+r+1}")
        g(f"v_max_f32 v{dst}, v{dst}, v{S+15}")
        g(f"v_mov_b32 v{tmp}, v{dst}")
        g("s_nop 1")
        g(f"v_permlane32_swap_b32 v{dst}, v{tmp}")
        g("s_nop 1")
        g(f"v_max_f32 v{dst}, v{dst}, v{tmp}")
    QA = 227
    def q_read():
        for s in range(8):
            g(f"ds_read_b128 {vr(QF+4*s,4)}, v{QA} offset:{s*1024}")
    def wo_setup(sj):
        g(f"v_lshrrev_b32 v{VT0}, 3, v{VLANE}")
        g(f"v_bfe_u32 v{VT1}, v{VLANE}, 4, 1")
        g(f"s_and_b32 s{S_T0}, s{sj}, 2")
        g(f"v_or_b32 v{VT1}, s{S_T0}, v{VT1}")
        g(f"v_bfe_u32 v{VT2}, v{VLANE}, 1, 2")
        g(f"v_xor_b32 v{VT1}, v{VT1}, v{VT2}")
        g(f"v_lshlrev_b32 v{VT1}, 5, v{VT1}")
        g(f"v_and_b32 v{VT2}, 1, v{VLANE}")
        g(f"v_lshl_add_u32 v{VT1}, v{VT2}, 4, v{VT1}")
        g(f"v_mul_u32_u24 v{VT0}, 1152, v{VT0}")
        g(f"v_add_u32 v{WV}, v{VT0}, v{VT1}")
        for a in range(1, 4): g(f"v_add_u32 v{WV+a}, {a*8192}, v{WV}")
        g(f"s_mul_i32 s{S_WOFF}, s{S_HKV}, {256*1152}")
        g(f"s_mul_i32 s{S_T0}, s{sj}, {64*1152}")
        g(f"s_add_u32 s{S_WOFF}, s{S_WOFF}, s{S_T0}")
        g(f"s_lshl_b32 s{S_WM0}, s{sj}, 13")
    def wo_list(slot):
        n = len(g.L); wo_issue(slot); out = [x.strip() for x in g.L[n:]]; del g.L[n:]
        grp = []; cur = []
        for x in out:
            cur.append(x)
            if x.startswith("buffer_load"): grp.append(cur); cur = []
        return grp
    def wo_issue(slot):
        if isinstance(slot, str): g(f"s_add_u32 m0, s{S_WM0}, {slot}")
        else: g(f"s_add_u32 m0, s{S_WM0}, {slot*SLOT}")
        g(f"s_add_u32 s{S_T0}, s{S_WOFF}, {4*9216}")
        for a in range(4):
            g(f"buffer_load_dwordx4 v{WV+a}, {sr(S_WO,4)}, s{S_WOFF} offen offset:{a*1024} lds")
        g(f"s_add_u32 m0, m0, 4096")
        g(f"s_add_u32 s{S_WOFF}, s{S_WOFF}, 128")
        for a in range(4):
            g(f"buffer_load_dwordx4 v{WV+a}, {sr(S_WO,4)}, s{S_T0} offen offset:{a*1024} lds")
    def attn_setup(light):
        g(f"s_lshl_b32 s{S_T0}, s{S_WAVE}, 13")
        g(f"s_add_u32 s{S_T0}, s{S_T0}, {QB}")
        g(f"v_lshlrev_b32 v{QA}, 4, v{VLANE}")
        g(f"v_add_u32 v{QA}, s{S_T0}, v{QA}")
        g(f"v_and_b32 v{VT1}, 15, v{VLANE}")
        g(f"v_lshrrev_b32 v{VT2}, 5, v{VLANE}")
        g(f"v_xor_b32 v{VT1}, v{VT1}, v{VT2}")
        g(f"v_lshlrev_b32 v{VT1}, 4, v{VT1}")
        g(f"v_and_b32 v{KA}, 31, v{VLANE}")
        g(f"v_lshl_add_u32 v{KA}, v{KA}, 8, v{VT1}")
        g(f"v_bfe_u32 v{VT1}, v{VLANE}, 2, 2")
        g(f"v_lshl_add_u32 v{VA}, v{VT2}, 2, v{VT1}")
        g(f"v_lshlrev_b32 v{VA}, 8, v{VA}")
        g(f"v_lshl_add_u32 v{VA}, v{VT1}, 6, v{VA}")
        g(f"v_bfe_u32 v{VT1}, v{VLANE}, 4, 1")
        g(f"v_lshl_add_u32 v{VA}, v{VT1}, 5, v{VA}")
        g(f"v_and_b32 v{VT1}, 3, v{VLANE}")
        g(f"v_lshl_add_u32 v{VA}, v{VT1}, 3, v{VA}")
        for s in range(1, 8): g(f"v_xor_b32 v{KA+s}, {s*32}, v{KA}")
        for dt in range(1, 4): g(f"v_xor_b32 v{VA+dt}, {dt*64}, v{VA}")
        g(f"s_and_b32 s{S_T0}, s{S_WAVE}, 3")
        g(f"v_bfe_u32 v{VT1}, v{VLANE}, 2, 2")
        g(f"v_lshl_add_u32 v{WA}, v{VT2}, 2, v{VT1}")
        g(f"v_bfe_u32 v{VT1}, v{VLANE}, 4, 1")
        g(f"v_lshl_add_u32 v{WA}, v{VT1}, 7, v{WA}")
        g(f"v_lshlrev_b32 v{WA}, 7, v{WA}")
        g(f"v_bfe_u32 v{VT1}, v{VLANE}, 3, 2")
        g(f"v_xor_b32 v{VT1}, s{S_T0}, v{VT1}")
        g(f"v_lshl_add_u32 v{WA}, v{VT1}, 5, v{WA}")
        g(f"v_and_b32 v{VT1}, 3, v{VLANE}")
        g(f"v_lshl_add_u32 v{WA}, v{VT1}, 3, v{WA}")
        g(f"v_add_u32 v{WA}, {3*SLOT}, v{WA}")
        g(f"v_lshlrev_b32 v{LV}, 4, v{VLANE}")
        g(f"s_mov_b32 s{S_THR}, {hex(f32bits(65536.0))}")
    def a_read(par, k, so=0):
        a = AB + par*32 + k*4
        return [f"ds_read_b64_tr_b16 {vr(a,2)}, v{WA} offset:{so + k*2048}",
                f"ds_read_b64_tr_b16 {vr(a+2,2)}, v{WA} offset:{so + k*2048+1024}"]
    def cstamp(i, reg, val):
        if stamps and opt.loopstamps:
            g(f"s_cmp_lg_u32 s{reg}, {val}")
            g(f"s_cbranch_scc1 L_cs{i}_{reg}_{len(g.L)}")
            n = len(g.L) - 1
            g(f"s_memrealtime {sr(S_STAMP+2*i,2)}")
            g.lab(f"L_cs{i}_{reg}_{n}")
    g.c("waves 4,5: wq loaders; 6,7: x then K/V loaders; wave 4 then joins the attention waves")
    g(f"s_sub_u32 s{S_J}, s{S_WAVE}, 4")
    g(f"v_mov_b32 v{VLANE}, v0")
    T1, T2, T3 = VT0, VT1, VT2
    g(f"s_cmp_lt_u32 s{S_J}, 2")
    g("s_cbranch_scc1 L_lightA")
    g(f"v_lshrrev_b32 v{T1}, 3, v{VLANE}")
    g(f"s_lshl_b32 s{S_T1}, s{S_ISV}, 3")
    g(f"v_add_u32 v{T1}, s{S_T1}, v{T1}")
    g(f"v_lshrrev_b32 v{T2}, 1, v{T1}")
    g(f"v_and_b32 v{T3}, 7, v{VLANE}")
    g(f"v_xor_b32 v{T2}, v{T2}, v{T3}")
    g(f"v_lshlrev_b32 v{T2}, 4, v{T2}")
    g(f"v_mul_u32_u24 v{T1}, 1152, v{T1}")
    g(f"v_add_u32 v{XV}, v{T1}, v{T2}")
    g(f"s_mul_i32 s{S_SOFF}, s{S_B}, 92160")
    g(f"s_lshl_b32 s{S_M0}, s{S_ISV}, 10")
    def x_kp(n):
        g(f"s_add_u32 m0, s{S_M0}, {XG[n//3] + (n % 3)*10240}")
        for t in range(5):
            g(f"s_add_u32 s{S_T2}, s{S_SOFF}, {t*18432 + n*128}")
            g(f"buffer_load_dwordx4 v{XV}, {sr(S_X,4)}, s{S_T2} offen lds")
            if t < 4: g("s_add_u32 m0, m0, 2048")
    class VQ:
        def __init__(self): self.q = []
        def add(self, tag, n=1): self.q += [tag]*n
        def need(self, tag, extra=""):
            if tag in self.q:
                last = len(self.q) - 1 - self.q[::-1].index(tag)
                g(f"s_waitcnt vmcnt({min(63, len(self.q) - 1 - last)}){extra}")
                self.q = self.q[last+1:]
    vq = VQ()
    XS = [int(c) for c in opt.xs]
    assert sum(XS) == 9
    XS += [0]*(20 - len(XS))
    def x_issue(k):
        for n in range(sum(XS[:k]), sum(XS[:k+1])):
            x_kp(n); vq.add(f"x{n}", 5)
    x_issue(0)
    g("v_lshrrev_b32 v1, 4, v0")
    g("v_and_b32 v2, 15, v0")
    g(f"s_lshl_b32 s{S_T0}, s{S_ISV}, 1")
    g(f"v_lshlrev_b32 v3, s{S_T0}, v1")
    g("v_xor_b32 v3, v3, v2")
    g("v_lshlrev_b32 v3, 4, v3")
    g(f"v_lshl_add_u32 v{DV}, v1, 8, v3")
    g(f"s_cmp_eq_u32 s{S_ISV}, 0")
    for a in range(1, 4):
        g(f"s_cselect_b32 s{S_T0}, {a*64}, 0")
        g(f"v_xor_b32 v{DV+a}, s{S_T0}, v{DV}")
    attn_setup(True)
    wo_setup(S_J)
    S_KM0 = S_FL
    g(f"s_mul_i32 s{S_KM0}, s{S_ISV}, {SLOT + 16384}")
    def kv_issue():
        g(f"s_mov_b32 m0, s{S_KM0}")
        g(f"s_add_u32 s{S_KM0}, s{S_KM0}, {SLOT}")
        for q in range(4):
            if q:
                g(f"s_add_u32 m0, m0, 4096")
                g(f"s_add_u32 s{S_KVBASE}, s{S_KVBASE}, 4096")
            for a in range(4):
                if not opt.nodma: g(f"buffer_load_dwordx4 v{DV+a}, {sr(S_KV,4)}, s{S_KVBASE} offen offset:{a*1024}{nt} lds")
        g(f"s_add_u32 s{S_KVBASE}, s{S_KVBASE}, 4096")
        g(f"s_cmp_ge_u32 s{S_KM0}, {3*SLOT}")
        g(f"s_cselect_b32 s{S_T0}, {3*SLOT}, 0")
        g(f"s_sub_u32 s{S_KM0}, s{S_KM0}, s{S_T0}")
    stamp(11)
    vq.need("x0")
    stamp(12)
    g("s_barrier")
    for k in range(1, 19):
        x_issue(k)
        if k - 1 == opt.kvstart:
            vq.need("x8")
            kv_issue()
        if k - 1 == opt.kvstart + 1:
            g(f"s_cmp_eq_u32 s{S_ISV}, 1")
            g("s_cbranch_scc1 L_kv_nok1")
            kv_issue()
            g.lab("L_kv_nok1")
        if k % 2 == 0: vq.need(f"x{k//2}")
        g("s_barrier")
    g("s_waitcnt vmcnt(16)")
    g("s_barrier")
    kv_issue()
    g("s_barrier")
    g(f"s_add_u32 s{S_I}, s{S_ISV}, 13")
    g.lab("L_kv_loop")
    g("s_waitcnt vmcnt(16)")
    g("s_barrier")
    kv_issue()
    g(f"s_sub_u32 s{S_I}, s{S_I}, 1")
    g(f"s_cmp_lg_u32 s{S_I}, 0")
    g("s_cbranch_scc1 L_kv_loop")
    g("s_waitcnt vmcnt(16)")
    g("s_barrier")
    g(f"s_cmp_eq_u32 s{S_ISV}, 1")
    g("s_cbranch_scc1 L_svc_tail")
    g("s_waitcnt vmcnt(0)")
    g("s_barrier")
    g("s_branch L_svc_tail")
    g.lab("L_lightA")
    g(f"v_lshrrev_b32 v{T1}, 5, v{VLANE}")
    g(f"v_bfe_u32 v{T2}, v{VLANE}, 1, 4")
    g(f"v_xor_b32 v{T2}, v{T2}, v{T1}")
    g(f"v_lshlrev_b32 v{T2}, 5, v{T2}")
    g(f"v_and_b32 v{T3}, 1, v{VLANE}")
    g(f"v_lshl_add_u32 v{T2}, v{T3}, 4, v{T2}")
    g(f"v_lshl_add_u32 v{T2}, v{T1}, 13, v{T2}")
    for p in range(8):
        x = ((2*(p & 1)) | (((p >> 2) & 1) << 2)) << 5
        g(f"v_xor_b32 v{QV+p}, {x}, v{T2}")
        if p: g(f"v_add_u32 v{QV+p}, {p*16384 - (p & 3)*1024}, v{QV+p}")
    g(f"s_lshl_b32 s{S_SOFF}, s{S_HKV}, 9")
    g(f"s_lshl_b32 s{S_T0}, s{S_ISV}, 17")
    g(f"s_add_u32 s{S_SOFF}, s{S_SOFF}, s{S_T0}")
    g(f"s_lshl_b32 s{S_M0}, s{S_ISV}, 13")
    def wq_issue():
        g(f"s_add_u32 m0, s{S_M0}, {WQB}")
        g(f"s_add_u32 s{S_M0}, s{S_M0}, 16384")
        for p in range(8):
            if p == 4:
                g("s_add_u32 m0, m0, 4096")
                g(f"s_and_b32 s{S_M0}, s{S_M0}, 0xffff")
            g(f"buffer_load_dwordx4 v{QV+p}, {sr(S_WQ,4)}, s{S_SOFF} offen offset:{(p&3)*1024} lds")
        g(f"s_add_u32 s{S_SOFF}, s{S_SOFF}, 0x40000")
    wq_issue(); wq_issue()
    attn_setup(True)
    wo_setup(S_J)
    stamp(11)
    g("s_waitcnt vmcnt(8)")
    stamp(12)
    g("s_barrier")
    wq_issue(); wq_issue()
    g(f"s_mov_b32 s{S_I}, 1")
    g.lab("L_la_q")
    g("s_waitcnt vmcnt(16)")
    g("s_barrier")
    wq_issue()
    g(f"s_add_u32 s{S_I}, s{S_I}, 1")
    g(f"s_cmp_lt_u32 s{S_I}, 15")
    g("s_cbranch_scc1 L_la_q")
    for w in (16, 8, 0):
        g(f"s_waitcnt vmcnt({w})")
        g("s_barrier")
    g("s_barrier")
    g(f"s_add_u32 s{S_WOFF}, s{S_WOFF}, {5*128}")
    g(f"s_cmp_eq_u32 s{S_J}, 0")
    g("s_cbranch_scc1 L_attn")
    W2 = 248
    def wo_whole(chunk, slot, part):
        v = WV if part < 2 else W2
        g(f"s_mov_b32 m0, {slot*SLOT + part*8192}")
        g(f"s_add_u32 s{S_T0}, s{S_E}, {chunk*128 + part*64*1152}")
        for a in range(4): g(f"buffer_load_dwordx4 v{v+a}, {sr(S_WO,4)}, s{S_T0} offen offset:{a*1024} lds")
        g(f"s_add_u32 m0, m0, 4096")
        g(f"s_add_u32 s{S_T0}, s{S_T0}, {4*9216}")
        for a in range(4): g(f"buffer_load_dwordx4 v{v+a}, {sr(S_WO,4)}, s{S_T0} offen offset:{a*1024} lds")
    for a in range(4): g(f"v_xor_b32 v{W2+a}, 64, v{WV+a}")
    g(f"s_mul_i32 s{S_E}, s{S_HKV}, {256*1152}")
    g(f"s_mul_i32 s{S_T0}, s{S_B}, {16*1152}")
    g(f"s_add_u32 s{S_E+2}, s{S_E}, s{S_T0}")
    g(f"v_lshlrev_b32 v{XV}, 7, v{VLANE}")
    g("s_barrier")
    g("s_barrier")
    for i in range(15):
        if i == 3:
            for m in range(3):
                g(f"buffer_load_dword v{DUM}, v{XV}, {sr(S_WO,4)}, s{S_E+2} offen")
                g(f"s_add_u32 s{S_E+2}, s{S_E+2}, 5120")
            if not opt.red2:
                g(f"s_lshl_b32 s{S_T0}, s{S_B}, 3")
                g(f"buffer_load_dwordx2 {vr(QV,2)}, off, {sr(S_DBG,4)}, s{S_T0} sc1")
        if 5 <= i < 13: wo_whole((i-5) >> 2, 3 + ((i-5) >> 2), (i-5) & 3)
        if i == 14: g("s_waitcnt vmcnt(0)")
        g("s_barrier")
    for part in range(4): wo_whole(2, 2, part)
    g.lab("L_svc_tail")
    for par in range(2):
        for k in range(8):
            for x in a_read(par, k, par*SLOT): g(x)
    g(f"v_add_u32 v{QA}, {OFB + 3*8192}, v{LV}")
    g("s_waitcnt vmcnt(0) lgkmcnt(0)")
    g("s_barrier")
    g("s_barrier")
    g(f"s_cmp_eq_u32 s{S_J}, 1")
    g("s_cbranch_scc1 L_svc_w5")
    g(f"s_add_u32 s{S_WOFF}, s{S_WOFF}, {3*128}")
    wo_issue(3); wo_issue(4)
    g("s_branch L_oproj")
    g.lab("L_svc_w5")
    for c in (3, 4):
        for part in range(2): wo_whole(c, c, part)
    g("s_branch L_oproj")

    ACC, XF, AF, WA4, XA = 0, 80, 120, 152, 156
    def acc(j, t): return ACC + (j*5 + t)*4
    g.lab("L_qproj")
    if opt.hprio: g(f"s_setprio {opt.hprio}")
    g(f"s_mul_i32 s{S_T0}, s{S_B}, 36")
    g(f"s_lshl_b32 s{S_T1}, s{S_WAVE}, 4")
    g(f"s_add_u32 s{S_T0}, s{S_T0}, s{S_T1}")
    g(f"s_lshl_b32 s{S_T0}, s{S_T0}, 13")
    g(f"s_lshl_b32 s{S_T1}, s{S_HKV}, 9")
    g(f"s_add_u32 s{S_T0}, s{S_T0}, s{S_T1}")
    g("v_lshrrev_b32 v1, 2, v0")
    g("v_and_b32 v2, 3, v0")
    g("v_lshlrev_b32 v1, 13, v1")
    g("v_lshl_add_u32 v1, v2, 7, v1")
    g(f"s_cmp_eq_u32 s{S_WAVE}, 3")
    g("s_cbranch_scc1 L_q_nopf")
    if not opt.nocoop:
        g(f"buffer_load_dword v255, v1, {sr(S_WQ,4)}, s{S_T0} offen")
        g(f"s_mul_i32 s{S_T0}, s{S_B}, 92160")
        g(f"s_and_b32 s{S_T1}, s{S_HKV}, 1")
        g(f"s_mul_i32 s{S_T1}, s{S_T1}, 46080")
        g(f"s_add_u32 s{S_T0}, s{S_T0}, s{S_T1}")
        g(f"s_mul_i32 s{S_T1}, s{S_WAVE}, 15360")
        g(f"s_add_u32 s{S_T0}, s{S_T0}, s{S_T1}")
        g(f"s_add_u32 s{S_T1}, s{S_T0}, 7168")
        g("v_lshlrev_b32 v1, 7, v0")
        g(f"buffer_load_dword v255, v1, {sr(S_X,4)}, s{S_T0} offen")
        g(f"buffer_load_dword v255, v1, {sr(S_X,4)}, s{S_T1} offen")
    g("s_branch L_q_notag")
    g.lab("L_q_nopf")
    if not opt.red2:
        g(f"s_cmp_lg_u32 s{S_HKV}, 0")
        g("s_cbranch_scc1 L_q_notag")
        g(f"s_memrealtime {sr(S_CLK,2)}")
        g(f"s_lshl_b32 s{S_T0}, s{S_B}, 3")
        g("s_waitcnt lgkmcnt(0)")
        g(f"s_or_b32 s{S_T1}, s{S_CLK}, 1")
        g(f"v_mov_b32 v252, s{S_T1}")
        g(f"v_mov_b32 v253, s{S_CLK+1}")
        g("s_mov_b64 exec, 1")
        g(f"buffer_store_dwordx2 v[252:253], off, {sr(S_DBG,4)}, s{S_T0} sc1")
        g("s_mov_b64 exec, -1")
    g.lab("L_q_notag")
    g("v_and_b32 v1, 15, v0")
    g("v_lshrrev_b32 v2, 4, v0")
    g("v_lshrrev_b32 v3, 1, v1")
    g("v_xor_b32 v3, v3, v2")
    g("v_lshlrev_b32 v3, 4, v3")
    g(f"v_lshl_add_u32 v{XA}, v1, 7, v3")
    g(f"v_add_u32 v{XA}, {XG[0]}, v{XA}")
    g(f"v_xor_b32 v{XA+1}, 64, v{XA}")
    g("v_bfe_u32 v3, v0, 2, 2")
    g("v_lshl_add_u32 v4, v2, 3, v3")
    g("v_lshlrev_b32 v4, 9, v4")
    g("v_bfe_u32 v3, v0, 2, 3")
    g(f"s_lshl_b32 s{S_T0}, s{S_WAVE}, 2")
    g(f"v_xor_b32 v3, s{S_T0}, v3")
    g("v_lshl_add_u32 v4, v3, 5, v4")
    g("v_and_b32 v3, 3, v0")
    g(f"v_lshl_add_u32 v{WA4}, v3, 3, v4")
    g(f"v_add_u32 v{WA4}, {WQB}, v{WA4}")
    for j in range(1, 4): g(f"v_xor_b32 v{WA4+j}, {j*32}, v{WA4}")
    g(f"v_mov_b32 v{VLANE}, v0")
    attn_setup(None)
    wo_setup(S_WAVE)
    QW = 160
    g(f"s_and_b32 s{S_T0}, s{S_WAVE}, 1")
    g(f"s_lshl_b32 s{S_T0}, s{S_T0}, 12")
    g(f"s_lshr_b32 s{S_T1}, s{S_WAVE}, 1")
    g(f"s_lshl_b32 s{S_T1}, s{S_T1}, 8")
    g(f"s_add_u32 s{S_T0}, s{S_T0}, s{S_T1}")
    g(f"s_add_u32 s{S_T0}, s{S_T0}, {QB}")
    g(f"v_and_b32 v{QW}, 47, v0")
    g(f"v_lshlrev_b32 v{QW}, 4, v{QW}")
    g(f"v_bfe_u32 v{QW+1}, v0, 4, 1")
    g(f"v_lshl_add_u32 v{QW}, v{QW+1}, 3, v{QW}")
    g(f"v_add_u32 v{QW}, s{S_T0}, v{QW}")
    g(f"s_mov_b32 s{S_SCALE}, {hex(f32bits(1.4426950408889634 * 128 ** -0.5))}")
    g(f"s_mov_b32 s{S_THR}, {hex(f32bits(65536.0))}")
    for r in range(80): g(f"v_mov_b32 v{ACC+r}, 0")
    def q_reads(par):
        out = []
        for j in range(4):
            a = AF + par*16 + j*4
            out.append(f"ds_read_b64_tr_b16 {vr(a,2)}, v{WA4+j} offset:{par*16384}")
            out.append(f"ds_read_b64_tr_b16 {vr(a+2,2)}, v{WA4+j} offset:{par*16384+2048}")
        for t in range(5):
            out.append(f"ds_read_b128 {vr(XF+par*20+t*4,4)}, v{XA+par} offset:{t*2048}")
        return out
    def q_mfmas(par, fill):
        k = 0
        for j in range(4):
            for t in range(5):
                g(f"v_mfma_f32_16x16x32_bf16 {vr(acc(j,t),4)}, {vr(AF+par*16+j*4,4)}, {vr(XF+par*20+t*4,4)}, {vr(acc(j,t),4)}")
                for _ in range(2):
                    if k < len(fill): g(fill[k]); k += 1
        while k < len(fill): g(fill[k]); k += 1
    g(f"s_mov_b32 s{S_I}, 0")
    g("s_barrier")
    stamp(1)
    for s in q_reads(0): g(s)
    g("s_branch L_q_mid")
    g.lab("L_q_top")
    q_mfmas(1, q_reads(0))
    g.lab("L_q_mid")
    g(f"s_mov_b32 s{S_T0}, 10240")
    g(f"s_cmp_eq_u32 s{S_I}, 2")
    g(f"s_cselect_b32 s{S_T0}, {XG[1]-XG[0]-20480}, s{S_T0}")
    g(f"s_cmp_eq_u32 s{S_I}, 5")
    g(f"s_cselect_b32 s{S_T0}, {hex((XG[2]-XG[1]-20480) & 0xffffffff)}, s{S_T0}")
    g("s_waitcnt lgkmcnt(0)")
    g("s_barrier")
    upd = [f"v_xor_b32 v{WA4+j}, {hex(WQB ^ (WQB+32768))}, v{WA4+j}" for j in range(4)] + \
          [f"v_add_u32 v{XA+s}, s{S_T0}, v{XA+s}" for s in range(2)]
    q_mfmas(0, q_reads(1) + upd)
    g(f"s_add_u32 s{S_I}, s{S_I}, 1")
    g(f"s_cmp_lt_u32 s{S_I}, 9")
    g("s_waitcnt lgkmcnt(0)")
    g("s_barrier")
    g("s_cbranch_scc1 L_q_top")
    def q_out(j, t):
        a = acc(j, t)
        return [f"v_mul_f32 v{a+r}, s{S_SCALE}, v{a+r}" for r in range(4)] + \
               [f"v_cvt_pk_bf16_f32 v{a}, v{a}, v{a+1}", f"v_cvt_pk_bf16_f32 v{a+1}, v{a+2}, v{a+3}",
                f"ds_write_b64 v{QW}, {vr(a,2)} offset:{t*8192 + j*1024}"]
    outs = []
    for j in range(4):
        grp = [q_out(j, t) for t in range(5)]
        for x in grp: outs += x[:4]
        for x in grp: outs += x[4:6]
        for x in grp: outs += x[6:]
    q_mfmas(1, ["s_nop 0"]*8 + outs)
    stamp(2)
    g("s_waitcnt vmcnt(0) lgkmcnt(0)")
    g.lab("L_attn")
    g("s_barrier")
    ORDER = "QQQPQPQPQPQPQPPP"
    def hdesc(n, so):
        st = n >> 4; m = n & 15
        k = ORDER[:m].count(ORDER[m])
        if ORDER[m] == "Q":
            return [f"ds_read_b128 {vr(fb(n),4)}, v{KA+k} offset:{so + st*8192}"], mf_qk(n, st, k)
        base = so + 16384 + st*8192 + (k >> 2)*4096
        return [f"ds_read_b64_tr_b16 {vr(fb(n),2)}, v{VA+(k&3)} offset:{base}",
                f"ds_read_b64_tr_b16 {vr(fb(n)+2,2)}, v{VA+(k&3)} offset:{base+2048}"], mf_pv(n, st, k >> 2, k & 3)
    def h_exp(sb, r): return ("v_mov_b32" if opt.noexp else "v_exp_f32") + f" v{TB + (r % 8)}, v{SB+sb*16+r}"
    def h_add(r):
        if r == 1: return f"v_add_f32 v{VTS}, v{TB}, v{TB+1}"
        return f"v_add_f32 v{VTS}, v{VTS}, v{TB+(r%8)}"
    def h_cvt(sb, k): return f"v_cvt_pk_bf16_f32 v{PB+sb*8+k}, v{TB+((2*k)%8)}, v{TB+((2*k+1)%8)}"
    CVT_AT = {1: 0, 3: 1, 5: 2, 9: 3, 10: 4, 11: 5, 13: 6, 15: 7}
    tramp = []
    def h_branch(sb):
        k = len(tramp)
        g(f"s_cbranch_vccnz L_tr{k}")
        g.lab(f"L_bk{k}")
        g(f"v_add_f32 v{VL}, v{VL}, v{VTS}")
        tramp.append(sb)
    def h_gap(sb, m, reads):
        if opt.nosm:
            reads(); return
        reads()
        if m <= 13: g(h_exp(sb, m + 2))
        if m == 14: g(h_exp(sb ^ 1, 0))
        if m <= 14 and not opt.noadd: g(h_add(m + 1))
        if m in CVT_AT: g(h_cvt(sb, CVT_AT[m]))
        if m == 14: g(f"v_cmp_lt_f32 vcc, s{S_THR}, v{VTS}")
        if m == 15:
            h_branch(sb)
            g(h_exp(sb ^ 1, 1))
    def plain_softmax(sb, first=0):
        for r in range(first, 2): g(h_exp(sb, r))
        for m in range(15):
            if m <= 13: g(h_exp(sb, m + 2))
            else: g("s_nop 0")
            g(h_add(m + 1))
            if (m + 1) & 1: g(h_cvt(sb, (m + 1) >> 1))
    WAITS = {4: {0: 1, 2: 4, 5: 8, 9: 12, 13: 16, 17: 20, 21: 24, 25: 27},
             3: {0: 0, 1: 2, 3: 5, 6: 8, 9: 11, 12: 14, 15: 17, 18: 20, 21: 23, 24: 27},
             2: {0: 0, **{n: n + 1 for n in range(1, 28, 2)}}}[opt.wgrp]
    POST = [[0, 1], [2, 3], [4, 5], [6]]
    SO = {0: 0, 1: SLOT, 2: 0}
    UPD = {1: 2*SLOT, 2: (-2*SLOT) & 0xffffffff}
    lq = LQ()
    for s in range(8):
        lq.issue(s, [f"ds_read_b128 {vr(QF+4*s,4)}, v{QA} offset:{s*1024}"] + rd_k(s, 0, s))
    for r in range(16): g(f"v_mov_b32 v{O+r}, 0")
    for s in range(8):
        lq.need(s)
        g(mf_qk(s, 0, s, czero=True))
        if s >= 1: lq.issue(8+s-1, rd_k(8+s-1, 1, s-1))
        for r in range(5):
            if s < 7: g(f"v_mov_b32 v{O+16+5*s+r}, 0")
    lq.issue(15, rd_k(15, 1, 7))
    g("s_barrier")
    stamp(3)
    for r in range(51, 64): g(f"v_mov_b32 v{O+r}, 0")
    rowmax(0, VM, VT0)
    for r in range(16): g(f"v_sub_f32 v{NEGM+r}, 0, v{VM}")
    for r in range(16): g(f"v_sub_f32 v{SB+r}, v{SB+r}, v{VM}")
    g(sm_exp(0, 0))
    for s in range(8):
        lq.need(8+s)
        g(mf_qk(8+s, 1, s))
        for n in (2*s, 2*s+1):
            for x in sm_gap(0, n): g(x)
    g(f"v_mov_b32 v{VL}, v{VTS}")
    g(f"s_mov_b32 s{S_I}, 0")
    g("s_barrier")
    lq.clear()
    for f in range(7): lq.issue(f, hdesc(f, SO[1])[0])
    g(h_exp(1, 0)); g(h_exp(1, 1))
    g("s_branch L_mid")
    g.raw(".p2align 3")
    g.lab("L_top")
    for it in range(3):
        slot = (it + 1) % 3
        so = SO[slot]
        lq = LQ()
        for n in range(28, 32):
            g(hdesc(n, 0)[1])
            h_gap(0, n - 16, lambda: [lq.issue(f, hdesc(f, so)[0]) for f in POST[n - 28]])
        if it == 0: g.lab("L_mid")
        upd = []
        if slot in UPD:
            upd = [f"v_add_u32 v{KA+k}, {hex(UPD[slot])}, v{KA+k}" for k in range(8)] + \
                  [f"v_add_u32 v{VA+d}, {hex(UPD[slot])}, v{VA+d}" for d in range(4)]
        def rds(n):
            if n + 7 < 32: lq.issue(n + 7, hdesc(n + 7, so)[0])
            if n + 1 in WAITS: lq.need(WAITS[n + 1])
            if n == 27: g("s_waitcnt lgkmcnt(0)")
        lq.need(WAITS[0])
        for n in range(28):
            if opt.pad: g(f"s_nop {opt.pad-1}")
            g(hdesc(n, so)[1])
            h_gap(1 if n < 16 else 0, n & 15, lambda: rds(n))
            if upd:
                if n in (17, 19, 21): g(upd.pop(0))
                if n in (25, 26, 27):
                    for _ in range(3): g(upd.pop(0))
            if stamps and n == 20:
                g(f"s_cmp_eq_u32 s{S_I}, {opt.hit}")
                g(f"s_cbranch_scc0 L_hs{it}")
                g(f"s_memrealtime {sr(S_STAMP+2*(11+it),2)}")
                g.lab(f"L_hs{it}")
            if it == 2 and n == 25:
                g(f"s_add_u32 s{S_I}, s{S_I}, 1")
                g(f"s_cmp_lt_u32 s{S_I}, 5")
        g("s_barrier")
    g("s_cbranch_scc1 L_top")
    stamp(4)
    lq = LQ()
    def edesc(e):
        st = e >> 3; idx = e & 7
        if st: idx = (idx & 1)*4 + (idx >> 1)
        base = SO[1] + 16384 + st*8192 + (idx >> 2)*4096
        return [f"ds_read_b64_tr_b16 {vr(fb(e),2)}, v{VA+(idx&3)} offset:{base}",
                f"ds_read_b64_tr_b16 {vr(fb(e)+2,2)}, v{VA+(idx&3)} offset:{base+2048}"], mf_pv(e, st, idx >> 2, idx & 3)
    for n in range(28, 32):
        g(hdesc(n, 0)[1])
        h_gap(0, n - 16, lambda: [lq.issue(f, edesc(f)[0]) for f in POST[n - 28]])
    for e in range(8):
        lq.need(e)
        g(edesc(e)[1])
        lq.issue(e + 7, edesc(e + 7)[0])
        if e < 6:
            for kk in range([0,3,6,9,12,14][e], [3,6,9,12,14,16][e]):
                lq.issue(100 + kk, a_read(kk >> 3, kk & 7, (kk >> 3)*SLOT))
        for m in (2*e, 2*e+1):
            if m <= 13: g(h_exp(1, m + 2))
            if m <= 14: g(h_add(m + 1))
            if m <= 14 and (m + 1) & 1: g(h_cvt(1, (m + 1) >> 1))
    g(f"v_cmp_lt_f32 vcc, s{S_THR}, v{VTS}")
    lq.need(115)
    g("s_barrier")
    h_branch(2)
    g(f"v_mov_b32 v{VT0}, v{VL}")
    g(f"s_lshl_b32 s{S_T0}, s{S_WAVE}, 13")
    def norm(kap):
        b = O + kap*8
        d = SB + 16 + kap*4 if kap < 4 else TB + (kap-4)*4
        return [f"v_mul_f32 v{b+r}, v{b+r}, v{VL}" for r in range(8)] + \
               [f"v_cvt_pk_bf16_f32 v{d+r}, v{b+2*r}, v{b+2*r+1}" for r in range(4)]
    def owrite(kap):
        return f"ds_write_b128 v{VT0}, {vr(SB + 16 + kap*4 if kap < 4 else TB + (kap-4)*4,4)} offset:{OFB + kap*1024}"
    fill = [f"v_permlane32_swap_b32 v{VL}, v{VT0}", "s_nop 1", f"v_add_f32 v{VL}, v{VL}, v{VT0}",
            f"v_rcp_f32 v{VL}, v{VL}", f"v_add_u32 v{VT0}, s{S_T0}, v{LV}"]
    for e in range(8, 16):
        lq.need(e)
        g(edesc(e)[1])
        if e + 7 < 16: lq.issue(e + 7, edesc(e + 7)[0])
        if e == 9: fill += ["s_nop 4"]
        if e == 10: fill += ["s_nop 4"]
        if e == 11:
            for kap in range(8): fill += norm(kap)
        for _ in range(6):
            if fill: g(fill.pop(0))
    n0 = len(fill)
    while fill:
        g(fill.pop(0))
        if len(fill) == 36:
            for kap in range(4): g(owrite(kap))
    for kap in range(4, 8): g(owrite(kap))
    g(f"v_add_u32 v{QA}, {OFB + 3*8192}, v{LV}")
    if opt.hit == 9: stamp(11)
    g(f"s_cmp_eq_u32 s{S_WAVE}, 4")
    g("s_cbranch_scc1 L_oproj")

    SV = LV
    LN = VLANE
    def o_base():
        g(f"s_and_b32 s{S_T3}, s{S_WAVE}, 3")
        g(f"s_mul_i32 s{S_SOFF}, s{S_B}, {96*16*1024}")
        g(f"s_lshl_b32 s{S_T0}, s{S_HKV}, 10")
        g(f"s_add_u32 s{S_SOFF}, s{S_SOFF}, s{S_T0}")
        g(f"s_lshl_b32 s{S_T0}, s{S_T3}, 14")
        g(f"s_add_u32 s{S_SOFF}, s{S_SOFF}, s{S_T0}")
    stf = opt.stflag
    def pk(dst, src):
        return [f"v_cvt_pk_bf16_f32 v{dst}, v{src}, v{src+1}", f"v_cvt_pk_bf16_f32 v{dst+1}, v{src+2}, v{src+3}"]
    def out_ops(nq, c):
        oa = OA + (c & 1)*12
        p = PK + (c & 1)*4
        if nq == 2: p = PK + c*4
        ops = pk(p, oa) + pk(p+2, oa+4)
        for cc in ([c] if nq == 3 or not opt.defer else {4: [0, 1, 2], 5: [3, 4, 5]}.get(c, [c] if c > 5 else [])):
            if nq == 2: p = PK + cc*4
            ops.append(f"buffer_store_dwordx4 {vr(p,4)}, v{SV}, {sr(S_WS,4)}, s{S_SOFF} offen{stf}")
            ops.append(f"s_add_u32 s{S_SOFF}, s{S_SOFF}, {4*16384}")
        if nq == 3:
            ops += pk(PK + 8 + 2*(c & 1), oa+8)
            if (c & 1) or c == 8:
                ops.append(f"buffer_store_dwordx4 {vr(PK+8,4)}, v{SV}, {sr(S_WS,4)}, s{S_M0} offen{stf}")
                ops.append(f"s_add_u32 s{S_M0}, s{S_M0}, {4*16384}")
        return ops
    CSLOT = [3, 4, 2, 3, 4, 0, 1, 2, 3]
    def o_step(nq, c, hi, dma, vq):
        par = c & 1
        oa = OA + par*12
        outs = out_ops(nq, c - 1) if c >= 1 else [f"v_add_u32 v{WA}, {hex((-SLOT) & 0xffffffff)}, v{WA}"]
        rds = []
        if 1 <= c <= 7:
            for k in range(8): rds += a_read(par ^ 1, k)
        lq = LQ()
        def bread(k):
            return [f"ds_read_b128 {vr(BF+(t*8+k)*4,4)}, v{QA if hi else SV} offset:{(0 if hi else OFB) + (t*8+k)*1024}" for t in range(nq)]
        if c == 0:
            for k in range(4): lq.issue(k, bread(k))
        for k in range(8):
            if c == 0: lq.need(k)
            for t in range(nq):
                cc = "0" if k == 0 else vr(oa+t*4,4)
                g(f"v_mfma_f32_16x16x32_bf16 {vr(oa+t*4,4)}, {vr(AB+par*32+k*4,4)}, {vr(BF+(t*8+k)*4,4)}, {cc}")
                if c == 0 and t == 0 and k < 4: lq.issue(k + 4, bread(k + 4))
                if dma and t == 1:
                    nm, grp = dma.pop(0)
                    for x in grp: g(x)
                    vq.append(nm)
                if rds:
                    g(rds.pop(0)); g(rds.pop(0))
                    if not rds and c < 7:
                        d = ((CSLOT[c + 2] - CSLOT[c + 1])*SLOT) & 0xffffffff
                        outs.insert(0, f"v_add_u32 v{WA}, {hex(d)}, v{WA}")
                elif k*nq + t >= 8:
                    for _ in range(2):
                        if outs:
                            if outs[0].startswith("buffer_store"): vq.append("st")
                            g(outs.pop(0))
        while outs:
            if outs[0].startswith("buffer_store"): vq.append("st")
            g(outs.pop(0))
    def o_all(nq, hi):
        vq = ["c3"]
        g("s_waitcnt lgkmcnt(0)")
        g("s_barrier")
        stamp(5)
        for c in range(9):
            dma = [(f"c{c+4}", x) for x in wo_list(CSLOT[c+4])] if hi and 1 <= c <= 4 else []
            o_step(nq, c, hi, dma, vq)
            if c in (0, 2, 4, 6):
                if hi:
                    need = f"c{min(c+3, 8)}"
                    last = len(vq) - 1 - vq[::-1].index(need)
                    g(f"s_waitcnt vmcnt({len(vq)-1-last}) lgkmcnt(0)")
                else:
                    g("s_waitcnt lgkmcnt(0)")
                g("s_barrier")
                if c == 0 and opt.hit == 9: stamp(13)
            elif c < 8:
                g("s_waitcnt lgkmcnt(0)")
        g("s_nop 7")
        for x in out_ops(nq, 8): g(x)
    o_base()
    g(f"s_add_u32 s{S_M0}, s{S_SOFF}, {72*16384}")
    g(f"s_add_u32 s{S_SOFF}, s{S_SOFF}, {36*16384}")
    o_all(3, False)
    g("s_branch L_fin")
    g.lab("L_oproj")
    o_base()
    o_all(2, True)
    g.lab("L_fin")
    stamp(6)

    def reduce_body(s_b, s_u, s_ws, s_out, vlane, lab, ldf, t0):
        g(f"s_mul_i32 s{t0}, s{s_b}, 96")
        g(f"s_add_u32 s{t0}, s{t0}, s{s_u}")
        g(f"s_lshl_b32 s{t0}, s{t0}, 14")
        g(f"v_lshlrev_b32 v1, 4, v{vlane}")
        g(f"v_and_b32 v2, 15, v{vlane}")
        g(f"v_lshrrev_b32 v3, 4, v{vlane}")
        for p in range(16):
            if p and p % 4 == 0: g(f"s_add_u32 s{t0}, s{t0}, 4096")
            g(f"buffer_load_dwordx4 {vr(16+4*p,4)}, v1, {sr(s_ws,4)}, s{t0} offen offset:{(p%4)*1024}{ldf}")
        a, b_, c_, d_, e_, f_ = t0+1, t0+2, t0+3, t0+4, t0+5, t0+6
        g(f"s_and_b32 s{a}, s{s_u}, 3")
        g(f"s_lshr_b32 s{b_}, s{s_u}, 2")
        g(f"s_cmp_lt_u32 s{b_}, 9")
        g(f"s_cbranch_scc1 {lab}0")
        g(f"s_cmp_lt_u32 s{b_}, 18")
        g(f"s_cbranch_scc1 {lab}1")
        g(f"s_sub_u32 s{b_}, s{b_}, 18")
        g(f"s_lshl_b32 s{b_}, s{b_}, 8")
        g(f"s_add_u32 s{c_}, s{b_}, {2*16*1152}")
        g(f"s_add_u32 s{d_}, s{c_}, 128")
        g(f"s_cmp_eq_u32 s{b_}, 1024")
        g(f"s_cselect_b32 s{d_}, 0x10000000, s{d_}")
        g(f"s_branch {lab}2")
        g.lab(f"{lab}0")
        g(f"s_lshl_b32 s{b_}, s{b_}, 7")
        g(f"s_add_u32 s{c_}, s{b_}, {3*16*1152}")
        g(f"s_add_u32 s{d_}, s{b_}, {4*16*1152}")
        g(f"s_branch {lab}2")
        g.lab(f"{lab}1")
        g(f"s_sub_u32 s{b_}, s{b_}, 9")
        g(f"s_lshl_b32 s{c_}, s{b_}, 7")
        g(f"s_add_u32 s{d_}, s{c_}, {16*1152}")
        g.lab(f"{lab}2")
        g(f"s_mul_i32 s{e_}, s{s_b}, 92160")
        g(f"s_lshl_b32 s{a}, s{a}, 5")
        g(f"s_add_u32 s{e_}, s{e_}, s{a}")
        g(f"s_add_u32 s{c_}, s{c_}, s{e_}")
        g(f"s_add_u32 s{d_}, s{d_}, s{e_}")
        g("v_mul_u32_u24 v2, 1152, v2")
        g("v_lshl_add_u32 v2, v3, 3, v2")
        g(f"s_mov_b32 s{f_}, 0xffff0000")
        for p in range(16):
            g(f"s_waitcnt vmcnt({15-p})")
            for r in range(4):
                src = 16 + 4*p + r
                if p == 0:
                    g(f"v_lshlrev_b32 v{4+2*r}, 16, v{src}")
                    g(f"v_and_b32 v{5+2*r}, s{f_}, v{src}")
                else:
                    g(f"v_lshlrev_b32 v12, 16, v{src}")
                    g(f"v_and_b32 v13, s{f_}, v{src}")
                    g(f"v_add_f32 v{4+2*r}, v{4+2*r}, v12")
                    g(f"v_add_f32 v{5+2*r}, v{5+2*r}, v13")
        for r in range(4):
            g(f"v_cvt_pk_bf16_f32 v{12+r}, v{4+2*r}, v{5+2*r}")
        g(f"buffer_store_dwordx2 v[12:13], v2, {sr(s_out,4)}, s{c_} offen")
        g(f"buffer_store_dwordx2 v[14:15], v2, {sr(s_out,4)}, s{d_} offen")

    if not opt.red2:
        g("s_waitcnt vmcnt(0)")
        g("s_barrier")
        stamp(7)
        g(f"s_cmp_lg_u32 s{S_WAVE}, 5")
        g("s_cbranch_scc1 L_nopoll")
        g(f"s_lshl_b32 s{S_T0}, s{S_B}, 12")
        g(f"s_add_u32 s{S_T0}, s{S_T0}, {FLAG_OFF}")
        g(f"s_lshl_b32 s{S_T1}, s{S_B}, 3")
        g(f"s_mov_b32 s{S_I}, 0")
        g.lab("L_tagw")
        g(f"v_cmp_ne_u32 vcc, 0, v{QV}")
        g("s_cbranch_vccnz L_tagok")
        g(f"buffer_load_dwordx2 {vr(QV,2)}, off, {sr(S_DBG,4)}, s{S_T1} sc1")
        g(f"s_add_u32 s{S_I}, s{S_I}, 1")
        g(f"s_cmp_gt_u32 s{S_I}, 0x200000")
        g("s_waitcnt vmcnt(0)")
        g("s_cbranch_scc0 L_tagw")
        g.lab("L_tagok")
        g(f"v_mov_b32 v2, v{QV}")
        g(f"v_mov_b32 v3, v{QV+1}")
        g(f"s_lshl_b32 s{S_T1}, s{S_HKV}, 3")
        g(f"v_mov_b32 v1, s{S_T1}")
        g(f"v_lshlrev_b32 v6, 3, v{LN}")
        g("s_mov_b64 exec, 1")
        g(f"buffer_store_dwordx2 v[2:3], v1, {sr(S_WS,4)}, s{S_T0} offen sc1")
        g("s_mov_b64 exec, 0xffff")
        g(f"s_mov_b32 s{S_I}, 0")
        g.lab("L_poll")
        g(f"buffer_load_dwordx2 v[4:5], v6, {sr(S_WS,4)}, s{S_T0} offen sc1")
        g(f"s_add_u32 s{S_I}, s{S_I}, 1")
        g(f"s_cmp_gt_u32 s{S_I}, 0x200000")
        g("s_cbranch_scc1 L_polld")
        g("s_waitcnt vmcnt(0)")
        g("v_cmp_ne_u64 vcc, v[4:5], v[2:3]")
        g("s_cbranch_vccnz L_poll")
        g.lab("L_polld")
        g("s_mov_b64 exec, -1")
        g.lab("L_nopoll")
        g("s_barrier")
        stamp(8)
        g(f"s_lshl_b32 s{S_T0}, s{S_WAVE}, 4")
        g(f"s_add_u32 s{S_T0}, s{S_T0}, s{S_HKV}")
        g(f"s_cmp_ge_u32 s{S_T0}, 92")
        g("s_cbranch_scc1 L_reddone")
        reduce_body(S_B, S_T0, S_WS, S_OUT, LN, "L_r", " sc1", S_E)
        g.lab("L_reddone")
        stamp(9)
    if stamps:
        g("s_waitcnt vmcnt(0)")
        stamp(10 if not opt.red2 else 7)
        g(f"s_cmp_lg_u32 s{S_WAVE}, {opt.stampwave}")
        g("s_cbranch_scc1 L_end")
        g("s_waitcnt lgkmcnt(0)")
        g(f"s_mul_i32 s{S_T0}, s2, {NSTAMP*8}")
        g(f"s_add_u32 s{S_T0}, s{S_T0}, {STAMP_OFF}")
        g("v_mov_b32 v0, 0")
        g("s_mov_b64 exec, 1")
        for i in (list(range(16)) if not opt.red2 else list(range(8)) + [11, 12, 13, 14, 15]):
            g(f"v_mov_b32 v2, s{S_STAMP+2*i}")
            g(f"v_mov_b32 v3, s{S_STAMP+2*i+1}")
            g(f"buffer_store_dwordx2 v[2:3], v0, {sr(S_WS,4)}, s{S_T0} offen offset:{8*i}")
            g("s_nop 1")
    g.lab("L_end")
    g("s_endpgm")

    for sb, tag, light in rare:
        Sc = SB + sb*16; Sn = SB + (sb^1)*16
        g.lab(f"L_rare_{tag}")
        g("s_nop 7"); g("s_nop 7")
        rowmax(sb, VT1, VT0)
        g(f"v_max_f32 v{VT2}, 0, v{VT1}")
        g(f"v_mov_b32 v{VT1}, v{VT2}")
        g(f"v_sub_f32 v{VT2}, 0, v{VT2}")
        g(f"v_exp_f32 v{VT2}, v{VT2}")
        for r in range(16): g(f"v_sub_f32 v{Sc+r}, v{Sc+r}, v{VT1}")
        if not light:
            for r in range(16): g(f"v_sub_f32 v{Sn+r}, v{Sn+r}, v{VT1}")
        for r in range(16): g(f"v_sub_f32 v{NEGM+r}, v{NEGM+r}, v{VT1}")
        for r in range(64): g(f"v_mul_f32 v{O+r}, v{O+r}, v{VT2}")
        g(f"v_mul_f32 v{VL}, v{VL}, v{VT2}")
        g(sm_exp(sb, 0))
        for n in range(16):
            for x in sm_gap(sb, n): g(x)
        g("s_nop 1")
        g(f"s_branch L_back_{tag}")

    for k, sb in enumerate(tramp):
        g.lab(f"L_tr{k}")
        g(f"s_call_b64 s[6:7], L_hrare{sb}")
        g(f"s_branch L_bk{k}")
    for var in range(3):
        sb = min(var, 1)
        Sc = SB + sb*16; Sn = SB + (sb^1)*16
        g.lab(f"L_hrare{var}")
        g("s_nop 7"); g("s_nop 7")
        rowmax(sb, VT1, VT0)
        g(f"v_max_f32 v{VT1}, 0, v{VT1}")
        g(f"v_sub_f32 v{VT2}, 0, v{VT1}")
        g(f"v_exp_f32 v{VT2}, v{VT2}")
        for r in range(16): g(f"v_sub_f32 v{Sc+r}, v{Sc+r}, v{VT1}")
        if var < 2:
            for r in range(16): g(f"v_sub_f32 v{Sn+r}, v{Sn+r}, v{VT1}")
            for r in range(16): g(f"v_sub_f32 v{NEGM+r}, v{NEGM+r}, v{VT1}")
        for r in range(64): g(f"v_mul_f32 v{O+r}, v{O+r}, v{VT2}")
        g(f"v_mul_f32 v{VL}, v{VL}, v{VT2}")
        plain_softmax(sb)
        if var < 2: g(h_exp(sb ^ 1, 0))
        g("s_nop 1")
        g("s_setpc_b64 s[6:7]")

    kernels = [(f"{NAME}_kernel", 256)]
    if opt.red2:
        kernels.append(("reduce_kernel", 80))
        g.raw(".globl reduce_kernel")
        g.raw(".p2align 8")
        g.raw(".type reduce_kernel,@function")
        g.lab("reduce_kernel")
        g("s_cmp_ge_u32 s2, 184")
        g("s_cbranch_scc1 L_rend")
        if stamps: g("s_memrealtime s[40:41]")
        g("s_load_dwordx2 s[4:5], s[0:1], 40")
        g("s_load_dwordx2 s[6:7], s[0:1], 56")
        g("v_lshrrev_b32 v1, 6, v0")
        g("s_lshl_b32 s16, s2, 3")
        g("v_readfirstlane_b32 s17, v1")
        g("v_and_b32 v0, 63, v0")
        g("s_add_u32 s16, s16, s17")
        g("s_mul_hi_u32 s18, s16, 46684428")
        g("s_mul_i32 s19, s18, 92")
        g("s_sub_u32 s19, s16, s19")
        g("s_waitcnt lgkmcnt(0)")
        g("s_mov_b32 s8, s4"); g("s_mov_b32 s9, s5"); g("s_mov_b32 s10, 1474560"); g("s_mov_b32 s11, 0x20000")
        g("s_mov_b32 s12, s6"); g("s_mov_b32 s13, s7"); g("s_mov_b32 s14, 268435456"); g("s_mov_b32 s15, 0x20000")
        reduce_body(18, 19, 12, 8, 0, "L_rr", opt.ldflag, 20)
        if stamps:
            g("s_memrealtime s[42:43]")
            g("s_waitcnt vmcnt(0)")
            g("s_memrealtime s[44:45]")
            g("s_cmp_lg_u32 s17, 0")
            g("s_cbranch_scc1 L_rend")
            g("s_waitcnt lgkmcnt(0)")
            g(f"s_mul_i32 s20, s2, {NSTAMP*8}")
            g(f"s_add_u32 s20, s20, {STAMP_OFF}")
            g("v_mov_b32 v0, 0")
            g("s_mov_b64 exec, 1")
            for i in range(3):
                g(f"v_mov_b32 v2, s{40+2*i}")
                g(f"v_mov_b32 v3, s{41+2*i}")
                g(f"buffer_store_dwordx2 v[2:3], v0, s[12:15], s20 offen offset:{64+8*i}")
                g("s_nop 1")
        g.lab("L_rend")
        g("s_endpgm")

    g.raw('.section .rodata,"a"')
    for (k, nv) in kernels:
        g.raw(".p2align 6")
        g.raw(f".amdhsa_kernel {k}")
        for l in [f".amdhsa_next_free_vgpr {nv}", ".amdhsa_next_free_sgpr 102", f".amdhsa_accum_offset {nv}",
                  ".amdhsa_group_segment_fixed_size 0", ".amdhsa_kernarg_size 64", ".amdhsa_user_sgpr_count 2",
                  ".amdhsa_user_sgpr_kernarg_segment_ptr 1", ".amdhsa_system_sgpr_workgroup_id_x 1"]:
            g.raw("  " + l)
        g.raw(".end_amdhsa_kernel")
    return "\n".join(g.L) + "\n"

if __name__ == "__main__":
    ap = argparse.ArgumentParser()
    ap.add_argument("-o", default="k.s")
    ap.add_argument("--stamps", action="store_true")
    ap.add_argument("--stampwave", type=int, default=0)
    ap.add_argument("--loopstamps", action="store_true")
    ap.add_argument("--nolight", action="store_true")
    ap.add_argument("--nosm", action="store_true")
    ap.add_argument("--nodma", action="store_true")
    ap.add_argument("--kvstart", type=int, default=15)
    ap.add_argument("--wgrp", type=int, default=4)
    ap.add_argument("--lsplit", type=int, default=8)
    ap.add_argument("--hprio", type=int, default=0)
    ap.add_argument("--noadd", action="store_true")
    ap.add_argument("--noexp", action="store_true")
    ap.add_argument("--mprio", type=int, default=1)
    ap.add_argument("--grp", default="AB")
    ap.add_argument("--stagiss", type=int, default=1)
    ap.add_argument("--hit", type=int, default=0)
    ap.add_argument("--oprio", type=int, default=0)
    ap.add_argument("--defer", type=int, default=1)
    ap.add_argument("--sda", type=int, default=2)
    ap.add_argument("--sdb", type=int, default=2)
    ap.add_argument("--vmask", default="0xc00008")
    ap.add_argument("--ntpat", default="11111111")
    ap.add_argument("--resume", type=int, default=0)
    ap.add_argument("--pad", type=int, default=0)
    ap.add_argument("--noopp", action="store_true")
    ap.add_argument("--xs", default="3111111")
    ap.add_argument("--fakekv", action="store_true")
    ap.add_argument("--nont", action="store_true")
    ap.add_argument("--nocoop", action="store_true")
    ap.add_argument("--red2", action="store_true")
    ap.add_argument("--list", action="store_true")
    ap.add_argument("--prio", type=int, default=0)
    ap.add_argument("--stflag", default=None)
    ap.add_argument("--ldflag", default="")
    opt = ap.parse_args()
    if opt.stflag is None: opt.stflag = "" if opt.red2 else "sc1"
    if opt.stflag: opt.stflag = " " + opt.stflag
    if opt.ldflag: opt.ldflag = " " + opt.ldflag
    open(opt.o, "w").write(build(opt))
```

```python
import sys
def mk(base, spec, out, NSTAMP=16, sh=2):
    A, B = spec.split("-")
    fa, a = A[:3], int(A[3:]); fb, b = B[:3], int(B[3:])
    t = open(base).read()
    lines = t.split("\n"); n = 0
    while lines[n].startswith("; @launch"): n += 1
    t = "\n".join(lines[:n] + ["; @launch kernel=spin_kernel grid=(1,1,1) block=(64,1,1) lds=0"] + lines[n:])
    L = [".globl spin_kernel", ".p2align 8", ".type spin_kernel,@function", "spin_kernel:",
         "s_cmp_ge_u32 s2, 1", "s_cbranch_scc1 Ls_end", "s_load_dwordx2 s[4:5], s[0:1], 56", "s_waitcnt lgkmcnt(0)",
         "s_mov_b32 s8, s4", "s_mov_b32 s9, s5", "s_mov_b32 s10, 0x10000000", "s_mov_b32 s11, 0x20000",
         f"v_mul_u32_u24 v1, {NSTAMP*8}, v0", "s_mov_b32 s12, 0x8000000"]
    for k in range(4):
        L += [f"buffer_load_dword v{2+k}, v1, s[8:11], s12 offen offset:{8*a}", f"buffer_load_dword v{6+k}, v1, s[8:11], s12 offen offset:{8*b}", f"s_add_u32 s12, s12, {64*NSTAMP*8}"]
    L += ["s_waitcnt vmcnt(0)", "v_readfirstlane_b32 s20, v2", "s_sub_u32 s20, s20, 100000"]
    L += ["s_nop 3"]
    for k in range(2, 10): L += [f"v_subrev_u32 v{k}, s20, v{k}"]
    for k in range(1, 4):
        L += [f"v_{fa}_u32 v2, v2, v{2+k}", f"v_{fb}_u32 v6, v6, v{6+k}"]
    L += ["s_nop 1", "v_readfirstlane_b32 s13, v2", "v_readfirstlane_b32 s14, v6"]
    for l in range(1, 64):
        L += [f"v_readlane_b32 s15, v2, {l}", f"v_readlane_b32 s16, v6, {l}", "s_nop 1", f"s_{fa}_u32 s13, s13, s15", f"s_{fb}_u32 s14, s14, s16"]
    L += ["s_sub_u32 s7, s14, s13", f"s_lshl_b32 s7, s7, {sh}", "s_min_u32 s7, s7, 60000", "s_memrealtime s[18:19]", "s_waitcnt lgkmcnt(0)",
          "Ls_loop:", "s_memrealtime s[22:23]", "s_waitcnt lgkmcnt(0)", "s_sub_u32 s12, s22, s18", "s_cmp_lt_u32 s12, s7", "s_cbranch_scc1 Ls_loop", "Ls_end:", "s_endpgm"]
    kd = """
.p2align 6
.amdhsa_kernel spin_kernel
  .amdhsa_next_free_vgpr 16
  .amdhsa_next_free_sgpr 32
  .amdhsa_accum_offset 16
  .amdhsa_group_segment_fixed_size 0
  .amdhsa_kernarg_size 64
  .amdhsa_user_sgpr_count 2
  .amdhsa_user_sgpr_kernarg_segment_ptr 1
  .amdhsa_system_sgpr_workgroup_id_x 1
.end_amdhsa_kernel
"""
    i = t.index('.section .rodata')
    open(out, "w").write(t[:i] + "\n".join(L) + "\n" + t[i:] + kd)
base = sys.argv[1]
for sp in sys.argv[2:]: mk(base, sp, base.replace(".s", f"_{sp}.s"))
```

```python
import sys, struct, argparse

NAME = "standalone__gqa_block_cached__near_ridge"
def f32bits(x): return struct.unpack("<I", struct.pack("<f", x))[0]

class G:
    def __init__(self): self.L = []
    def __call__(self, s): self.L.append("    " + s)
    def lab(self, s): self.L.append(s + ":")
    def raw(self, s): self.L.append(s)
    def c(self, s): self.L.append("    ; " + s)
def vr(a, n): return f"v[{a}:{a+n-1}]" if n > 1 else f"v{a}"
def sr(a, n): return f"s[{a}:{a+n-1}]" if n > 1 else f"s{a}"
def u32(x): return hex(x & 0xffffffff)

S_X, S_KV, S_DBG, S_WQ, S_WO, S_WS, S_OUT = 8, 12, 16, 20, 24, 28, 32
S_HKV, S_B, S_WAVE = 36, 37, 38
S_T0, S_T1, S_T2, S_T3 = 39, 40, 41, 42
S_I, S_U, S_FLG = 43, 44, 45
S_THR, S_SCALE, S_ISV, S_J = 46, 47, 48, 49
S_E = 50
S_SOFF, S_M0, S_KVBASE, S_KM0 = 58, 59, 60, 61
S_CLK = 62
S_STAMP = 64
SLOT = 32768
XG = [0, SLOT, 2*SLOT]
WQB = 3*SLOT
QB = 5*SLOT - 40960
OFB = 8192
FLAG_OFF = 0x6000000
STAMP_OFF = 0x8000000
NSTAMP = 16
HEADER = """; Fused GQA block: out = softmax((x@wq) k^T / sqrt(128)) v @ wo, one workgroup per (batch, kv head).
; and summed by the workgroups of the same batch; hand-off flags carry a per-launch tag kept in d_debug.
"""

def build(opt):
    g = G()
    stamps = opt.stamps
    nt = "" if opt.nont else " nt"
    def stamp(i):
        if opt.qstamps and i in (4, 5, 6, 7, 8, 9, 11, 12, 14, 15): return
        if stamps: g(f"s_memrealtime {sr(S_STAMP+2*i,2)}")
    if opt.list: g.raw(f"; @launch kernel={NAME}_kernel grid=(256,1,1) block=(512,1,1) lds=163840")
    else: g.raw(f"; @launch grid=(256,1,1) block=(512,1,1) lds=163840")
    for l in HEADER.strip().split("\n"): g.raw(l)
    g.raw('.amdgcn_target "amdgcn-amd-amdhsa--gfx950"')
    g.raw(".text")
    g.raw(f".globl {NAME}_kernel")
    g.raw(".p2align 8")
    g.raw(f".type {NAME}_kernel,@function")
    g.lab(f"{NAME}_kernel")
    g("s_cmp_ge_u32 s2, 256")
    g("s_cbranch_scc1 L_end")
    g("s_load_dwordx16 s[64:79], s[0:1], 0")
    g("v_lshrrev_b32 v1, 6, v0")
    g(f"s_and_b32 s{S_HKV}, s2, 7")
    g(f"v_readfirstlane_b32 s{S_WAVE}, v1")
    g(f"s_lshl_b32 s{S_HKV}, s{S_HKV}, 1")
    g(f"s_bfe_u32 s{S_T0}, s2, 0x10003")
    g(f"s_add_u32 s{S_HKV}, s{S_HKV}, s{S_T0}")
    g(f"s_lshr_b32 s{S_B}, s2, 4")
    g("v_and_b32 v0, 63, v0")
    g(f"s_lshl_b32 s{S_KVBASE}, s{S_B}, 4")
    g(f"s_add_u32 s{S_KVBASE}, s{S_KVBASE}, s{S_HKV}")
    g(f"s_lshl_b32 s{S_KVBASE}, s{S_KVBASE}, 18")
    if opt.fakekv: g(f"s_mov_b32 s{S_KVBASE}, 0")
    g(f"s_and_b32 s{S_ISV}, s{S_WAVE}, 1")
    g(f"s_and_b32 s{S_J}, s{S_WAVE}, 3")
    for (d, size) in ((S_X, 1474560), (S_KV, 67108864), (S_WQ, 4718592), (S_WO, 4718592), (S_OUT, 1474560), (S_DBG, 256), (S_WS, 268435456)):
        g(f"s_mov_b32 s{d+2}, {size}")
        g(f"s_mov_b32 s{d+3}, 0x20000")
    g(f"s_cmp_eq_u32 s{S_ISV}, 0")
    g("s_waitcnt lgkmcnt(0)")
    g(f"s_cselect_b32 s{S_KV}, s66, s68")
    g(f"s_cselect_b32 s{S_KV+1}, s67, s69")
    for (d, src) in ((S_X, 64), (S_WQ, 70), (S_WO, 72), (S_OUT, 74), (S_DBG, 76), (S_WS, 78)):
        g(f"s_mov_b32 s{d}, s{src}")
        g(f"s_mov_b32 s{d+1}, s{src+1}")
    stamp(0)

    O, QF, NEGM, SB, PB, FB, TB, KA, VA = 0, 64, 96, 112, 144, 160, 192, 208, 216
    VL, VTS, VM, VT0, VT1, VT2, VLANE, QA = 220, 221, 222, 223, 224, 225, 226, 227
    DV, WV, XV, LV, DUM, WA, QV, W2 = 228, 232, 236, 237, 238, 239, 240, 248
    LS, ONES = 200, 204
    AB = 64
    XB = {1: [], 2: [11], 4: [3, 11, 19]}[opt.nb]
    BIAS = 16.0

    class LQ:
        def __init__(self): self.q = []
        def issue(self, f, instrs):
            for s in instrs:
                g(s); self.q.append(f)
        def need(self, f):
            if f in self.q:
                last = len(self.q) - 1 - self.q[::-1].index(f)
                g(f"s_waitcnt lgkmcnt({min(15, len(self.q) - 1 - last)})")
                self.q = self.q[last+1:]
    class VQ:
        def __init__(self): self.q = []
        def add(self, tag, n=1): self.q += [tag]*n
        def wait(self, tag):
            last = len(self.q) - 1 - self.q[::-1].index(tag)
            s = f"s_waitcnt vmcnt({min(63, len(self.q) - 1 - last)})"
            self.q = self.q[last+1:]
            return s
        def need(self, tag):
            if tag in self.q: g(self.wait(tag))
    def cstamp(i, reg, val):
        if stamps and opt.loopstamps:
            n = len(g.L)
            g(f"s_cmp_lg_u32 s{reg}, {val}")
            g(f"s_cbranch_scc1 L_cs{n}")
            g(f"s_memrealtime {sr(S_STAMP+2*i,2)}")
            g.lab(f"L_cs{n}")

    def wo_setup():
        g(f"v_lshrrev_b32 v{VT0}, 3, v{VLANE}")
        g(f"v_bfe_u32 v{VT1}, v{VLANE}, 4, 1")
        g(f"v_bfe_u32 v{VT2}, v{VLANE}, 1, 2")
        g(f"v_xor_b32 v{VT1}, v{VT1}, v{VT2}")
        g(f"v_lshlrev_b32 v{VT1}, 5, v{VT1}")
        g(f"v_and_b32 v{VT2}, 1, v{VLANE}")
        g(f"v_lshl_add_u32 v{VT1}, v{VT2}, 4, v{VT1}")
        g(f"v_mul_u32_u24 v{VT0}, 1152, v{VT0}")
        g(f"v_add_u32 v{WV}, v{VT0}, v{VT1}")
        for a in range(1, 4): g(f"v_add_u32 v{WV+a}, {a*8192}, v{WV}")
        for a in range(4): g(f"v_xor_b32 v{W2+a}, 64, v{WV+a}")
        g(f"s_mul_i32 s{S_E}, s{S_HKV}, {256*1152}")
    def wo_part(chunk, slot, part):
        v = WV if part < 2 else W2
        g(f"s_mov_b32 m0, {slot*SLOT + part*8192}")
        g(f"s_add_u32 s{S_T0}, s{S_E}, {chunk*128 + part*64*1152}")
        for a in range(4): g(f"buffer_load_dwordx4 v{v+a}, {sr(S_WO,4)}, s{S_T0} offen offset:{a*1024} lds")
        g(f"s_add_u32 m0, m0, 4096")
        g(f"s_add_u32 s{S_T0}, s{S_T0}, {4*9216}")
        for a in range(4): g(f"buffer_load_dwordx4 v{v+a}, {sr(S_WO,4)}, s{S_T0} offen offset:{a*1024} lds")
    def attn_setup():
        g(f"s_lshl_b32 s{S_T0}, s{S_WAVE}, 13")
        g(f"s_add_u32 s{S_T0}, s{S_T0}, {QB}")
        g(f"v_lshlrev_b32 v{LV}, 4, v{VLANE}")
        g(f"v_add_u32 v{QA}, s{S_T0}, v{LV}")
        g(f"v_and_b32 v{VT1}, 15, v{VLANE}")
        g(f"v_lshrrev_b32 v{VT2}, 5, v{VLANE}")
        g(f"v_xor_b32 v{VT1}, v{VT1}, v{VT2}")
        g(f"v_lshlrev_b32 v{VT1}, 4, v{VT1}")
        g(f"v_and_b32 v{KA}, 31, v{VLANE}")
        g(f"v_lshl_add_u32 v{KA}, v{KA}, 8, v{VT1}")
        g(f"v_bfe_u32 v{VT1}, v{VLANE}, 2, 2")
        g(f"v_lshl_add_u32 v{WA}, v{VT2}, 2, v{VT1}")
        g(f"v_lshlrev_b32 v{VA}, 8, v{WA}")
        g(f"v_lshl_add_u32 v{VA}, v{VT1}, 6, v{VA}")
        g(f"v_bfe_u32 v{VT1}, v{VLANE}, 4, 1")
        g(f"v_lshl_add_u32 v{VA}, v{VT1}, 5, v{VA}")
        g(f"v_lshl_add_u32 v{WA}, v{VT1}, 7, v{WA}")
        g(f"v_and_b32 v{VT0}, 3, v{VLANE}")
        g(f"v_lshl_add_u32 v{VA}, v{VT0}, 3, v{VA}")
        for s in range(1, 8): g(f"v_xor_b32 v{KA+s}, {s*32}, v{KA}")
        for dt in range(1, 4): g(f"v_xor_b32 v{VA+dt}, {dt*64}, v{VA}")
        g(f"v_lshlrev_b32 v{WA}, 7, v{WA}")
        g(f"v_bfe_u32 v{VT1}, v{VLANE}, 3, 2")
        g(f"v_xor_b32 v{VT1}, s{S_J}, v{VT1}")
        g(f"v_lshl_add_u32 v{WA}, v{VT1}, 5, v{WA}")
        g(f"v_lshl_add_u32 v{WA}, v{VT0}, 3, v{WA}")
        g(f"v_add_u32 v{WA}, {3*SLOT}, v{WA}")
        if opt.msum:
            g(f"v_lshrrev_b32 v{VT0}, 2, v{VLANE}")
            g(f"v_lshrrev_b32 v{VT1}, 4, v{VLANE}")
            g(f"v_xor_b32 v{VT0}, v{VT0}, v{VT1}")
            g(f"v_and_b32 v{VT0}, 1, v{VT0}")
            g(f"v_subrev_u32 v{VT0}, 1, v{VT0}")
            g(f"v_and_b32 v{ONES}, 0x3f803f80, v{VT0}")
            for r in range(1, 4): g(f"v_mov_b32 v{ONES+r}, v{ONES}")
            g(f"s_mov_b32 s{S_THR}, 0x40004000")
        else:
            g(f"s_mov_b32 s{S_THR}, {hex(f32bits(65536.0))}")

    g(f"v_mov_b32 v{VLANE}, v0")
    g(f"s_cmp_lt_u32 s{S_WAVE}, 4")
    g("s_cbranch_scc1 L_qproj")
    T1, T2, T3 = VT0, VT1, VT2
    S_QOFF, S_QM0 = S_E+5, S_E+6
    g(f"v_lshrrev_b32 v{T1}, 5, v0")
    g(f"v_bfe_u32 v{T2}, v0, 1, 4")
    g(f"v_xor_b32 v{T2}, v{T2}, v{T1}")
    g(f"s_lshl_b32 s{S_T0}, s{S_ISV}, 2")
    g(f"v_xor_b32 v{T2}, s{S_T0}, v{T2}")
    g(f"v_lshlrev_b32 v{T2}, 5, v{T2}")
    g(f"v_and_b32 v{T3}, 1, v0")
    g(f"v_lshl_add_u32 v{T2}, v{T3}, 4, v{T2}")
    g(f"v_lshl_add_u32 v{T2}, v{T1}, 13, v{T2}")
    for p in range(4):
        g(f"v_xor_b32 v{QV+p}, {(2*(p & 1)) << 5}, v{T2}")
        if p: g(f"v_add_u32 v{QV+p}, {p*15360}, v{QV+p}")
    g(f"s_lshl_b32 s{S_QOFF}, s{S_HKV}, 9")
    g(f"s_lshl_b32 s{S_T0}, s{S_J}, 16")
    g(f"s_add_u32 s{S_QOFF}, s{S_QOFF}, s{S_T0}")
    g(f"s_lshl_b32 s{S_QM0}, s{S_J}, 12")
    def wq_issue():
        g(f"s_add_u32 m0, s{S_QM0}, {WQB}")
        g(f"s_add_u32 s{S_QM0}, s{S_QM0}, 16384")
        for p in range(4):
            g(f"buffer_load_dwordx4 v{QV+p}, {sr(S_WQ,4)}, s{S_QOFF} offen offset:{p*1024} lds")
        g(f"s_and_b32 s{S_QM0}, s{S_QM0}, 0xffff")
        g(f"s_add_u32 s{S_QOFF}, s{S_QOFF}, 0x40000")
    wq_issue()
    g(f"s_cmp_lt_u32 s{S_WAVE}, 6")
    g("s_cbranch_scc1 L_wq")

    T1, T2, T3 = VT0, VT1, VT2
    g(f"v_lshrrev_b32 v{T1}, 3, v0")
    g(f"s_lshl_b32 s{S_T1}, s{S_ISV}, 3")
    g(f"v_add_u32 v{T1}, s{S_T1}, v{T1}")
    g(f"v_lshrrev_b32 v{T2}, 1, v{T1}")
    g(f"v_and_b32 v{T3}, 7, v0")
    g(f"v_xor_b32 v{T2}, v{T2}, v{T3}")
    g(f"v_lshlrev_b32 v{T2}, 4, v{T2}")
    g(f"v_mul_u32_u24 v{T1}, 1152, v{T1}")
    g(f"v_add_u32 v{XV}, v{T1}, v{T2}")
    g(f"s_mul_i32 s{S_SOFF}, s{S_B}, 92160")
    g(f"s_lshl_b32 s{S_M0}, s{S_ISV}, 10")
    def x_kp(n):
        g(f"s_add_u32 m0, s{S_M0}, {XG[n//3] + (n % 3)*10240}")
        for t in range(5):
            g(f"s_add_u32 s{S_T2}, s{S_SOFF}, {t*18432 + n*128}")
            g(f"buffer_load_dwordx4 v{XV}, {sr(S_X,4)}, s{S_T2} offen lds")
            if t < 4: g("s_add_u32 m0, m0, 2048")
    vq = VQ()
    XS = [int(c) for c in opt.xs]
    assert sum(XS) == 9
    XS += [0]*(20 - len(XS))
    def x_issue(k):
        for n in range(sum(XS[:k]), sum(XS[:k+1])):
            x_kp(n); vq.add(f"x{n}", 5)
    vq.add("c0", 4)
    x_issue(0)
    for c in range(1, opt.wqpre):
        wq_issue(); vq.add(f"c{c}", 4)
    g("v_lshrrev_b32 v1, 4, v0")
    g("v_and_b32 v2, 15, v0")
    g(f"s_lshl_b32 s{S_T0}, s{S_ISV}, 1")
    g(f"v_lshlrev_b32 v3, s{S_T0}, v1")
    g("v_xor_b32 v3, v3, v2")
    g("v_lshlrev_b32 v3, 4, v3")
    g(f"v_lshl_add_u32 v{DV}, v1, 8, v3")
    g(f"s_cmp_eq_u32 s{S_ISV}, 0")
    for a in range(1, 4):
        g(f"s_cselect_b32 s{S_T0}, {a*64}, 0")
        g(f"v_xor_b32 v{DV+a}, s{S_T0}, v{DV}")
    wo_setup()
    g(f"s_mul_i32 s{S_KM0}, s{S_ISV}, {SLOT + 16384}")
    def kv_issue(bar=False, mid=False):
        g(f"s_mov_b32 m0, s{S_KM0}")
        g(f"s_add_u32 s{S_KM0}, s{S_KM0}, {SLOT}")
        for q in range(4):
            if bar and q and (q * opt.nb) % 4 == 0: g("s_barrier")
            if mid and q == 2: g("s_barrier")
            if q:
                g(f"s_add_u32 m0, m0, 4096")
                g(f"s_add_u32 s{S_KVBASE}, s{S_KVBASE}, 4096")
            for a in range(4):
                g(f"buffer_load_dwordx4 v{DV+a}, {sr(S_KV,4)}, s{S_KVBASE} offen offset:{a*1024}{nt} lds")
        g(f"s_add_u32 s{S_KVBASE}, s{S_KVBASE}, 4096")
        g(f"s_cmp_ge_u32 s{S_KM0}, {3*SLOT}")
        g(f"s_cselect_b32 s{S_T0}, {3*SLOT}, 0")
        g(f"s_sub_u32 s{S_KM0}, s{S_KM0}, s{S_T0}")
    if opt.touch:
        g(f"buffer_load_dword v{DUM}, off, {sr(S_KV,4)}, s{S_KVBASE}{nt}"); vq.add("t")
    stamp(11)
    vq.need("x0")
    stamp(12)
    g("s_barrier")
    for k in range(1, 16):
        for c in (range(opt.wqpre, 4) if k == 1 else [k + 2]):
            wq_issue(); vq.add(f"c{c}", 4)
        x_issue(k)
        if k == 15: break
        vq.need(f"c{k}")
        if k % 2 == 0: vq.need(f"x{k//2}")
        g("s_barrier")
    def kv_halves():
        n0 = len(g.L); kv_issue(mid=True); body = g.L[n0:]; del g.L[n0:]
        k = body.index("    s_barrier")
        return [body[:k], body[k+1:]]
    def kv_start(sched, ntile):
        q = VQ(); q.q = list(vq.q)
        hs = []
        for t in range(ntile): hs += [(t, h) for h in kv_halves()]
        for i, n in enumerate(sched):
            for _ in range(n):
                t, h = hs.pop(0)
                g.L.extend(h); q.add(f"k{t}", 8)
            if i < 3: q.need(f"c{15+i}")
            if i < 4: g("s_barrier")
        assert not hs
    g(f"s_cmp_eq_u32 s{S_ISV}, 1")
    g("s_cbranch_scc1 L_kv_v0")
    kv_start([int(c) for c in opt.ksched], 2)
    g("s_branch L_kv_j")
    g.lab("L_kv_v0")
    kv_start([int(c) for c in opt.vsched], 1)
    g.lab("L_kv_j")
    g(f"s_waitcnt vmcnt(16)")
    g("s_barrier")
    kv_issue()
    g("s_barrier")
    CSLOT = [3, 4, 2, 3, 4, 0, 1, 2, 3]
    HR = 16
    g(f"s_cmp_eq_u32 s{S_ISV}, 0")
    g("s_cbranch_scc1 L_kv_w")
    for a in range(4): g(f"v_mov_b32 v{WV+a}, v{W2+a}")
    g.lab("L_kv_w")
    g(f"s_mul_i32 s{S_T0}, s{S_ISV}, {128*1152}")
    g(f"s_add_u32 s{S_E}, s{S_E}, s{S_T0}")
    g(f"s_lshl_b32 s{S_M0}, s{S_ISV}, 14")
    g(f"v_lshlrev_b32 v{LV}, 4, v{VLANE}")
    g(f"v_add_u32 v{LV}, s{S_M0}, v{LV}")
    vq = VQ(); vq.add("s1", 16); vq.add("s2", 16)
    for i in range(13):
        vq.need(f"s{i+1}")
        g("s_barrier")
        if stamps and opt.loopstamps and i % 2 == 0: stamp((1, 2, 3, 4, 11, 12, 13)[i >> 1])
        kv_issue(True); vq.add(f"s{i+3}", 16)
        if i < 12:
            g(f"s_add_u32 s{S_T0}, s{S_E}, {(4 + 2*(i >> 2))*128 + (i & 3)*4*9216}")
            for a in range(4):
                g(f"buffer_load_dwordx4 {vr(HR + (i*4 + a)*4, 4)}, v{WV+a}, {sr(S_WO,4)}, s{S_T0} offen offset:{a*1024}")
            vq.add("w", 4)
    g("s_waitcnt vmcnt(16)")
    g("s_barrier")
    g(f"s_cmp_eq_u32 s{S_ISV}, 1")
    g("s_cbranch_scc1 L_kv_v")
    for _ in XB: g("s_barrier")
    g("s_waitcnt vmcnt(0)")
    g("s_branch L_kv_t")
    g.lab("L_kv_v")
    kv_issue(True)
    g("s_waitcnt vmcnt(16)")
    g.lab("L_kv_t")
    g("s_barrier")
    for _ in XB: g("s_barrier")
    g("s_waitcnt vmcnt(0)")
    g("s_barrier")
    def wo_half(chunk):
        g(f"s_add_u32 m0, s{S_M0}, {CSLOT[chunk]*SLOT}")
        g(f"s_add_u32 s{S_T0}, s{S_E}, {chunk*128}")
        for q in range(4):
            if q:
                g(f"s_add_u32 m0, m0, 4096")
                g(f"s_add_u32 s{S_T0}, s{S_T0}, {4*9216}")
            for a in range(4): g(f"buffer_load_dwordx4 v{WV+a}, {sr(S_WO,4)}, s{S_T0} offen offset:{a*1024} lds")
    def wo_put(chunk, first, p0, n):
        if p0 == 0: g(f"v_add_u32 v{DUM}, {CSLOT[chunk]*SLOT}, v{LV}")
        for p in range(p0, p0 + n): g(f"ds_write_b128 v{DUM}, {vr(HR + (first + p)*4, 4)} offset:{p*1024}")
    g("s_barrier")
    wo_half(3)
    g("s_barrier")
    g(f"v_mov_b32 v{DUM}, 0")
    g(f"ds_read_b64 v[4:5], v{DUM}")
    g("s_waitcnt lgkmcnt(0)")
    g("s_barrier")
    for st_ in range(6):
        wo_put(4 + (st_ & ~1), 16*(st_ >> 1), 8*(st_ & 1), 8)
        if st_ == 0: g("s_waitcnt vmcnt(0)")
        if st_ & 1: g("s_waitcnt lgkmcnt(0)")
        g("s_barrier")
    g("s_branch L_red_hi")

    g.lab("L_wq")
    for _ in range(opt.wqpre - 1): wq_issue()
    attn_setup()
    wo_setup()
    stamp(11)
    g(f"s_waitcnt vmcnt({4*(opt.wqpre-1)})")
    stamp(12)
    g("s_barrier")
    for _ in range(4 - opt.wqpre): wq_issue()
    g(f"s_mov_b32 s{S_I}, 1")
    g.lab("L_wq_loop")
    g("s_waitcnt vmcnt(8)")
    g("s_barrier")
    wq_issue()
    g(f"s_add_u32 s{S_I}, s{S_I}, 1")
    g(f"s_cmp_lt_u32 s{S_I}, 15")
    g("s_cbranch_scc1 L_wq_loop")
    for w in (8, 4, 0):
        g(f"s_waitcnt vmcnt({w})")
        g("s_barrier")
    g("s_barrier")
    g(f"s_cmp_eq_u32 s{S_ISV}, 0")
    g("s_cbranch_scc1 L_attn")
    g(f"s_mul_i32 s{S_T0}, s{S_B}, {16*1152}")
    g(f"s_add_u32 s{S_E+2}, s{S_E}, s{S_T0}")
    g(f"v_and_b32 v{VT0}, 15, v{VLANE}")
    g(f"v_mul_u32_u24 v{XV}, 1152, v{VT0}")
    g(f"v_lshrrev_b32 v{VT0}, 4, v{VLANE}")
    g(f"v_lshlrev_b32 v{VT0}, 3, v{VT0}")
    g(f"v_lshrrev_b32 v{VT0}, v{VT0}, 0x05050302") if False else None
    g(f"v_mov_b32 v{VT1}, 0x05050302")
    g(f"v_lshrrev_b32 v{VT0}, v{VT0}, v{VT1}")
    g(f"v_and_b32 v{VT0}, 15, v{VT0}")
    g(f"v_lshl_add_u32 v{XV}, v{VT0}, 7, v{XV}")
    g(f"s_lshl_b32 s{S_E+1}, s{S_B}, 3")
    g("s_barrier")
    g("s_barrier")
    for i in range(15):
        if 1 <= i < 9: wo_part((i-1) >> 2, 3 + ((i-1) >> 2), (i-1) & 3)
        if 9 <= i < 13:
            part = i - 9
            for hh in range(2):
                g(f"s_add_u32 s{S_T0}, s{S_E}, {7*128 + (part*2 + hh)*4*9216}")
                for a in range(4):
                    g(f"buffer_load_dwordx4 {vr(HR + (part*8 + hh*4 + a)*4, 4)}, v{(WV if part < 2 else W2)+a}, {sr(S_WO,4)}, s{S_T0} offen offset:{a*1024}")
        if i == 14 and opt.touch:
            g(f"s_mul_i32 s{S_T0}, s{S_B}, {96*16*1024}")
            g(f"v_lshlrev_b32 v{VT0}, 16, v{VLANE}")
            g(f"v_min_u32 v{VT0}, {94*16384}, v{VT0}")
            g(f"s_add_u32 s{S_T0}, s{S_T0}, {95*16384}")
            g(f"buffer_load_dword v{DUM}, off, {sr(S_WS,4)}, s{S_T0} sc1")
            g(f"s_sub_u32 s{S_T0}, s{S_T0}, {96*16384}")
            g(f"s_max_i32 s{S_T0}, s{S_T0}, {95*16384}")
            g(f"buffer_load_dword v{DUM}, off, {sr(S_WS,4)}, s{S_T0} sc1")
            g(f"s_mov_b32 s{S_T0}, {FLAG_OFF + 65536}")
            g(f"buffer_load_dword v{DUM}, off, {sr(S_WS,4)}, s{S_T0} sc1")
        if i == 13:
            g(f"buffer_load_dword v{DUM}, v{XV}, {sr(S_WO,4)}, s{S_E+2} offen")
            g(f"buffer_load_dwordx2 v[4:5], off, {sr(S_DBG,4)}, s{S_E+1} sc1")
        if i >= 1:
            for _ in XB: g("s_barrier")
        g("s_barrier")
    for part in range(4):
        if part and (part * opt.nb) % 4 == 0: g("s_barrier")
        wo_part(2, 2, part)
    g("s_waitcnt vmcnt(32)")
    g("s_barrier")
    g(f"s_mov_b32 s{S_I}, 0")
    g.lab("L_tagw")
    g("v_cmp_ne_u32 vcc, 0, v4")
    g("s_cbranch_vccnz L_tagok")
    g(f"buffer_load_dwordx2 v[4:5], off, {sr(S_DBG,4)}, s{S_E+1} sc1")
    g(f"s_add_u32 s{S_I}, s{S_I}, 1")
    g(f"s_cmp_gt_u32 s{S_I}, 0x200000")
    g("s_waitcnt vmcnt(0)")
    g("s_cbranch_scc0 L_tagw")
    g.lab("L_tagok")
    g(f"v_mov_b32 v{DUM}, 0")
    g(f"ds_write_b64 v{DUM}, v[4:5]")
    g("s_barrier")
    g("s_waitcnt vmcnt(0) lgkmcnt(0)")
    for _ in range(3): g("s_barrier")
    for st_ in range(4):
        wo_put(7, 0, 8*st_, 8)
        if st_ == 3: g("s_waitcnt lgkmcnt(0)")
        g("s_barrier")
    g("s_barrier")
    g("s_branch L_red_hi")
    g.lab("L_hi_idle")
    g("s_barrier")
    g(f"v_mov_b32 v{DUM}, 0")
    g(f"ds_read_b64 v[4:5], v{DUM}")
    g("s_waitcnt lgkmcnt(0)")
    g("s_barrier")
    for part in range(4):
        wo_part(5, CSLOT[5], part)
        if part & 1: g("s_barrier")
    g("s_waitcnt vmcnt(0)")
    for _ in range(4): g("s_barrier")
    g.lab("L_red_hi")
    if opt.xbar > 5: g("s_barrier")
    g(f"s_lshl_b32 s{S_U}, s{S_J}, 4")
    g(f"s_add_u32 s{S_U}, s{S_U}, s{S_HKV}")
    g(f"v_mov_b32 v0, v{VLANE}")
    g(f"s_cmp_lt_u32 s{S_U}, 60")
    g("s_cbranch_scc1 L_reduce")
    g("s_branch L_done")

    ACC, XF, AF, WA4, XA, QW = 0, 80, 120, 152, 156, 160
    def acc(j, t): return ACC + (j*5 + t)*4
    g.lab("L_qproj")
    g(f"s_cmp_eq_u32 s{S_WAVE}, 3")
    g("s_cbranch_scc1 L_q_tag")
    if not opt.nocoop:
        g(f"s_mul_i32 s{S_T0}, s{S_B}, 36")
        g(f"s_lshl_b32 s{S_T1}, s{S_WAVE}, 4")
        g(f"s_add_u32 s{S_T0}, s{S_T0}, s{S_T1}")
        g(f"s_lshl_b32 s{S_T0}, s{S_T0}, 13")
        g(f"s_lshl_b32 s{S_T1}, s{S_HKV}, 9")
        g(f"s_add_u32 s{S_T0}, s{S_T0}, s{S_T1}")
        g("v_lshrrev_b32 v1, 2, v0")
        g("v_and_b32 v2, 3, v0")
        g("v_lshlrev_b32 v1, 13, v1")
        g("v_lshl_add_u32 v1, v2, 7, v1")
        g(f"buffer_load_dword v255, v1, {sr(S_WQ,4)}, s{S_T0} offen")
    if opt.xcoop:
        g(f"s_mul_i32 s{S_T0}, s{S_B}, 92160")
        g(f"s_and_b32 s{S_T1}, s{S_HKV}, 1")
        g(f"s_mul_i32 s{S_T1}, s{S_T1}, 46080")
        g(f"s_add_u32 s{S_T0}, s{S_T0}, s{S_T1}")
        g(f"s_mul_i32 s{S_T1}, s{S_WAVE}, 15360")
        g(f"s_add_u32 s{S_T0}, s{S_T0}, s{S_T1}")
        g(f"s_add_u32 s{S_T1}, s{S_T0}, 7168")
        g("v_lshlrev_b32 v1, 7, v0")
        g(f"buffer_load_dword v255, v1, {sr(S_X,4)}, s{S_T0} offen")
        g(f"buffer_load_dword v255, v1, {sr(S_X,4)}, s{S_T1} offen")
    g("s_branch L_q_go")
    g.lab("L_q_tag")
    g(f"s_cmp_lg_u32 s{S_HKV}, 0")
    g("s_cbranch_scc1 L_q_go")
    g(f"s_memrealtime {sr(S_CLK,2)}")
    g(f"s_lshl_b32 s{S_T0}, s{S_B}, 3")
    g("v_lshlrev_b32 v254, 8, v0")
    g("s_waitcnt lgkmcnt(0)")
    g(f"s_or_b32 s{S_T1}, s{S_CLK}, 1")
    g(f"v_mov_b32 v252, s{S_T1}")
    g(f"v_mov_b32 v253, s{S_CLK+1}")
    g(f"buffer_store_dwordx2 v[252:253], v254, {sr(S_DBG,4)}, s{S_T0} offen sc1")
    g.lab("L_q_go")
    g("v_and_b32 v1, 15, v0")
    g("v_lshrrev_b32 v2, 4, v0")
    g("v_lshrrev_b32 v3, 1, v1")
    g("v_xor_b32 v3, v3, v2")
    g("v_lshlrev_b32 v3, 4, v3")
    g(f"v_lshl_add_u32 v{XA}, v1, 7, v3")
    g(f"v_xor_b32 v{XA+1}, 64, v{XA}")
    g("v_bfe_u32 v3, v0, 2, 2")
    g("v_lshl_add_u32 v4, v2, 3, v3")
    g("v_lshlrev_b32 v4, 9, v4")
    g("v_bfe_u32 v3, v0, 2, 3")
    g(f"s_lshl_b32 s{S_T0}, s{S_WAVE}, 2")
    g(f"v_xor_b32 v3, s{S_T0}, v3")
    g("v_lshl_add_u32 v4, v3, 5, v4")
    g("v_and_b32 v3, 3, v0")
    g(f"v_lshl_add_u32 v{WA4}, v3, 3, v4")
    g(f"v_add_u32 v{WA4}, {WQB}, v{WA4}")
    for j in range(1, 4): g(f"v_xor_b32 v{WA4+j}, {j*32}, v{WA4}")
    attn_setup()
    wo_setup()
    g(f"s_lshl_b32 s{S_T0}, s{S_ISV}, 12")
    g(f"s_lshr_b32 s{S_T1}, s{S_WAVE}, 1")
    g(f"s_lshl_b32 s{S_T1}, s{S_T1}, 8")
    g(f"s_add_u32 s{S_T0}, s{S_T0}, s{S_T1}")
    g(f"s_add_u32 s{S_T0}, s{S_T0}, {QB}")
    g(f"v_and_b32 v{QW}, 47, v0")
    g(f"v_lshlrev_b32 v{QW}, 4, v{QW}")
    g(f"v_bfe_u32 v{QW+1}, v0, 4, 1")
    g(f"v_lshl_add_u32 v{QW}, v{QW+1}, 10, v{QW}")
    g(f"v_add_u32 v{QW}, s{S_T0}, v{QW}")
    S_SCALE2 = S_E+2
    g(f"s_mov_b32 s{S_SCALE2}, {hex(f32bits(1.4426950408889634 * 128 ** -0.5))}")
    g(f"s_mov_b32 s{S_SCALE2+1}, s{S_SCALE2}")
    for r in range(80): g(f"v_mov_b32 v{ACC+r}, 0")
    def q_reads(par):
        out = []
        for j in range(4):
            a = AF + par*16 + j*4
            out.append(f"ds_read_b64_tr_b16 {vr(a,2)}, v{WA4+j} offset:{par*16384}")
            out.append(f"ds_read_b64_tr_b16 {vr(a+2,2)}, v{WA4+j} offset:{par*16384+2048}")
        for t in range(5):
            out.append(f"ds_read_b128 {vr(XF+par*20+t*4,4)}, v{XA+par} offset:{t*2048}")
        return out
    def q_mfmas(par, fill, late=(), at=99, order=None):
        k = 0; n = 0
        for j, t in order or [(j, t) for j in range(4) for t in range(5)]:
            if True:
                g(f"v_mfma_f32_16x16x32_bf16 {vr(acc(j,t),4)}, {vr(AF+par*16+j*4,4)}, {vr(XF+par*20+t*4,4)}, {vr(acc(j,t),4)}")
                for _ in range(2):
                    if k < len(fill):
                        g(fill[k]); k += 1
                        if opt.q1ds and fill[k-1].startswith("ds_read"): break
                if n == at:
                    for x in late: g(x)
                n += 1
        while k < len(fill): g(fill[k]); k += 1
    bar = ["s_waitcnt lgkmcnt(0)", "s_barrier"]
    g(f"s_mov_b32 s{S_I}, 0")
    g("s_barrier")
    stamp(1)
    for s in q_reads(0) + bar: g(s)
    g("s_branch L_q_mid")
    g.lab("L_q_top")
    q_mfmas(1, q_reads(0), bar, opt.qbar)
    g.lab("L_q_mid")
    for sl, val in ((4, opt.qa),):
        if opt.qstamps: cstamp(sl, S_I, val)
    upd = [f"s_mov_b32 s{S_T0}, 10240", f"s_bitcmp1_b32 {1<<2 | 1<<5}, s{S_I}", f"s_cselect_b32 s{S_T0}, {SLOT-20480}, s{S_T0}",
           f"s_add_u32 s{S_I}, s{S_I}, 1", f"s_cmp_lt_u32 s{S_I}, 9"] + \
          [f"v_xor_b32 v{WA4+j}, {hex(WQB ^ (WQB+32768))}, v{WA4+j}" for j in range(4)] + \
          [f"v_add_u32 v{XA+s}, s{S_T0}, v{XA+s}" for s in range(2)]
    q_mfmas(0, q_reads(1) + upd, bar, opt.qbar)
    g("s_cbranch_scc1 L_q_top")
    if opt.qstamps: g(f"s_memrealtime {sr(S_STAMP+2*14,2)}")
    outs = []; pend = []
    order = [(j + d, t) for j in (0, 2) for t in range(5) for d in (0, 1)]
    for j in (0, 2):
        for t in range(5):
            a, b = acc(j, t), acc(j + 1, t)
            outs += [f"v_mul_f32 v{a+r}, s{S_SCALE2}, v{a+r}" for r in range(4)]
            outs += pend
            outs += [f"v_mul_f32 v{b+r}, s{S_SCALE2}, v{b+r}" for r in range(4)]
            outs += [f"v_cvt_pk_bf16_f32 v{a}, v{a}, v{a+1}", f"v_cvt_pk_bf16_f32 v{a+1}, v{a+2}, v{a+3}",
                     f"v_cvt_pk_bf16_f32 v{a+2}, v{b}, v{b+1}", f"v_cvt_pk_bf16_f32 v{a+3}, v{b+2}, v{b+3}"]
            pend = [f"v_permlane16_swap_b32 v{a}, v{a+2}", f"v_permlane16_swap_b32 v{a+1}, v{a+3}",
                    f"ds_write_b128 v{QW}, {vr(a,4)} offset:{t*8192 + j*1024}"]
    outs += ["s_nop 1"] + pend
    q_mfmas(1, ["s_nop 0"]*6 + outs, order=order)
    stamp(2)
    g("s_waitcnt vmcnt(0) lgkmcnt(0)")

    g.lab("L_attn")
    g("s_barrier")
    def fb(f): return FB + (f % 8)*4
    def rd_k(f, st, s, so=0): return [f"ds_read_b128 {vr(fb(f),4)}, v{KA+s} offset:{so + st*8192}"]
    def rd_v(f, st, ks, dt, so=0):
        base = so + 16384 + st*8192 + ks*4096
        return [f"ds_read_b64_tr_b16 {vr(fb(f),2)}, v{VA+dt} offset:{base}",
                f"ds_read_b64_tr_b16 {vr(fb(f)+2,2)}, v{VA+dt} offset:{base+2048}"]
    def mf_qk(f, sb, s, czero=False):
        c = ("0" if czero else vr(NEGM,16)) if s == 0 else vr(SB+sb*16,16)
        return f"v_mfma_f32_32x32x16_bf16 {vr(SB+sb*16,16)}, {vr(fb(f),4)}, {vr(QF+4*s,4)}, {c}"
    def mf_pv(f, pb, ks, dt):
        return f"v_mfma_f32_32x32x16_bf16 {vr(O+dt*16,16)}, {vr(fb(f),4)}, {vr(PB+pb*8+ks*4,4)}, {vr(O+dt*16,16)}"
    def mf_sum(pb, ks): return f"v_mfma_f32_16x16x32_bf16 {vr(LS,4)}, {vr(ONES,4)}, {vr(PB+pb*8+ks*4,4)}, {vr(LS,4)}"
    def a_read(k, wa=WA):
        return [f"ds_read_b64_tr_b16 {vr(AB+k*4,2)}, v{wa} offset:{k*2048}",
                f"ds_read_b64_tr_b16 {vr(AB+k*4+2,2)}, v{wa} offset:{k*2048+1024}"]
    def rowmax(sb, dst, tmp):
        S = SB + sb*16
        g(f"v_max3_f32 v{dst}, v{S}, v{S+1}, v{S+2}")
        for r in range(3, 15, 2): g(f"v_max3_f32 v{dst}, v{dst}, v{S+r}, v{S+r+1}")
        g(f"v_max_f32 v{dst}, v{dst}, v{S+15}")
        g(f"v_mov_b32 v{tmp}, v{dst}")
        g("s_nop 1")
        g(f"v_permlane32_swap_b32 v{dst}, v{tmp}")
        g("s_nop 1")
        g(f"v_max_f32 v{dst}, v{dst}, v{tmp}")
        if opt.msum: g(f"v_add_f32 v{dst}, {hex(f32bits(BIAS))}, v{dst}")
    ORDER = "QQQPQPQPQPQPQPPP"
    def hdesc(n, so):
        st = n >> 4; m = n & 15
        k = ORDER[:m].count(ORDER[m])
        if ORDER[m] == "Q": return rd_k(n, st, k, so), mf_qk(n, st, k)
        return rd_v(n, st, k >> 2, k & 3, so), mf_pv(n, st, k >> 2, k & 3)
    def h_exp(sb, r): return f"v_exp_f32 v{TB + (r % 8)}, v{SB+sb*16+r}"
    def h_add(r):
        if r == 1: return f"v_add_f32 v{VTS}, v{TB}, v{TB+1}"
        return f"v_add_f32 v{VTS}, v{VTS}, v{TB+(r%8)}"
    def h_cvt(sb, k): return f"v_cvt_pk_bf16_f32 v{PB+sb*8+k}, v{TB+((2*k)%8)}, v{TB+((2*k+1)%8)}"
    def h_or(sb, i):
        P = PB + sb*8
        if i == 0: return f"v_or3_b32 v{VTS}, v{P}, v{P+1}, v{P+2}"
        if i < 3: return f"v_or3_b32 v{VTS}, v{VTS}, v{P+2*i+1}, v{P+2*i+2}"
        return f"v_bitop3_b32 v{VTS}, v{VTS}, v{P+7}, s{S_THR} bitop3:0xa8"
    def h_cmp(): return f"v_cmp_ne_u32 vcc, 0, v{VTS}" if opt.msum else f"v_cmp_lt_f32 vcc, s{S_THR}, v{VTS}"
    tramp = []
    def h_branch(var):
        k = len(tramp)
        g(f"s_cbranch_vccnz L_tr{k}")
        g.lab(f"L_bk{k}")
        if not opt.msum: g(f"v_add_f32 v{VL}, v{VL}, v{VTS}")
        tramp.append(var)
    CVT_AT = {1: 0, 3: 1, 5: 2, 9: 3, 10: 4, 11: 5, 13: 6, 15: 7}
    def h_gap(sb, m, reads):
        reads()
        if m <= 13: g(h_exp(sb, m + 2))
        if m == 14: g(h_exp(sb ^ 1, 0))
        if opt.msum:
            if m % 2 == 0: g(h_cvt(sb, m >> 1))
            if m in (5, 9, 13): g(h_or(sb, (m - 5) >> 2))
            if m == 14: g(h_or(sb, 3)); g(h_cmp())
            if m in (3, 11): g(mf_sum(sb ^ 1, m >> 3))
        else:
            if m <= 14: g(h_add(m + 1))
            if m in CVT_AT: g(h_cvt(sb, CVT_AT[m]))
            if m == 14: g(h_cmp())
        if m == 15:
            h_branch(sb)
            g(h_exp(sb ^ 1, 1))
    def sm_step(sb, m):
        out = [h_exp(sb, m + 2)] if m <= 13 else ["s_nop 0"]
        if not opt.msum: out.append(h_add(m + 1))
        if m % 2 == 0: out.append(h_cvt(sb, m >> 1))
        return out
    WAITS = {4: {0: 1, 2: 4, 5: 8, 9: 12, 13: 16, 17: 20, 21: 24, 25: 27},
             2: {0: 0, **{n: n + 1 for n in range(1, 28, 2)}}}[opt.wgrp]
    POST = [[0, 1], [2, 3], [4, 5], [6]]
    SO = {0: 0, 1: SLOT, 2: 0}
    UPD = {1: 2*SLOT, 2: -2*SLOT}
    lq = LQ()
    for s in range(8):
        lq.issue(s, [f"ds_read_b128 {vr(QF+4*s,4)}, v{QA} offset:{s*1024}"] + rd_k(s, 0, s))
    for r in range(16): g(f"v_mov_b32 v{O+r}, 0")
    for s in range(8):
        lq.need(s)
        g(mf_qk(s, 0, s, czero=True))
        if s >= 1: lq.issue(8+s-1, rd_k(8+s-1, 1, s-1))
        for r in range(5):
            if s < 7: g(f"v_mov_b32 v{O+16+5*s+r}, 0")
    lq.issue(15, rd_k(15, 1, 7))
    g("s_barrier")
    stamp(3)
    for r in range(51, 64): g(f"v_mov_b32 v{O+r}, 0")
    if opt.msum:
        for r in range(4): g(f"v_mov_b32 v{LS+r}, 0")
    rowmax(0, VM, VT0)
    for r in range(16): g(f"v_sub_f32 v{NEGM+r}, 0, v{VM}")
    for r in range(16): g(f"v_sub_f32 v{SB+r}, v{SB+r}, v{VM}")
    g(h_exp(0, 0)); g(h_exp(0, 1))
    for s in range(8):
        lq.need(8+s)
        g(mf_qk(8+s, 1, s))
        for m in (2*s, 2*s+1):
            if m <= 14:
                for x in sm_step(0, m): g(x)
    if not opt.msum: g(f"v_mov_b32 v{VL}, v{VTS}")
    g(f"s_mov_b32 s{S_I}, 0")
    g("s_barrier")
    lq = LQ()
    for f in range(7): lq.issue(f, hdesc(f, SO[1])[0])
    g(h_exp(1, 0)); g(h_exp(1, 1))
    g("s_branch L_mid")
    g.raw(".p2align 3")
    g.lab("L_top")
    for it in range(3):
        slot = (it + 1) % 3
        so = SO[slot]
        lq = LQ()
        for n in range(28, 32):
            g(hdesc(n, 0)[1])
            h_gap(0, n - 16, lambda: [lq.issue(f, hdesc(f, so)[0]) for f in POST[n - 28]])
        if it == 0: g.lab("L_mid")
        upd = []
        if slot in UPD:
            upd = [f"v_add_u32 v{KA+k}, {u32(UPD[slot])}, v{KA+k}" for k in range(8)] + \
                  [f"v_add_u32 v{VA+d}, {u32(UPD[slot])}, v{VA+d}" for d in range(4)]
        def rds(n):
            if n + 7 < 32: lq.issue(n + 7, hdesc(n + 7, so)[0])
            if n + 1 in WAITS: lq.need(WAITS[n + 1])
            if n == 27: g("s_waitcnt lgkmcnt(0)")
            if opt.msum and n == 14: g("s_nop 0")
        lq.need(WAITS[0])
        for n in range(28):
            if opt.pad: g(f"s_nop {opt.pad-1}")
            g(hdesc(n, so)[1])
            h_gap(1 if n < 16 else 0, n & 15, lambda: rds(n))
            if upd:
                if n in (17, 19, 21): g(upd.pop(0))
                if n in (25, 26, 27):
                    for _ in range(3): g(upd.pop(0))
            if n in XB: g("s_barrier")
            if it == 2 and n == 25:
                g(f"s_add_u32 s{S_I}, s{S_I}, 1")
                g(f"s_cmp_lt_u32 s{S_I}, 5")
        g("s_barrier")
    g("s_cbranch_scc1 L_top")
    stamp(4)
    lq = LQ()
    def edesc(e):
        st = e >> 3; idx = e & 7
        if st: idx = (idx & 1)*4 + (idx >> 1)
        return rd_v(e, st, idx >> 2, idx & 3, SO[1]), mf_pv(e, st, idx >> 2, idx & 3)
    for n in range(28, 32):
        g(hdesc(n, 0)[1])
        h_gap(0, n - 16, lambda: [lq.issue(f, edesc(f)[0]) for f in POST[n - 28]])
    for e in range(8):
        lq.need(e)
        g(edesc(e)[1])
        lq.issue(e + 7, edesc(e + 7)[0])
        if e < 4:
            for kk in (2*e, 2*e+1): lq.issue(100 + kk, a_read(kk))
        if e == 6:
            lq.need(107)
            g("s_barrier")
        for m in (2*e, 2*e+1):
            if m <= 14:
                for x in sm_step(1, m): g(x)
        if opt.msum and e in (1, 5): g(mf_sum(0, e >> 2))
    if opt.msum:
        for i in range(4): g(h_or(1, i))
    g(h_cmp())
    h_branch(1)
    g(f"s_lshl_b32 s{S_T0}, s{S_WAVE}, 13")
    def pkreg(kap): return SB + kap*4
    def norm(kap):
        b = O + kap*8
        return [f"v_mul_f32 v{b+r}, v{b+r}, v{VL}" for r in range(8)] + \
               [f"v_cvt_pk_bf16_f32 v{pkreg(kap)+r}, v{b+2*r}, v{b+2*r+1}" for r in range(4)]
    def owrite(kap): return f"ds_write_b128 v{VT0}, {vr(pkreg(kap),4)} offset:{OFB + kap*1024}"
    if opt.msum:
        g("s_nop 0")
        g(mf_sum(1, 0)); g(mf_sum(1, 1))
        fill = [f"v_add_u32 v{VT0}, s{S_T0}, v{LV}"]
    else:
        g(f"v_mov_b32 v{VT0}, v{VL}")
        fill = [f"v_permlane32_swap_b32 v{VL}, v{VT0}", "s_nop 1", f"v_add_f32 v{VL}, v{VL}, v{VT0}",
                f"v_rcp_f32 v{VL}, v{VL}", f"v_add_u32 v{VT0}, s{S_T0}, v{LV}"]
    for e in range(8, 16):
        lq.need(e)
        g(edesc(e)[1])
        if e + 7 < 16: lq.issue(e + 7, edesc(e + 7)[0])
        if e == 9: fill += ["s_nop 4"]
        if e == 10: fill += ([f"v_rcp_f32 v{VL}, v{LS}", "s_nop 3"] if opt.msum else ["s_nop 4"])
        if e == 11:
            for kap in range(8): fill += norm(kap)[:4] + ([owrite(kap-1)] if kap else []) + norm(kap)[4:]
            fill += [owrite(7)]
        for _ in range(6):
            if fill:
                x = fill.pop(0)
                if x.startswith("ds_"): lq.issue("w", [x])
                else: g(x)
    while fill: g(fill.pop(0))
    g(f"s_cmp_eq_u32 s{S_WAVE}, 4")
    g("s_waitcnt lgkmcnt(0)")
    g("s_cbranch_scc1 L_hi_idle")

    OA, PK, WA2, LV2, TAG, FV, LN2, BF = 0, 40, 52, 53, 54, 56, 57, 96
    g(f"v_add_u32 v{WA2}, {SLOT}, v{WA}")
    g(f"v_mov_b32 v{LV2}, v{LV}")
    g(f"v_mov_b32 v{LN2}, v{VLANE}")
    g(f"v_lshlrev_b32 v{FV}, 28, v{VLANE}")
    g(f"v_lshl_or_b32 v{FV}, v{VLANE}, 24, v{FV}")
    g(f"v_and_b32 v{FV}, 0xf0000000, v{FV}")
    g(f"v_mov_b32 v{LN2+1}, 0")
    g(f"s_mul_i32 s{S_SOFF}, s{S_B}, {96*16*1024}")
    if opt.rot:
        g(f"s_lshl_b32 s{S_T0}, s{S_J}, 2")
        g(f"s_add_u32 s{S_T0}, s{S_T0}, s{S_HKV}")
        g(f"s_lshl_b32 s{S_T1}, s{S_B}, 1")
        g(f"s_add_u32 s{S_T0}, s{S_T0}, s{S_T1}")
        g(f"s_and_b32 s{S_T0}, s{S_T0}, 15")
        g(f"s_lshl_b32 s{S_T0}, s{S_T0}, 10")
    else:
        g(f"s_lshl_b32 s{S_T0}, s{S_HKV}, 10")
    g(f"s_add_u32 s{S_SOFF}, s{S_SOFF}, s{S_T0}")
    g(f"s_lshl_b32 s{S_T0}, s{S_J}, 14")
    g(f"s_add_u32 s{S_SOFF}, s{S_SOFF}, s{S_T0}")
    g(f"s_mul_i32 s{S_FLG}, s{S_B}, {20*128}")
    g(f"s_lshl_b32 s{S_T0}, s{S_J}, 7")
    g(f"s_add_u32 s{S_FLG}, s{S_FLG}, s{S_T0}")
    g(f"s_lshl_b32 s{S_T0}, s{S_HKV}, 3")
    g(f"s_add_u32 s{S_FLG}, s{S_FLG}, s{S_T0}")
    g(f"s_add_u32 s{S_FLG}, s{S_FLG}, {FLAG_OFF}")
    g("s_barrier")
    stamp(5)
    vq = VQ()
    def pk(dst, src):
        return [f"v_cvt_pk_bf16_f32 v{dst}, v{src}, v{src+1}", f"v_cvt_pk_bf16_f32 v{dst+1}, v{src+2}, v{src+3}"]
    def st(p): return [f"buffer_store_dwordx4 {vr(p,4)}, v{LV2}, {sr(S_WS,4)}, s{S_SOFF} offen{opt.stf}", f"s_add_u32 s{S_SOFF}, s{S_SOFF}, {4*16384}"]
    def out_ops(c):
        oa = OA + (c & 1)*20
        ops = pk(PK, oa) + pk(PK+2, oa+4) + st(PK) + pk(PK+4, oa+12) + pk(PK+6, oa+16) + st(PK+4) + pk(PK + 8 + 2*(c & 1), oa+8)
        if (c & 1) or c == 8: ops += st(PK+8)
        return [(c >> 1, x) for x in ops]
    def emit(op):
        p, x = op
        if x == "flag":
            g(vq.wait(f"p{p}"))
            g(f"buffer_store_dwordx2 {vr(TAG,2)}, v{FV}, {sr(S_WS,4)}, s{S_FLG} offen offset:{p*512} sc1")
            vq.add("f")
            return
        if x.startswith("buffer_store"):
            vq.add(f"p{p}")
            if opt.fakeg and p < 4:
                g(f"s_and_b32 s{S_T0}, s{S_HKV}, {opt.fakeg-1}")
                g(f"s_cmp_eq_u32 s{S_T0}, {p % opt.fakeg}")
                g(f"s_cselect_b32 s{S_T0}, s{S_SOFF}, 0x20000000")
                x = x.replace(f"s{S_SOFF} offen", f"s{S_T0} offen")
        g(x)
    lq = LQ()
    def bread(k): return [f"ds_read_b128 {vr(BF+(t*8+k)*4,4)}, v{LV2} offset:{OFB + (t*8+k)*1024}" for t in range(5)]
    FLAG_AT = {int(a): int(b) for a, b in (x.split(":") for x in opt.flagat.split(",") if x)}
    for c in range(9):
        oa = OA + (c & 1)*20
        outs = out_ops(c - 1) if c >= 1 else []
        if opt.oexp & 1: outs = [o for o in outs if not o[1].startswith("v_cvt")]
        if opt.oexp & 2 and c < 8:
            for o in outs:
                if o[1].startswith("buffer_store"): vq.add(f"p{o[0]}")
            outs = [o for o in outs if o[1].startswith("v_cvt")]
        if c in FLAG_AT: outs = [(FLAG_AT[c], "flag")] + outs
        if c == 0:
            lq.issue("tag", [f"ds_read_b64 {vr(TAG,2)}, v{LN2+1}"])
            for k in range(2): lq.issue(("b", k), bread(k))
        for k in range(8):
            if c == 0: lq.need(("b", k))
            elif k % opt.owait == 0: lq.need(("a", c, k + opt.owait - 1))
            for t in range(5):
                cc = "0" if k == 0 else vr(oa+t*4,4)
                g(f"v_mfma_f32_16x16x32_bf16 {vr(oa+t*4,4)}, {vr(AB+k*4,4)}, {vr(BF+(t*8+k)*4,4)}, {cc}")
                ra, rb = opt.ords // 10, opt.ords % 10
                if k >= 1 and c < 8 and t in (ra, rb):
                    rr = a_read(k - 1, WA2)
                    lq.issue(("a", c + 1, k - 1), rr if ra == rb else rr[:1] if t == ra else rr[1:])
                if k == 0 and c >= 1 and t in (ra, rb) and opt.olast:
                    rr = a_read(7, WA2)
                    lq.issue(("a", c, 7), rr if ra == rb else rr[:1] if t == ra else rr[1:])
                    if t == rb and c < 8: g(f"v_add_u32 v{WA2}, {u32((CSLOT[c+1] - CSLOT[c])*SLOT)}, v{WA2}")
                if c == 0 and k < 6:
                    lq.issue(("b", k + 2), bread(k + 2)[t:t+1])
                elif t not in (ra, rb) and k >= 2 and outs: emit(outs.pop(0))
                if t == 4 and k == 0 and 1 <= c <= 7:
                    if c <= 3:
                        g("s_waitcnt lgkmcnt(0)"); lq.q = []
                    g("s_barrier")
        if c < 8 and not opt.olast:
            lq.issue(("a", c + 1, 7), a_read(7, WA2))
            if c < 7: g(f"v_add_u32 v{WA2}, {u32((CSLOT[c+2] - CSLOT[c+1])*SLOT)}, v{WA2}")
        while outs: emit(outs.pop(0))
        if c == opt.xbar and c > 5: g("s_barrier")
        if c in (0, 2, 4, 5, 6): stamp({0: 11, 2: 12, 4: 13, 5: 14, 6: 15}[c])
    g("s_nop 7")
    for op in out_ops(8): emit(op)
    stamp(6)
    for p in range(5):
        if p not in FLAG_AT.values(): emit((p, "flag"))
    stamp(7)
    g(f"s_lshl_b32 s{S_U}, s{S_J}, 4")
    g(f"s_add_u32 s{S_U}, s{S_U}, s{S_HKV}")
    g(f"s_add_u32 s{S_U}, s{S_U}, 60")
    g(f"v_mov_b32 v0, v{LN2}")
    g(f"v_mov_b32 v4, v{TAG}")
    g(f"v_mov_b32 v5, v{TAG+1}")
    g(f"s_cmp_ge_u32 s{S_U}, 92")
    g("s_cbranch_scc1 L_done")

    g.lab("L_reduce")
    sp, sr_, sa, sb_, sm = S_E, S_E+1, S_E+2, S_E+3, S_E+4
    g(f"s_mul_i32 s{sp}, s{S_U}, 205")
    g(f"s_lshr_b32 s{sp}, s{sp}, 12")
    g(f"s_and_b32 s{S_T3}, s{S_U}, 3")
    g(f"s_mul_i32 s{S_T0}, s{S_B}, 5")
    g(f"s_add_u32 s{S_T0}, s{S_T0}, s{sp}")
    g(f"s_lshl_b32 s{S_T0}, s{S_T0}, 2")
    g(f"s_add_u32 s{S_T0}, s{S_T0}, s{S_T3}")
    g(f"s_lshl_b32 s{S_T0}, s{S_T0}, 7")
    g(f"s_add_u32 s{S_FLG}, s{S_T0}, {FLAG_OFF}")
    g("v_and_b32 v2, 15, v0")
    g("v_lshlrev_b32 v8, 3, v2")
    g(f"buffer_load_dwordx2 v[6:7], v8, {sr(S_WS,4)}, s{S_FLG} offen sc1")
    g(f"s_mul_i32 s{S_T0}, s{sp}, 20")
    g(f"s_sub_u32 s{sr_}, s{S_U}, s{S_T0}")
    g(f"s_lshr_b32 s{sr_}, s{sr_}, 2")
    g(f"s_cmp_ge_u32 s{S_U}, 88")
    g(f"s_cselect_b32 s{sr_}, 4, s{sr_}")
    g(f"s_cselect_b32 s{sm}, 0x10000000, 128") if False else None
    g(f"s_mov_b32 s{sm}, 128")
    g(f"s_cselect_b32 s{sm}, 0x10000000, s{sm}")
    g(f"s_and_b32 s{S_T0}, s{sr_}, 1")
    g(f"s_mul_i32 s{sa}, s{S_T0}, {3*18432}")
    g(f"s_and_b32 s{S_T0}, s{sr_}, 2")
    g(f"s_lshl_b32 s{S_T0}, s{S_T0}, 6")
    g(f"s_add_u32 s{sa}, s{sa}, s{S_T0}")
    g(f"s_cmp_eq_u32 s{sr_}, 4")
    g(f"s_cselect_b32 s{sa}, {2*18432}, s{sa}")
    g(f"s_cselect_b32 s{sm}, s{sm}, 18432")
    g(f"s_lshl_b32 s{S_T0}, s{sp}, 8")
    g(f"s_add_u32 s{sa}, s{sa}, s{S_T0}")
    g(f"s_lshl_b32 s{S_T0}, s{S_T3}, 5")
    g(f"s_add_u32 s{sa}, s{sa}, s{S_T0}")
    g(f"s_mul_i32 s{S_T0}, s{S_B}, 92160")
    g(f"s_add_u32 s{sa}, s{sa}, s{S_T0}")
    g(f"s_add_u32 s{sb_}, s{sa}, s{sm}")
    g(f"s_mul_i32 s{S_SOFF}, s{S_B}, 96")
    g(f"s_add_u32 s{S_SOFF}, s{S_SOFF}, s{S_U}")
    g(f"s_lshl_b32 s{S_SOFF}, s{S_SOFF}, 14")
    g("v_lshlrev_b32 v1, 4, v0")
    g("v_lshrrev_b32 v3, 4, v0")
    g("v_mul_u32_u24 v2, 1152, v2")
    g("v_lshl_add_u32 v2, v3, 3, v2")
    g(f"s_mov_b32 s{sm}, 0xffff0000")
    g(f"s_mov_b32 s{S_I}, 0")
    g.lab("L_poll")
    g("s_waitcnt vmcnt(0)")
    g("v_cmp_ne_u64 vcc, v[6:7], v[4:5]")
    g("s_cbranch_vccz L_ready")
    if opt.psleep: g(f"s_sleep {opt.psleep}")
    g(f"buffer_load_dwordx2 v[6:7], v8, {sr(S_WS,4)}, s{S_FLG} offen sc1")
    g(f"s_add_u32 s{S_I}, s{S_I}, 1")
    g(f"s_cmp_lt_u32 s{S_I}, 0x200000")
    g("s_cbranch_scc1 L_poll")
    g.lab("L_ready")
    stamp(8)
    for p in range(16):
        if p and p % 4 == 0: g(f"s_add_u32 s{S_SOFF}, s{S_SOFF}, 4096")
        if opt.fakeg and p == 16 // opt.fakeg:
            g(f"s_cmp_lt_u32 s{S_U}, 80")
            g(f"s_cselect_b32 s{S_SOFF}, 0x20000000, s{S_SOFF}")
        g(f"buffer_load_dwordx4 {vr(64+4*p,4)}, v1, {sr(S_WS,4)}, s{S_SOFF} offen offset:{(p%4)*1024} sc1")
    for p in range(16):
        g(f"s_waitcnt vmcnt({15-p})")
        for r in range(4):
            src = 64 + 4*p + r
            if p == 0:
                g(f"v_lshlrev_b32 v{16+2*r}, 16, v{src}")
                g(f"v_and_b32 v{17+2*r}, s{sm}, v{src}")
            else:
                g(f"v_lshlrev_b32 v12, 16, v{src}")
                g(f"v_and_b32 v13, s{sm}, v{src}")
                g(f"v_add_f32 v{16+2*r}, v{16+2*r}, v12")
                g(f"v_add_f32 v{17+2*r}, v{17+2*r}, v13")
    for r in range(4): g(f"v_cvt_pk_bf16_f32 v{12+r}, v{16+2*r}, v{17+2*r}")
    g(f"buffer_store_dwordx2 v[12:13], v2, {sr(S_OUT,4)}, s{sa} offen")
    g(f"buffer_store_dwordx2 v[14:15], v2, {sr(S_OUT,4)}, s{sb_} offen")
    stamp(9)
    g.lab("L_done")
    if stamps:
        g("s_waitcnt vmcnt(0)")
        g("s_barrier")
        stamp(10)
        g(f"s_cmp_lg_u32 s{S_WAVE}, {opt.stampwave}")
        g("s_cbranch_scc1 L_end")
        g("s_waitcnt lgkmcnt(0)")
        g(f"s_mul_i32 s{S_T0}, s2, {NSTAMP*8}")
        g(f"s_add_u32 s{S_T0}, s{S_T0}, {STAMP_OFF}")
        g("v_mov_b32 v0, 0")
        g("s_mov_b64 exec, 1")
        for i in range(16):
            g(f"v_mov_b32 v2, s{S_STAMP+2*i}")
            g(f"v_mov_b32 v3, s{S_STAMP+2*i+1}")
            g(f"buffer_store_dwordx2 v[2:3], v0, {sr(S_WS,4)}, s{S_T0} offen offset:{8*i}")
            g("s_nop 1")
    g.lab("L_end")
    g("s_endpgm")

    for k, var in enumerate(tramp):
        g.lab(f"L_tr{k}")
        g(f"s_call_b64 s[6:7], L_hrare{var}")
        g(f"s_branch L_bk{k}")
    for sb in range(2):
        Sc = SB + sb*16; Sn = SB + (sb^1)*16
        g.lab(f"L_hrare{sb}")
        g("s_nop 7"); g("s_nop 7")
        rowmax(sb, VT1, VT0)
        g(f"v_max_f32 v{VT1}, 0, v{VT1}")
        g(f"v_sub_f32 v{VT2}, 0, v{VT1}")
        g(f"v_exp_f32 v{VT2}, v{VT2}")
        for r in range(16): g(f"v_sub_f32 v{Sc+r}, v{Sc+r}, v{VT1}")
        for r in range(16): g(f"v_sub_f32 v{Sn+r}, v{Sn+r}, v{VT1}")
        for r in range(16): g(f"v_sub_f32 v{NEGM+r}, v{NEGM+r}, v{VT1}")
        for r in range(64): g(f"v_mul_f32 v{O+r}, v{O+r}, v{VT2}")
        if opt.msum:
            for r in range(4): g(f"v_mul_f32 v{LS+r}, v{LS+r}, v{VT2}")
        else:
            g(f"v_mul_f32 v{VL}, v{VL}, v{VT2}")
        g(h_exp(sb, 0)); g(h_exp(sb, 1))
        for m in range(15):
            for x in sm_step(sb, m): g(x)
        g(h_exp(sb ^ 1, 0))
        g("s_nop 1")
        g("s_setpc_b64 s[6:7]")

    g.raw('.section .rodata,"a"')
    g.raw(".p2align 6")
    g.raw(f".amdhsa_kernel {NAME}_kernel")
    for l in [".amdhsa_next_free_vgpr 256", ".amdhsa_next_free_sgpr 96", ".amdhsa_accum_offset 256",
              ".amdhsa_group_segment_fixed_size 0", ".amdhsa_kernarg_size 64", ".amdhsa_user_sgpr_count 2",
              ".amdhsa_user_sgpr_kernarg_segment_ptr 1", ".amdhsa_system_sgpr_workgroup_id_x 1"]:
        g.raw("  " + l)
    g.raw(".end_amdhsa_kernel")
    return "\n".join(g.L) + "\n"

if __name__ == "__main__":
    ap = argparse.ArgumentParser()
    ap.add_argument("-o", default="k.s")
    for f in ("stamps", "loopstamps", "fakekv", "nont", "nocoop", "list", "qstamps"): ap.add_argument("--" + f, action="store_true")
    for f, d in (("stampwave", 0), ("kvstart", 15), ("kvgap", 1), ("wgrp", 4), ("nb", 1), ("pad", 0), ("msum", 1), ("xcoop", 0), ("wqpre", 2), ("qbar", 19), ("touch", 0), ("qa", 1), ("ords", 12), ("olast", 0), ("q1ds", 0), ("oexp", 0), ("owait", 1), ("fakeg", 0), ("rot", 0), ("psleep", 8), ("xbar", 0), ("kvlate", 0), ("nowrite", 0), ("pkmul", 1)):
        ap.add_argument("--" + f, type=int, default=d)
    ap.add_argument("--xs", default="333")
    ap.add_argument("--ksched", default="11110")
    ap.add_argument("--vsched", default="00110")
    ap.add_argument("--stf", default=" sc1")
    ap.add_argument("--flagat", default="5:0,7:1")
    opt = ap.parse_args()
    open(opt.o, "w").write(build(opt))
```

```python
import sys, struct, argparse

NAME = "standalone__gqa_block_cached__near_ridge"
def f32bits(x): return struct.unpack("<I", struct.pack("<f", x))[0]

class G:
    def __init__(self): self.L = []
    def __call__(self, s): self.L.append("    " + s)
    def lab(self, s): self.L.append(s + ":")
    def raw(self, s): self.L.append(s)
    def c(self, s): self.L.append("    ; " + s)
def vr(a, n): return f"v[{a}:{a+n-1}]" if n > 1 else f"v{a}"
def sr(a, n): return f"s[{a}:{a+n-1}]" if n > 1 else f"s{a}"
def u32(x): return hex(x & 0xffffffff)

S_X, S_KV, S_DBG, S_WQ, S_WO, S_WS, S_OUT = 8, 12, 16, 20, 24, 28, 32
S_HKV, S_B, S_WAVE = 36, 37, 38
S_T0, S_T1, S_T2, S_T3 = 39, 40, 41, 42
S_I, S_U, S_FLG = 43, 44, 45
S_THR, S_SCALE, S_ISV, S_J = 46, 47, 48, 49
S_E = 50
S_SOFF, S_M0, S_KVBASE, S_KM0 = 58, 59, 60, 61
S_CLK = 62
S_STAMP = 64
SLOT = 32768
XG = [0, SLOT, 2*SLOT]
WQB = 3*SLOT
QB = 5*SLOT - 40960
OFB = 8192
FLAG_OFF = 0x6000000
STAMP_OFF = 0x8000000
NSTAMP = 16
HEADER = """; Fused GQA block: out = softmax((x@wq) k^T / sqrt(128)) v @ wo, one workgroup per (batch, kv head).
; and summed by the workgroups of the same batch; hand-off flags carry a per-launch tag kept in d_debug.
"""

def build(opt):
    g = G()
    stamps = opt.stamps
    nt = "" if opt.nont else " nt"
    def stamp(i):
        if opt.qstamps and i in (4, 5, 6, 7, 8, 9, 11, 12, 14, 15): return
        if stamps: g(f"s_memrealtime {sr(S_STAMP+2*i,2)}")
    if opt.list: g.raw(f"; @launch kernel={NAME}_kernel grid=(256,1,1) block=(512,1,1) lds=163840")
    else: g.raw(f"; @launch grid=(256,1,1) block=(512,1,1) lds=163840")
    for l in HEADER.strip().split("\n"): g.raw(l)
    g.raw('.amdgcn_target "amdgcn-amd-amdhsa--gfx950"')
    g.raw(".text")
    g.raw(f".globl {NAME}_kernel")
    g.raw(".p2align 8")
    g.raw(f".type {NAME}_kernel,@function")
    g.lab(f"{NAME}_kernel")
    g("s_cmp_ge_u32 s2, 256")
    g("s_cbranch_scc1 L_end")
    g("s_load_dwordx16 s[64:79], s[0:1], 0")
    if opt.cpf:
        g("s_getpc_b64 s[4:5]")
        g("v_lshlrev_b32 v2, 6, v0")
        g.lab("L_pc0")
        g(f"v_min_u32 v2, {hex(opt.span)}, v2")
        if opt.cpf & 1: g("global_load_dword v255, v2, s[4:5]")
    g("v_lshrrev_b32 v1, 6, v0")
    g(f"s_and_b32 s{S_HKV}, s2, 7")
    g(f"v_readfirstlane_b32 s{S_WAVE}, v1")
    g(f"s_lshl_b32 s{S_HKV}, s{S_HKV}, 1")
    g(f"s_bfe_u32 s{S_T0}, s2, 0x10003")
    g(f"s_add_u32 s{S_HKV}, s{S_HKV}, s{S_T0}")
    g(f"s_lshr_b32 s{S_B}, s2, 4")
    g("v_and_b32 v0, 63, v0")
    g(f"s_lshl_b32 s{S_KVBASE}, s{S_B}, 4")
    g(f"s_add_u32 s{S_KVBASE}, s{S_KVBASE}, s{S_HKV}")
    g(f"s_lshl_b32 s{S_KVBASE}, s{S_KVBASE}, 18")
    if opt.fakekv: g(f"s_mov_b32 s{S_KVBASE}, 0")
    g(f"s_and_b32 s{S_ISV}, s{S_WAVE}, 1")
    g(f"s_and_b32 s{S_J}, s{S_WAVE}, 3")
    for (d, size) in ((S_X, 1474560), (S_KV, 67108864), (S_WQ, 4718592), (S_WO, 4718592), (S_OUT, 1474560), (S_DBG, 256), (S_WS, 268435456)):
        g(f"s_mov_b32 s{d+2}, {size}")
        g(f"s_mov_b32 s{d+3}, 0x20000")
    g(f"s_cmp_eq_u32 s{S_ISV}, 0")
    g("s_waitcnt lgkmcnt(0)")
    g(f"s_cselect_b32 s{S_KV}, s66, s68")
    g(f"s_cselect_b32 s{S_KV+1}, s67, s69")
    for (d, src) in ((S_X, 64), (S_WQ, 70), (S_WO, 72), (S_OUT, 74), (S_DBG, 76), (S_WS, 78)):
        g(f"s_mov_b32 s{d}, s{src}")
        g(f"s_mov_b32 s{d+1}, s{src+1}")
    stamp(0)

    O, QF, NEGM, SB, PB, FB, TB, KA, VA = 0, 64, 96, 112, 144, 160, 192, 208, 216
    VL, VTS, VM, VT0, VT1, VT2, VLANE, QA = 220, 221, 222, 223, 224, 225, 226, 227
    DV, WV, XV, LV, DUM, WA, QV, W2 = 228, 232, 236, 237, 238, 239, 240, 248
    LS, ONES = 200, 204
    AB = 64
    XB = {1: [], 2: [11], 4: [3, 11, 19]}[opt.nb]
    BIAS = 16.0

    class LQ:
        def __init__(self): self.q = []
        def issue(self, f, instrs):
            for s in instrs:
                g(s); self.q.append(f)
        def need(self, f):
            if f in self.q:
                last = len(self.q) - 1 - self.q[::-1].index(f)
                g(f"s_waitcnt lgkmcnt({min(15, len(self.q) - 1 - last)})")
                self.q = self.q[last+1:]
    class VQ:
        def __init__(self): self.q = []
        def add(self, tag, n=1): self.q += [tag]*n
        def wait(self, tag):
            last = len(self.q) - 1 - self.q[::-1].index(tag)
            s = f"s_waitcnt vmcnt({min(63, len(self.q) - 1 - last)})"
            self.q = self.q[last+1:]
            return s
        def need(self, tag):
            if tag in self.q: g(self.wait(tag))
    def cstamp(i, reg, val):
        if stamps and opt.loopstamps:
            n = len(g.L)
            g(f"s_cmp_lg_u32 s{reg}, {val}")
            g(f"s_cbranch_scc1 L_cs{n}")
            g(f"s_memrealtime {sr(S_STAMP+2*i,2)}")
            g.lab(f"L_cs{n}")

    def wo_setup():
        g(f"v_lshrrev_b32 v{VT0}, 3, v{VLANE}")
        g(f"v_bfe_u32 v{VT1}, v{VLANE}, 4, 1")
        g(f"v_bfe_u32 v{VT2}, v{VLANE}, 1, 2")
        g(f"v_xor_b32 v{VT1}, v{VT1}, v{VT2}")
        g(f"v_lshlrev_b32 v{VT1}, 5, v{VT1}")
        g(f"v_and_b32 v{VT2}, 1, v{VLANE}")
        g(f"v_lshl_add_u32 v{VT1}, v{VT2}, 4, v{VT1}")
        g(f"v_mul_u32_u24 v{VT0}, 1152, v{VT0}")
        g(f"v_add_u32 v{WV}, v{VT0}, v{VT1}")
        for a in range(1, 4): g(f"v_add_u32 v{WV+a}, {a*8192}, v{WV}")
        for a in range(4): g(f"v_xor_b32 v{W2+a}, 64, v{WV+a}")
        g(f"s_mul_i32 s{S_E}, s{S_HKV}, {256*1152}")
    def wo_part(chunk, slot, part):
        v = WV if part < 2 else W2
        g(f"s_mov_b32 m0, {slot*SLOT + part*8192}")
        g(f"s_add_u32 s{S_T0}, s{S_E}, {chunk*128 + part*64*1152}")
        for a in range(4): g(f"buffer_load_dwordx4 v{v+a}, {sr(S_WO,4)}, s{S_T0} offen offset:{a*1024} lds")
        g(f"s_add_u32 m0, m0, 4096")
        g(f"s_add_u32 s{S_T0}, s{S_T0}, {4*9216}")
        for a in range(4): g(f"buffer_load_dwordx4 v{v+a}, {sr(S_WO,4)}, s{S_T0} offen offset:{a*1024} lds")
    def attn_setup():
        g(f"s_lshl_b32 s{S_T0}, s{S_WAVE}, 13")
        g(f"s_add_u32 s{S_T0}, s{S_T0}, {QB}")
        g(f"v_lshlrev_b32 v{LV}, 4, v{VLANE}")
        g(f"v_add_u32 v{QA}, s{S_T0}, v{LV}")
        g(f"v_and_b32 v{VT1}, 15, v{VLANE}")
        g(f"v_lshrrev_b32 v{VT2}, 5, v{VLANE}")
        g(f"v_xor_b32 v{VT1}, v{VT1}, v{VT2}")
        g(f"v_lshlrev_b32 v{VT1}, 4, v{VT1}")
        g(f"v_and_b32 v{KA}, 31, v{VLANE}")
        g(f"v_lshl_add_u32 v{KA}, v{KA}, 8, v{VT1}")
        g(f"v_bfe_u32 v{VT1}, v{VLANE}, 2, 2")
        g(f"v_lshl_add_u32 v{WA}, v{VT2}, 2, v{VT1}")
        g(f"v_lshlrev_b32 v{VA}, 8, v{WA}")
        g(f"v_lshl_add_u32 v{VA}, v{VT1}, 6, v{VA}")
        g(f"v_bfe_u32 v{VT1}, v{VLANE}, 4, 1")
        g(f"v_lshl_add_u32 v{VA}, v{VT1}, 5, v{VA}")
        g(f"v_lshl_add_u32 v{WA}, v{VT1}, 7, v{WA}")
        g(f"v_and_b32 v{VT0}, 3, v{VLANE}")
        g(f"v_lshl_add_u32 v{VA}, v{VT0}, 3, v{VA}")
        for s in range(1, 8): g(f"v_xor_b32 v{KA+s}, {s*32}, v{KA}")
        for dt in range(1, 4): g(f"v_xor_b32 v{VA+dt}, {dt*64}, v{VA}")
        g(f"v_lshlrev_b32 v{WA}, 7, v{WA}")
        g(f"v_bfe_u32 v{VT1}, v{VLANE}, 3, 2")
        g(f"v_xor_b32 v{VT1}, s{S_J}, v{VT1}")
        g(f"v_lshl_add_u32 v{WA}, v{VT1}, 5, v{WA}")
        g(f"v_lshl_add_u32 v{WA}, v{VT0}, 3, v{WA}")
        g(f"v_add_u32 v{WA}, {3*SLOT}, v{WA}")
        if opt.msum:
            g(f"v_lshrrev_b32 v{VT0}, 2, v{VLANE}")
            g(f"v_lshrrev_b32 v{VT1}, 4, v{VLANE}")
            g(f"v_xor_b32 v{VT0}, v{VT0}, v{VT1}")
            g(f"v_and_b32 v{VT0}, 1, v{VT0}")
            g(f"v_subrev_u32 v{VT0}, 1, v{VT0}")
            g(f"v_and_b32 v{ONES}, 0x3f803f80, v{VT0}")
            for r in range(1, 4): g(f"v_mov_b32 v{ONES+r}, v{ONES}")
            g(f"s_mov_b32 s{S_THR}, 0x40004000")
        else:
            g(f"s_mov_b32 s{S_THR}, {hex(f32bits(65536.0))}")

    g(f"v_mov_b32 v{VLANE}, v0")
    g(f"s_cmp_lt_u32 s{S_WAVE}, 4")
    g("s_cbranch_scc1 L_qproj")
    T1, T2, T3 = VT0, VT1, VT2
    S_QOFF, S_QM0 = S_E+5, S_E+6
    g(f"v_lshrrev_b32 v{T1}, 5, v0")
    g(f"v_bfe_u32 v{T2}, v0, 1, 4")
    g(f"v_xor_b32 v{T2}, v{T2}, v{T1}")
    g(f"s_lshl_b32 s{S_T0}, s{S_ISV}, 2")
    g(f"v_xor_b32 v{T2}, s{S_T0}, v{T2}")
    g(f"v_lshlrev_b32 v{T2}, 5, v{T2}")
    g(f"v_and_b32 v{T3}, 1, v0")
    g(f"v_lshl_add_u32 v{T2}, v{T3}, 4, v{T2}")
    g(f"v_lshl_add_u32 v{T2}, v{T1}, 13, v{T2}")
    for p in range(4):
        g(f"v_xor_b32 v{QV+p}, {(2*(p & 1)) << 5}, v{T2}")
        if p: g(f"v_add_u32 v{QV+p}, {p*15360}, v{QV+p}")
    g(f"s_lshl_b32 s{S_QOFF}, s{S_HKV}, 9")
    g(f"s_lshl_b32 s{S_T0}, s{S_J}, 16")
    g(f"s_add_u32 s{S_QOFF}, s{S_QOFF}, s{S_T0}")
    g(f"s_lshl_b32 s{S_QM0}, s{S_J}, 12")
    def wq_issue():
        g(f"s_add_u32 m0, s{S_QM0}, {WQB}")
        g(f"s_add_u32 s{S_QM0}, s{S_QM0}, 16384")
        for p in range(4):
            g(f"buffer_load_dwordx4 v{QV+p}, {sr(S_WQ,4)}, s{S_QOFF} offen offset:{p*1024} lds")
        g(f"s_and_b32 s{S_QM0}, s{S_QM0}, 0xffff")
        g(f"s_add_u32 s{S_QOFF}, s{S_QOFF}, 0x40000")
    wq_issue()
    g(f"s_cmp_lt_u32 s{S_WAVE}, 6")
    g("s_cbranch_scc1 L_wq")

    T1, T2, T3 = VT0, VT1, VT2
    g(f"v_lshrrev_b32 v{T1}, 3, v0")
    g(f"s_lshl_b32 s{S_T1}, s{S_ISV}, 3")
    g(f"v_add_u32 v{T1}, s{S_T1}, v{T1}")
    g(f"v_lshrrev_b32 v{T2}, 1, v{T1}")
    g(f"v_and_b32 v{T3}, 7, v0")
    g(f"v_xor_b32 v{T2}, v{T2}, v{T3}")
    g(f"v_lshlrev_b32 v{T2}, 4, v{T2}")
    g(f"v_mul_u32_u24 v{T1}, 1152, v{T1}")
    g(f"v_add_u32 v{XV}, v{T1}, v{T2}")
    g(f"s_mul_i32 s{S_SOFF}, s{S_B}, 92160")
    g(f"s_lshl_b32 s{S_M0}, s{S_ISV}, 10")
    def x_kp(n):
        g(f"s_add_u32 m0, s{S_M0}, {XG[n//3] + (n % 3)*10240}")
        for t in range(5):
            g(f"s_add_u32 s{S_T2}, s{S_SOFF}, {t*18432 + n*128}")
            g(f"buffer_load_dwordx4 v{XV}, {sr(S_X,4)}, s{S_T2} offen lds")
            if t < 4: g("s_add_u32 m0, m0, 2048")
    vq = VQ()
    XS = [int(c) for c in opt.xs]
    assert sum(XS) == 9
    XS += [0]*(20 - len(XS))
    def x_issue(k):
        for n in range(sum(XS[:k]), sum(XS[:k+1])):
            x_kp(n); vq.add(f"x{n}", 5)
    vq.add("c0", 4)
    x_issue(0)
    for c in range(1, opt.wqpre):
        wq_issue(); vq.add(f"c{c}", 4)
    g("v_lshrrev_b32 v1, 4, v0")
    g("v_and_b32 v2, 15, v0")
    g(f"s_lshl_b32 s{S_T0}, s{S_ISV}, 1")
    g(f"v_lshlrev_b32 v3, s{S_T0}, v1")
    g("v_xor_b32 v3, v3, v2")
    g("v_lshlrev_b32 v3, 4, v3")
    g(f"v_lshl_add_u32 v{DV}, v1, 8, v3")
    g(f"s_cmp_eq_u32 s{S_ISV}, 0")
    for a in range(1, 4):
        g(f"s_cselect_b32 s{S_T0}, {a*64}, 0")
        g(f"v_xor_b32 v{DV+a}, s{S_T0}, v{DV}")
    wo_setup()
    g(f"s_mul_i32 s{S_KM0}, s{S_ISV}, {SLOT + 16384}")
    def kv_issue(bar=False, mid=False):
        g(f"s_mov_b32 m0, s{S_KM0}")
        g(f"s_add_u32 s{S_KM0}, s{S_KM0}, {SLOT}")
        for q in range(4):
            if bar and q and (q * opt.nb) % 4 == 0: g("s_barrier")
            if mid and q == 2: g("s_barrier")
            if q:
                g(f"s_add_u32 m0, m0, 4096")
                g(f"s_add_u32 s{S_KVBASE}, s{S_KVBASE}, 4096")
            for a in range(4):
                if bar and opt.win and a % opt.wstep == 0: g(f"s_waitcnt vmcnt({opt.win - opt.wstep})")
                g(f"buffer_load_dwordx4 v{DV+a}, {sr(S_KV,4)}, s{S_KVBASE} offen offset:{a*1024}{nt} lds")
        g(f"s_add_u32 s{S_KVBASE}, s{S_KVBASE}, 4096")
        g(f"s_cmp_ge_u32 s{S_KM0}, {3*SLOT}")
        g(f"s_cselect_b32 s{S_T0}, {3*SLOT}, 0")
        g(f"s_sub_u32 s{S_KM0}, s{S_KM0}, s{S_T0}")
    if opt.touch:
        g(f"buffer_load_dword v{DUM}, off, {sr(S_KV,4)}, s{S_KVBASE}{nt}"); vq.add("t")
    stamp(11)
    vq.need("x0")
    stamp(12)
    g("s_barrier")
    for k in range(1, 16):
        for c in (range(opt.wqpre, 4) if k == 1 else [k + 2]):
            wq_issue(); vq.add(f"c{c}", 4)
        x_issue(k)
        if k == 15: break
        vq.need(f"c{k}")
        if k % 2 == 0: vq.need(f"x{k//2}")
        g("s_barrier")
    def kv_halves():
        n0 = len(g.L); kv_issue(mid=True); body = g.L[n0:]; del g.L[n0:]
        k = body.index("    s_barrier")
        return [body[:k], body[k+1:]]
    def kv_start(sched, ntile):
        q = VQ(); q.q = list(vq.q)
        hs = []
        for t in range(ntile): hs += [(t, h) for h in kv_halves()]
        for i, n in enumerate(sched):
            for _ in range(n):
                t, h = hs.pop(0)
                g.L.extend(h); q.add(f"k{t}", 8)
            if i < 3: q.need(f"c{15+i}")
            if i < 4: g("s_barrier")
        assert not hs
    g(f"s_cmp_eq_u32 s{S_ISV}, 1")
    g("s_cbranch_scc1 L_kv_v0")
    kv_start([int(c) for c in opt.ksched], 2)
    g("s_branch L_kv_j")
    g.lab("L_kv_v0")
    kv_start([int(c) for c in opt.vsched], 1)
    g.lab("L_kv_j")
    g(f"s_waitcnt vmcnt(16)")
    g("s_barrier")
    g("s_barrier")
    CSLOT = [3, 4, 2, 3, 4, 0, 1, 2, 3]
    HR = 16
    g(f"s_cmp_eq_u32 s{S_ISV}, 0")
    g("s_cbranch_scc1 L_kv_w")
    for a in range(4): g(f"v_mov_b32 v{WV+a}, v{W2+a}")
    g.lab("L_kv_w")
    g(f"s_mul_i32 s{S_T0}, s{S_ISV}, {128*1152}")
    g(f"s_add_u32 s{S_E}, s{S_E}, s{S_T0}")
    g(f"s_lshl_b32 s{S_M0}, s{S_ISV}, 14")
    g(f"v_lshlrev_b32 v{LV}, 4, v{VLANE}")
    g(f"v_add_u32 v{LV}, s{S_M0}, v{LV}")
    assert opt.nb == 1
    vq = VQ(); vq.add("s1", 16)
    wn = [0]
    def win():
        if opt.win: g(f"s_waitcnt vmcnt({opt.win - 1})")
    def kv_quad(stage, q, vq, wo=False):
        if q == 0:
            g(f"s_mov_b32 m0, s{S_KM0}")
            g(f"s_add_u32 s{S_KM0}, s{S_KM0}, {SLOT}")
            g(f"s_cmp_ge_u32 s{S_KM0}, {3*SLOT}")
            g(f"s_cselect_b32 s{S_T0}, {3*SLOT}, 0")
            g(f"s_sub_u32 s{S_KM0}, s{S_KM0}, s{S_T0}")
        else:
            g(f"s_add_u32 m0, m0, 4096")
            if not opt.win: g("s_nop 0")
        for a in range(4):
            win()
            g(f"buffer_load_dwordx4 v{DV+a}, {sr(S_KV,4)}, s{S_KVBASE} offen offset:{a*1024}{nt} lds")
        vq.add(f"s{stage}", 4)
        g(f"s_add_u32 s{S_KVBASE}, s{S_KVBASE}, 4096")
        if wo and wn[0] < 48:
            n = wn[0]; wn[0] += 1
            if n % 4 == 0: g(f"s_add_u32 s{S_T1}, s{S_E}, {(4 + 2*(n >> 4))*128 + ((n >> 2) & 3)*4*9216}")
            g(f"buffer_load_dwordx4 {vr(HR + n*4, 4)}, v{WV+(n&3)}, {sr(S_WO,4)}, s{S_T1} offen offset:{(n&3)*1024}")
            vq.add("w")
    LEAD = opt.lead
    for i in range(14):
        if i:
            for q in range(LEAD, 4): kv_quad(i + 1, q, vq, True)
        for q in range(LEAD): kv_quad(i + 2, q, vq, i > 0)
        vq.need(f"s{i+1}")
        g("s_barrier")
        if stamps and opt.loopstamps and i % 2 == 0: stamp((1, 2, 3, 4, 11, 12, 13)[i >> 1])
    assert wn[0] == 48
    for q in range(LEAD, 4): kv_quad(15, q, vq)
    g(f"s_cmp_eq_u32 s{S_ISV}, 1")
    g("s_cbranch_scc1 L_kv_v")
    g("s_waitcnt vmcnt(0)")
    g("s_barrier")
    g("s_branch L_kv_t")
    g.lab("L_kv_v")
    for q in range(LEAD): kv_quad(16, q, vq)
    vq.need("s15")
    g("s_barrier")
    for q in range(LEAD, 4): kv_quad(16, q, vq)
    g("s_waitcnt vmcnt(0)")
    g.lab("L_kv_t")
    g("s_barrier")
    def wo_half(chunk):
        g(f"s_add_u32 m0, s{S_M0}, {CSLOT[chunk]*SLOT}")
        g(f"s_add_u32 s{S_T0}, s{S_E}, {chunk*128}")
        for q in range(4):
            if q:
                g(f"s_add_u32 m0, m0, 4096")
                g(f"s_add_u32 s{S_T0}, s{S_T0}, {4*9216}")
            for a in range(4): g(f"buffer_load_dwordx4 v{WV+a}, {sr(S_WO,4)}, s{S_T0} offen offset:{a*1024} lds")
    def wo_put(chunk, first, p0, n):
        if p0 == 0: g(f"v_add_u32 v{DUM}, {CSLOT[chunk]*SLOT}, v{LV}")
        for p in range(p0, p0 + n): g(f"ds_write_b128 v{DUM}, {vr(HR + (first + p)*4, 4)} offset:{p*1024}")
    g("s_barrier")
    wo_half(3)
    g("s_barrier")
    g(f"v_mov_b32 v{DUM}, 0")
    g(f"ds_read_b64 v[4:5], v{DUM}")
    g("s_waitcnt lgkmcnt(0)")
    g("s_barrier")
    for st_ in range(6):
        wo_put(4 + (st_ & ~1), 16*(st_ >> 1), 8*(st_ & 1), 8)
        if st_ == 0: g("s_waitcnt vmcnt(0)")
        if st_ & 1: g("s_waitcnt lgkmcnt(0)")
        g("s_barrier")
    g("s_branch L_red_hi")

    g.lab("L_wq")
    if opt.cpf & 2:
        for pg in range(1, 8): g(f"s_load_dword s3, s[4:5], {hex(min(pg*4096, opt.span & ~3))}")
    for _ in range(opt.wqpre - 1): wq_issue()
    attn_setup()
    wo_setup()
    stamp(11)
    g(f"s_waitcnt vmcnt({4*(opt.wqpre-1)})")
    stamp(12)
    g("s_barrier")
    for _ in range(4 - opt.wqpre): wq_issue()
    g(f"s_mov_b32 s{S_I}, 1")
    g.lab("L_wq_loop")
    g("s_waitcnt vmcnt(8)")
    g("s_barrier")
    wq_issue()
    g(f"s_add_u32 s{S_I}, s{S_I}, 1")
    g(f"s_cmp_lt_u32 s{S_I}, 15")
    g("s_cbranch_scc1 L_wq_loop")
    for w in (8, 4, 0):
        g(f"s_waitcnt vmcnt({w})")
        g("s_barrier")
    g("s_barrier")
    g(f"s_cmp_eq_u32 s{S_ISV}, 0")
    g("s_cbranch_scc1 L_attn")
    g(f"s_mul_i32 s{S_T0}, s{S_B}, {16*1152}")
    g(f"s_add_u32 s{S_E+2}, s{S_E}, s{S_T0}")
    g(f"v_and_b32 v{VT0}, 15, v{VLANE}")
    g(f"v_mul_u32_u24 v{XV}, 1152, v{VT0}")
    g(f"v_lshrrev_b32 v{VT0}, 4, v{VLANE}")
    g(f"v_lshlrev_b32 v{VT0}, 3, v{VT0}")
    g(f"v_lshrrev_b32 v{VT0}, v{VT0}, 0x05050302") if False else None
    g(f"v_mov_b32 v{VT1}, 0x05050302")
    g(f"v_lshrrev_b32 v{VT0}, v{VT0}, v{VT1}")
    g(f"v_and_b32 v{VT0}, 15, v{VT0}")
    g(f"v_lshl_add_u32 v{XV}, v{VT0}, 7, v{XV}")
    g(f"s_lshl_b32 s{S_E+1}, s{S_B}, 3")
    g("s_barrier")
    g("s_barrier")
    for i in range(15):
        if 1 <= i < 9: wo_part((i-1) >> 2, 3 + ((i-1) >> 2), (i-1) & 3)
        if 9 <= i < 13:
            part = i - 9
            for hh in range(2):
                g(f"s_add_u32 s{S_T0}, s{S_E}, {7*128 + (part*2 + hh)*4*9216}")
                for a in range(4):
                    g(f"buffer_load_dwordx4 {vr(HR + (part*8 + hh*4 + a)*4, 4)}, v{(WV if part < 2 else W2)+a}, {sr(S_WO,4)}, s{S_T0} offen offset:{a*1024}")
        if i == 14 and opt.touch:
            g(f"s_mul_i32 s{S_T0}, s{S_B}, {96*16*1024}")
            g(f"v_lshlrev_b32 v{VT0}, 16, v{VLANE}")
            g(f"v_min_u32 v{VT0}, {94*16384}, v{VT0}")
            g(f"s_add_u32 s{S_T0}, s{S_T0}, {95*16384}")
            g(f"buffer_load_dword v{DUM}, off, {sr(S_WS,4)}, s{S_T0} sc1")
            g(f"s_sub_u32 s{S_T0}, s{S_T0}, {96*16384}")
            g(f"s_max_i32 s{S_T0}, s{S_T0}, {95*16384}")
            g(f"buffer_load_dword v{DUM}, off, {sr(S_WS,4)}, s{S_T0} sc1")
            g(f"s_mov_b32 s{S_T0}, {FLAG_OFF + 65536}")
            g(f"buffer_load_dword v{DUM}, off, {sr(S_WS,4)}, s{S_T0} sc1")
        if i == 13:
            g(f"buffer_load_dword v{DUM}, v{XV}, {sr(S_WO,4)}, s{S_E+2} offen")
            g(f"buffer_load_dwordx2 v[4:5], off, {sr(S_DBG,4)}, s{S_E+1} sc1")
        if i >= 1:
            for _ in XB: g("s_barrier")
        g("s_barrier")
    for part in range(4):
        if part and (part * opt.nb) % 4 == 0: g("s_barrier")
        wo_part(2, 2, part)
    g("s_waitcnt vmcnt(32)")
    g("s_barrier")
    g(f"s_mov_b32 s{S_I}, 0")
    g.lab("L_tagw")
    g("v_cmp_ne_u32 vcc, 0, v4")
    g("s_cbranch_vccnz L_tagok")
    g(f"buffer_load_dwordx2 v[4:5], off, {sr(S_DBG,4)}, s{S_E+1} sc1")
    g(f"s_add_u32 s{S_I}, s{S_I}, 1")
    g(f"s_cmp_gt_u32 s{S_I}, 0x200000")
    g("s_waitcnt vmcnt(0)")
    g("s_cbranch_scc0 L_tagw")
    g.lab("L_tagok")
    g(f"v_mov_b32 v{DUM}, 0")
    g(f"ds_write_b64 v{DUM}, v[4:5]")
    g("s_barrier")
    g("s_waitcnt vmcnt(0) lgkmcnt(0)")
    for _ in range(3): g("s_barrier")
    for st_ in range(4):
        wo_put(7, 0, 8*st_, 8)
        if st_ == 3: g("s_waitcnt lgkmcnt(0)")
        g("s_barrier")
    g("s_barrier")
    g("s_branch L_red_hi")
    g.lab("L_hi_idle")
    g("s_barrier")
    g(f"v_mov_b32 v{DUM}, 0")
    g(f"ds_read_b64 v[4:5], v{DUM}")
    g("s_waitcnt lgkmcnt(0)")
    g("s_barrier")
    for part in range(4):
        wo_part(5, CSLOT[5], part)
        if part & 1: g("s_barrier")
    g("s_waitcnt vmcnt(0)")
    for _ in range(4): g("s_barrier")
    g.lab("L_red_hi")
    if opt.xbar > 5: g("s_barrier")
    g(f"s_lshl_b32 s{S_U}, s{S_J}, 4")
    g(f"s_add_u32 s{S_U}, s{S_U}, s{S_HKV}")
    g(f"v_mov_b32 v0, v{VLANE}")
    g(f"s_cmp_lt_u32 s{S_U}, 60")
    g("s_cbranch_scc1 L_reduce")
    g("s_branch L_done")

    ACC, XF, AF, WA4, XA, QW = 0, 80, 120, 152, 156, 160
    def acc(j, t): return ACC + (j*5 + t)*4
    g.lab("L_qproj")
    g(f"s_cmp_eq_u32 s{S_WAVE}, 3")
    g("s_cbranch_scc1 L_q_tag")
    if not opt.nocoop:
        g(f"s_mul_i32 s{S_T0}, s{S_B}, 36")
        g(f"s_lshl_b32 s{S_T1}, s{S_WAVE}, 4")
        g(f"s_add_u32 s{S_T0}, s{S_T0}, s{S_T1}")
        g(f"s_lshl_b32 s{S_T0}, s{S_T0}, 13")
        g(f"s_lshl_b32 s{S_T1}, s{S_HKV}, 9")
        g(f"s_add_u32 s{S_T0}, s{S_T0}, s{S_T1}")
        g("v_lshrrev_b32 v1, 2, v0")
        g("v_and_b32 v2, 3, v0")
        g("v_lshlrev_b32 v1, 13, v1")
        g("v_lshl_add_u32 v1, v2, 7, v1")
        g(f"buffer_load_dword v255, v1, {sr(S_WQ,4)}, s{S_T0} offen")
    if opt.xcoop:
        g(f"s_mul_i32 s{S_T0}, s{S_B}, 92160")
        g(f"s_and_b32 s{S_T1}, s{S_HKV}, 1")
        g(f"s_mul_i32 s{S_T1}, s{S_T1}, 46080")
        g(f"s_add_u32 s{S_T0}, s{S_T0}, s{S_T1}")
        g(f"s_mul_i32 s{S_T1}, s{S_WAVE}, 15360")
        g(f"s_add_u32 s{S_T0}, s{S_T0}, s{S_T1}")
        g(f"s_add_u32 s{S_T1}, s{S_T0}, 7168")
        g("v_lshlrev_b32 v1, 7, v0")
        g(f"buffer_load_dword v255, v1, {sr(S_X,4)}, s{S_T0} offen")
        g(f"buffer_load_dword v255, v1, {sr(S_X,4)}, s{S_T1} offen")
    g("s_branch L_q_go")
    g.lab("L_q_tag")
    g(f"s_cmp_lg_u32 s{S_HKV}, 0")
    g("s_cbranch_scc1 L_q_go")
    g(f"s_memrealtime {sr(S_CLK,2)}")
    g(f"s_lshl_b32 s{S_T0}, s{S_B}, 3")
    g("v_lshlrev_b32 v254, 8, v0")
    g("s_waitcnt lgkmcnt(0)")
    g(f"s_or_b32 s{S_T1}, s{S_CLK}, 1")
    g(f"v_mov_b32 v252, s{S_T1}")
    g(f"v_mov_b32 v253, s{S_CLK+1}")
    g(f"buffer_store_dwordx2 v[252:253], v254, {sr(S_DBG,4)}, s{S_T0} offen sc1")
    g.lab("L_q_go")
    g("v_and_b32 v1, 15, v0")
    g("v_lshrrev_b32 v2, 4, v0")
    g("v_lshrrev_b32 v3, 1, v1")
    g("v_xor_b32 v3, v3, v2")
    g("v_lshlrev_b32 v3, 4, v3")
    g(f"v_lshl_add_u32 v{XA}, v1, 7, v3")
    g(f"v_xor_b32 v{XA+1}, 64, v{XA}")
    g("v_bfe_u32 v3, v0, 2, 2")
    g("v_lshl_add_u32 v4, v2, 3, v3")
    g("v_lshlrev_b32 v4, 9, v4")
    g("v_bfe_u32 v3, v0, 2, 3")
    g(f"s_lshl_b32 s{S_T0}, s{S_WAVE}, 2")
    g(f"v_xor_b32 v3, s{S_T0}, v3")
    g("v_lshl_add_u32 v4, v3, 5, v4")
    g("v_and_b32 v3, 3, v0")
    g(f"v_lshl_add_u32 v{WA4}, v3, 3, v4")
    g(f"v_add_u32 v{WA4}, {WQB}, v{WA4}")
    for j in range(1, 4): g(f"v_xor_b32 v{WA4+j}, {j*32}, v{WA4}")
    attn_setup()
    wo_setup()
    g(f"s_lshl_b32 s{S_T0}, s{S_ISV}, 12")
    g(f"s_lshr_b32 s{S_T1}, s{S_WAVE}, 1")
    g(f"s_lshl_b32 s{S_T1}, s{S_T1}, 8")
    g(f"s_add_u32 s{S_T0}, s{S_T0}, s{S_T1}")
    g(f"s_add_u32 s{S_T0}, s{S_T0}, {QB}")
    g(f"v_and_b32 v{QW}, 47, v0")
    g(f"v_lshlrev_b32 v{QW}, 4, v{QW}")
    g(f"v_bfe_u32 v{QW+1}, v0, 4, 1")
    g(f"v_lshl_add_u32 v{QW}, v{QW+1}, 10, v{QW}")
    g(f"v_add_u32 v{QW}, s{S_T0}, v{QW}")
    S_SCALE2 = S_E+2
    g(f"s_mov_b32 s{S_SCALE2}, {hex(f32bits(1.4426950408889634 * 128 ** -0.5))}")
    g(f"s_mov_b32 s{S_SCALE2+1}, s{S_SCALE2}")
    for r in range(80): g(f"v_mov_b32 v{ACC+r}, 0")
    def q_reads(par):
        out = []
        for j in range(4):
            a = AF + par*16 + j*4
            out.append(f"ds_read_b64_tr_b16 {vr(a,2)}, v{WA4+j} offset:{par*16384}")
            out.append(f"ds_read_b64_tr_b16 {vr(a+2,2)}, v{WA4+j} offset:{par*16384+2048}")
        for t in range(5):
            out.append(f"ds_read_b128 {vr(XF+par*20+t*4,4)}, v{XA+par} offset:{t*2048}")
        return out
    def q_mfmas(par, fill, late=(), at=99, order=None):
        k = 0; n = 0
        for j, t in order or [(j, t) for j in range(4) for t in range(5)]:
            if True:
                g(f"v_mfma_f32_16x16x32_bf16 {vr(acc(j,t),4)}, {vr(AF+par*16+j*4,4)}, {vr(XF+par*20+t*4,4)}, {vr(acc(j,t),4)}")
                for _ in range(2):
                    if k < len(fill):
                        g(fill[k]); k += 1
                        if opt.q1ds and fill[k-1].startswith("ds_read"): break
                if n == at:
                    for x in late: g(x)
                n += 1
        while k < len(fill): g(fill[k]); k += 1
    bar = ["s_waitcnt lgkmcnt(0)", "s_barrier"]
    g(f"s_mov_b32 s{S_I}, 0")
    g("s_barrier")
    stamp(1)
    for s in q_reads(0) + bar: g(s)
    g("s_branch L_q_mid")
    g.lab("L_q_top")
    q_mfmas(1, q_reads(0), bar, opt.qbar)
    g.lab("L_q_mid")
    for sl, val in ((4, opt.qa),):
        if opt.qstamps: cstamp(sl, S_I, val)
    upd = [f"s_mov_b32 s{S_T0}, 10240", f"s_bitcmp1_b32 {1<<2 | 1<<5}, s{S_I}", f"s_cselect_b32 s{S_T0}, {SLOT-20480}, s{S_T0}",
           f"s_add_u32 s{S_I}, s{S_I}, 1", f"s_cmp_lt_u32 s{S_I}, 9"] + \
          [f"v_xor_b32 v{WA4+j}, {hex(WQB ^ (WQB+32768))}, v{WA4+j}" for j in range(4)] + \
          [f"v_add_u32 v{XA+s}, s{S_T0}, v{XA+s}" for s in range(2)]
    q_mfmas(0, q_reads(1) + upd, bar, opt.qbar)
    g("s_cbranch_scc1 L_q_top")
    if opt.qstamps: g(f"s_memrealtime {sr(S_STAMP+2*14,2)}")
    outs = []; pend = []
    order = [(j + d, t) for j in (0, 2) for t in range(5) for d in (0, 1)]
    for j in (0, 2):
        for t in range(5):
            a, b = acc(j, t), acc(j + 1, t)
            outs += [f"v_mul_f32 v{a+r}, s{S_SCALE2}, v{a+r}" for r in range(4)]
            outs += pend
            outs += [f"v_mul_f32 v{b+r}, s{S_SCALE2}, v{b+r}" for r in range(4)]
            outs += [f"v_cvt_pk_bf16_f32 v{a}, v{a}, v{a+1}", f"v_cvt_pk_bf16_f32 v{a+1}, v{a+2}, v{a+3}",
                     f"v_cvt_pk_bf16_f32 v{a+2}, v{b}, v{b+1}", f"v_cvt_pk_bf16_f32 v{a+3}, v{b+2}, v{b+3}"]
            pend = [f"v_permlane16_swap_b32 v{a}, v{a+2}", f"v_permlane16_swap_b32 v{a+1}, v{a+3}",
                    f"ds_write_b128 v{QW}, {vr(a,4)} offset:{t*8192 + j*1024}"]
    outs += ["s_nop 1"] + pend
    q_mfmas(1, ["s_nop 0"]*6 + outs, order=order)
    stamp(2)
    g("s_waitcnt vmcnt(0) lgkmcnt(0)")

    g.lab("L_attn")
    g("s_barrier")
    def fb(f): return FB + (f % 8)*4
    def rd_k(f, st, s, so=0): return [f"ds_read_b128 {vr(fb(f),4)}, v{KA+s} offset:{so + st*8192}"]
    def rd_v(f, st, ks, dt, so=0):
        base = so + 16384 + st*8192 + ks*4096
        return [f"ds_read_b64_tr_b16 {vr(fb(f),2)}, v{VA+dt} offset:{base}",
                f"ds_read_b64_tr_b16 {vr(fb(f)+2,2)}, v{VA+dt} offset:{base+2048}"]
    def mf_qk(f, sb, s, czero=False):
        c = ("0" if czero else vr(NEGM,16)) if s == 0 else vr(SB+sb*16,16)
        return f"v_mfma_f32_32x32x16_bf16 {vr(SB+sb*16,16)}, {vr(fb(f),4)}, {vr(QF+4*s,4)}, {c}"
    def mf_pv(f, pb, ks, dt):
        return f"v_mfma_f32_32x32x16_bf16 {vr(O+dt*16,16)}, {vr(fb(f),4)}, {vr(PB+pb*8+ks*4,4)}, {vr(O+dt*16,16)}"
    def mf_sum(pb, ks): return f"v_mfma_f32_16x16x32_bf16 {vr(LS,4)}, {vr(ONES,4)}, {vr(PB+pb*8+ks*4,4)}, {vr(LS,4)}"
    def a_read(k, wa=WA):
        return [f"ds_read_b64_tr_b16 {vr(AB+k*4,2)}, v{wa} offset:{k*2048}",
                f"ds_read_b64_tr_b16 {vr(AB+k*4+2,2)}, v{wa} offset:{k*2048+1024}"]
    def rowmax(sb, dst, tmp):
        S = SB + sb*16
        g(f"v_max3_f32 v{dst}, v{S}, v{S+1}, v{S+2}")
        for r in range(3, 15, 2): g(f"v_max3_f32 v{dst}, v{dst}, v{S+r}, v{S+r+1}")
        g(f"v_max_f32 v{dst}, v{dst}, v{S+15}")
        g(f"v_mov_b32 v{tmp}, v{dst}")
        g("s_nop 1")
        g(f"v_permlane32_swap_b32 v{dst}, v{tmp}")
        g("s_nop 1")
        g(f"v_max_f32 v{dst}, v{dst}, v{tmp}")
        if opt.msum: g(f"v_add_f32 v{dst}, {hex(f32bits(BIAS))}, v{dst}")
    ORDER = "QQQPQPQPQPQPQPPP"
    def hdesc(n, so):
        st = n >> 4; m = n & 15
        k = ORDER[:m].count(ORDER[m])
        if ORDER[m] == "Q": return rd_k(n, st, k, so), mf_qk(n, st, k)
        return rd_v(n, st, k >> 2, k & 3, so), mf_pv(n, st, k >> 2, k & 3)
    def h_exp(sb, r): return f"v_exp_f32 v{TB + (r % 8)}, v{SB+sb*16+r}"
    def h_add(r):
        if r == 1: return f"v_add_f32 v{VTS}, v{TB}, v{TB+1}"
        return f"v_add_f32 v{VTS}, v{VTS}, v{TB+(r%8)}"
    def h_cvt(sb, k): return f"v_cvt_pk_bf16_f32 v{PB+sb*8+k}, v{TB+((2*k)%8)}, v{TB+((2*k+1)%8)}"
    def h_or(sb, i):
        P = PB + sb*8
        if i == 0: return f"v_or3_b32 v{VTS}, v{P}, v{P+1}, v{P+2}"
        if i < 3: return f"v_or3_b32 v{VTS}, v{VTS}, v{P+2*i+1}, v{P+2*i+2}"
        return f"v_bitop3_b32 v{VTS}, v{VTS}, v{P+7}, s{S_THR} bitop3:0xa8"
    def h_cmp(): return f"v_cmp_ne_u32 vcc, 0, v{VTS}" if opt.msum else f"v_cmp_lt_f32 vcc, s{S_THR}, v{VTS}"
    tramp = []
    def h_branch(var):
        k = len(tramp)
        g(f"s_cbranch_vccnz L_tr{k}")
        g.lab(f"L_bk{k}")
        if not opt.msum: g(f"v_add_f32 v{VL}, v{VL}, v{VTS}")
        tramp.append(var)
    CVT_AT = {1: 0, 3: 1, 5: 2, 9: 3, 10: 4, 11: 5, 13: 6, 15: 7}
    def h_gap(sb, m, reads):
        reads()
        if m <= 13: g(h_exp(sb, m + 2))
        if m == 14: g(h_exp(sb ^ 1, 0))
        if opt.msum:
            if m % 2 == 0: g(h_cvt(sb, m >> 1))
            if m in (5, 9, 13): g(h_or(sb, (m - 5) >> 2))
            if m == 14: g(h_or(sb, 3)); g(h_cmp())
            if m in (3, 11): g(mf_sum(sb ^ 1, m >> 3))
        else:
            if m <= 14: g(h_add(m + 1))
            if m in CVT_AT: g(h_cvt(sb, CVT_AT[m]))
            if m == 14: g(h_cmp())
        if m == 15:
            h_branch(sb)
            g(h_exp(sb ^ 1, 1))
    def sm_step(sb, m):
        out = [h_exp(sb, m + 2)] if m <= 13 else ["s_nop 0"]
        if not opt.msum: out.append(h_add(m + 1))
        if m % 2 == 0: out.append(h_cvt(sb, m >> 1))
        return out
    WAITS = {4: {0: 1, 2: 4, 5: 8, 9: 12, 13: 16, 17: 20, 21: 24, 25: 27},
             2: {0: 0, **{n: n + 1 for n in range(1, 28, 2)}}}[opt.wgrp]
    POST = [[0, 1], [2, 3], [4, 5], [6]]
    SO = {0: 0, 1: SLOT, 2: 0}
    UPD = {1: 2*SLOT, 2: -2*SLOT}
    lq = LQ()
    for s in range(8):
        lq.issue(s, [f"ds_read_b128 {vr(QF+4*s,4)}, v{QA} offset:{s*1024}"] + rd_k(s, 0, s))
    for r in range(16): g(f"v_mov_b32 v{O+r}, 0")
    for s in range(8):
        lq.need(s)
        g(mf_qk(s, 0, s, czero=True))
        if s >= 1: lq.issue(8+s-1, rd_k(8+s-1, 1, s-1))
        for r in range(5):
            if s < 7: g(f"v_mov_b32 v{O+16+5*s+r}, 0")
    lq.issue(15, rd_k(15, 1, 7))
    g("s_barrier")
    stamp(3)
    for r in range(51, 64): g(f"v_mov_b32 v{O+r}, 0")
    if opt.msum:
        for r in range(4): g(f"v_mov_b32 v{LS+r}, 0")
    rowmax(0, VM, VT0)
    for r in range(16): g(f"v_sub_f32 v{NEGM+r}, 0, v{VM}")
    for r in range(16): g(f"v_sub_f32 v{SB+r}, v{SB+r}, v{VM}")
    g(h_exp(0, 0)); g(h_exp(0, 1))
    for s in range(8):
        lq.need(8+s)
        g(mf_qk(8+s, 1, s))
        for m in (2*s, 2*s+1):
            if m <= 14:
                for x in sm_step(0, m): g(x)
    if not opt.msum: g(f"v_mov_b32 v{VL}, v{VTS}")
    g(f"s_mov_b32 s{S_I}, 0")
    g("s_barrier")
    lq = LQ()
    for f in range(7): lq.issue(f, hdesc(f, SO[1])[0])
    g(h_exp(1, 0)); g(h_exp(1, 1))
    g("s_branch L_mid")
    g.raw(".p2align 3")
    g.lab("L_top")
    for it in range(3):
        slot = (it + 1) % 3
        so = SO[slot]
        lq = LQ()
        for n in range(28, 32):
            g(hdesc(n, 0)[1])
            h_gap(0, n - 16, lambda: [lq.issue(f, hdesc(f, so)[0]) for f in POST[n - 28]])
        if it == 0: g.lab("L_mid")
        upd = []
        if slot in UPD:
            upd = [f"v_add_u32 v{KA+k}, {u32(UPD[slot])}, v{KA+k}" for k in range(8)] + \
                  [f"v_add_u32 v{VA+d}, {u32(UPD[slot])}, v{VA+d}" for d in range(4)]
        def rds(n):
            if n + 7 < 32: lq.issue(n + 7, hdesc(n + 7, so)[0])
            if n + 1 in WAITS: lq.need(WAITS[n + 1])
            if n == 27: g("s_waitcnt lgkmcnt(0)")
            if opt.msum and n == 14: g("s_nop 0")
        lq.need(WAITS[0])
        for n in range(28):
            if opt.pad: g(f"s_nop {opt.pad-1}")
            g(hdesc(n, so)[1])
            h_gap(1 if n < 16 else 0, n & 15, lambda: rds(n))
            if upd:
                if n in (17, 19, 21): g(upd.pop(0))
                if n in (25, 26, 27):
                    for _ in range(3): g(upd.pop(0))
            if n in XB: g("s_barrier")
            if it == 2 and n == 25:
                g(f"s_add_u32 s{S_I}, s{S_I}, 1")
                g(f"s_cmp_lt_u32 s{S_I}, 5")
        g("s_barrier")
    g("s_cbranch_scc1 L_top")
    stamp(4)
    lq = LQ()
    def edesc(e):
        st = e >> 3; idx = e & 7
        if st: idx = (idx & 1)*4 + (idx >> 1)
        return rd_v(e, st, idx >> 2, idx & 3, SO[1]), mf_pv(e, st, idx >> 2, idx & 3)
    for n in range(28, 32):
        g(hdesc(n, 0)[1])
        h_gap(0, n - 16, lambda: [lq.issue(f, edesc(f)[0]) for f in POST[n - 28]])
    for e in range(8):
        lq.need(e)
        g(edesc(e)[1])
        lq.issue(e + 7, edesc(e + 7)[0])
        if e < 4:
            for kk in (2*e, 2*e+1): lq.issue(100 + kk, a_read(kk))
        if e == 6:
            lq.need(107)
            g("s_barrier")
        for m in (2*e, 2*e+1):
            if m <= 14:
                for x in sm_step(1, m): g(x)
        if opt.msum and e in (1, 5): g(mf_sum(0, e >> 2))
    if opt.msum:
        for i in range(4): g(h_or(1, i))
    g(h_cmp())
    h_branch(1)
    g(f"s_lshl_b32 s{S_T0}, s{S_WAVE}, 13")
    def pkreg(kap): return SB + kap*4
    def norm(kap):
        b = O + kap*8
        return [f"v_mul_f32 v{b+r}, v{b+r}, v{VL}" for r in range(8)] + \
               [f"v_cvt_pk_bf16_f32 v{pkreg(kap)+r}, v{b+2*r}, v{b+2*r+1}" for r in range(4)]
    def owrite(kap): return f"ds_write_b128 v{VT0}, {vr(pkreg(kap),4)} offset:{OFB + kap*1024}"
    if opt.msum:
        g("s_nop 0")
        g(mf_sum(1, 0)); g(mf_sum(1, 1))
        fill = [f"v_add_u32 v{VT0}, s{S_T0}, v{LV}"]
    else:
        g(f"v_mov_b32 v{VT0}, v{VL}")
        fill = [f"v_permlane32_swap_b32 v{VL}, v{VT0}", "s_nop 1", f"v_add_f32 v{VL}, v{VL}, v{VT0}",
                f"v_rcp_f32 v{VL}, v{VL}", f"v_add_u32 v{VT0}, s{S_T0}, v{LV}"]
    for e in range(8, 16):
        lq.need(e)
        g(edesc(e)[1])
        if e + 7 < 16: lq.issue(e + 7, edesc(e + 7)[0])
        if e == 9: fill += ["s_nop 4"]
        if e == 10: fill += ([f"v_rcp_f32 v{VL}, v{LS}", "s_nop 3"] if opt.msum else ["s_nop 4"])
        if e == 11:
            for kap in range(8): fill += norm(kap)[:4] + ([owrite(kap-1)] if kap else []) + norm(kap)[4:]
            fill += [owrite(7)]
        for _ in range(6):
            if fill:
                x = fill.pop(0)
                if x.startswith("ds_"): lq.issue("w", [x])
                else: g(x)
    while fill: g(fill.pop(0))
    g(f"s_cmp_eq_u32 s{S_WAVE}, 4")
    g("s_waitcnt lgkmcnt(0)")
    g("s_cbranch_scc1 L_hi_idle")

    OA, PK, WA2, LV2, TAG, FV, LN2, BF = 0, 40, 52, 53, 54, 56, 57, 96
    g(f"v_add_u32 v{WA2}, {SLOT}, v{WA}")
    g(f"v_mov_b32 v{LV2}, v{LV}")
    g(f"v_mov_b32 v{LN2}, v{VLANE}")
    g(f"v_lshlrev_b32 v{FV}, 28, v{VLANE}")
    g(f"v_lshl_or_b32 v{FV}, v{VLANE}, 24, v{FV}")
    g(f"v_and_b32 v{FV}, 0xf0000000, v{FV}")
    g(f"v_mov_b32 v{LN2+1}, 0")
    g(f"s_mul_i32 s{S_SOFF}, s{S_B}, {96*16*1024}")
    if opt.rot:
        g(f"s_lshl_b32 s{S_T0}, s{S_J}, 2")
        g(f"s_add_u32 s{S_T0}, s{S_T0}, s{S_HKV}")
        g(f"s_lshl_b32 s{S_T1}, s{S_B}, 1")
        g(f"s_add_u32 s{S_T0}, s{S_T0}, s{S_T1}")
        g(f"s_and_b32 s{S_T0}, s{S_T0}, 15")
        g(f"s_lshl_b32 s{S_T0}, s{S_T0}, 10")
    else:
        g(f"s_lshl_b32 s{S_T0}, s{S_HKV}, 10")
    g(f"s_add_u32 s{S_SOFF}, s{S_SOFF}, s{S_T0}")
    g(f"s_lshl_b32 s{S_T0}, s{S_J}, 14")
    g(f"s_add_u32 s{S_SOFF}, s{S_SOFF}, s{S_T0}")
    g(f"s_mul_i32 s{S_FLG}, s{S_B}, {20*128}")
    g(f"s_lshl_b32 s{S_T0}, s{S_J}, 7")
    g(f"s_add_u32 s{S_FLG}, s{S_FLG}, s{S_T0}")
    g(f"s_lshl_b32 s{S_T0}, s{S_HKV}, 3")
    g(f"s_add_u32 s{S_FLG}, s{S_FLG}, s{S_T0}")
    g(f"s_add_u32 s{S_FLG}, s{S_FLG}, {FLAG_OFF}")
    g("s_barrier")
    stamp(5)
    vq = VQ()
    def pk(dst, src):
        return [f"v_cvt_pk_bf16_f32 v{dst}, v{src}, v{src+1}", f"v_cvt_pk_bf16_f32 v{dst+1}, v{src+2}, v{src+3}"]
    def st(p): return [f"buffer_store_dwordx4 {vr(p,4)}, v{LV2}, {sr(S_WS,4)}, s{S_SOFF} offen{opt.stf}", f"s_add_u32 s{S_SOFF}, s{S_SOFF}, {4*16384}"]
    def out_ops(c):
        oa = OA + (c & 1)*20
        ops = pk(PK, oa) + pk(PK+2, oa+4) + st(PK) + pk(PK+4, oa+12) + pk(PK+6, oa+16) + st(PK+4) + pk(PK + 8 + 2*(c & 1), oa+8)
        if (c & 1) or c == 8: ops += st(PK+8)
        return [(c >> 1, x) for x in ops]
    def emit(op):
        p, x = op
        if x == "flag":
            g(vq.wait(f"p{p}"))
            g(f"buffer_store_dwordx2 {vr(TAG,2)}, v{FV}, {sr(S_WS,4)}, s{S_FLG} offen offset:{p*512} sc1")
            vq.add("f")
            return
        if x.startswith("buffer_store"):
            if opt.swin: g(f"s_waitcnt vmcnt({opt.swin - 1})")
            vq.add(f"p{p}")
            if opt.fakeg and p < 4:
                g(f"s_and_b32 s{S_T0}, s{S_HKV}, {opt.fakeg-1}")
                g(f"s_cmp_eq_u32 s{S_T0}, {p % opt.fakeg}")
                g(f"s_cselect_b32 s{S_T0}, s{S_SOFF}, 0x20000000")
                x = x.replace(f"s{S_SOFF} offen", f"s{S_T0} offen")
        g(x)
    lq = LQ()
    def bread(k): return [f"ds_read_b128 {vr(BF+(t*8+k)*4,4)}, v{LV2} offset:{OFB + (t*8+k)*1024}" for t in range(5)]
    FLAG_AT = {int(a): int(b) for a, b in (x.split(":") for x in opt.flagat.split(",") if x)}
    for c in range(9):
        oa = OA + (c & 1)*20
        outs = out_ops(c - 1) if c >= 1 else []
        if opt.oexp & 1: outs = [o for o in outs if not o[1].startswith("v_cvt")]
        if opt.oexp & 2 and c < 8:
            for o in outs:
                if o[1].startswith("buffer_store"): vq.add(f"p{o[0]}")
            outs = [o for o in outs if o[1].startswith("v_cvt")]
        if c in FLAG_AT: outs = [(FLAG_AT[c], "flag")] + outs
        if c == 0:
            lq.issue("tag", [f"ds_read_b64 {vr(TAG,2)}, v{LN2+1}"])
            for k in range(2): lq.issue(("b", k), bread(k))
        for k in range(8):
            if c == 0: lq.need(("b", k))
            elif k % opt.owait == 0: lq.need(("a", c, k + opt.owait - 1))
            for t in range(5):
                cc = "0" if k == 0 else vr(oa+t*4,4)
                g(f"v_mfma_f32_16x16x32_bf16 {vr(oa+t*4,4)}, {vr(AB+k*4,4)}, {vr(BF+(t*8+k)*4,4)}, {cc}")
                ra, rb = opt.ords // 10, opt.ords % 10
                if k >= 1 and c < 8 and t in (ra, rb):
                    rr = a_read(k - 1, WA2)
                    lq.issue(("a", c + 1, k - 1), rr if ra == rb else rr[:1] if t == ra else rr[1:])
                if k == 0 and c >= 1 and t in (ra, rb) and opt.olast:
                    rr = a_read(7, WA2)
                    lq.issue(("a", c, 7), rr if ra == rb else rr[:1] if t == ra else rr[1:])
                    if t == rb and c < 8: g(f"v_add_u32 v{WA2}, {u32((CSLOT[c+1] - CSLOT[c])*SLOT)}, v{WA2}")
                if c == 0 and k < 6:
                    lq.issue(("b", k + 2), bread(k + 2)[t:t+1])
                elif t not in (ra, rb) and k >= 2 and outs: emit(outs.pop(0))
                if t == 4 and k == 0 and 1 <= c <= 7:
                    if c <= 3:
                        g("s_waitcnt lgkmcnt(0)"); lq.q = []
                    g("s_barrier")
        if c < 8 and not opt.olast:
            lq.issue(("a", c + 1, 7), a_read(7, WA2))
            if c < 7: g(f"v_add_u32 v{WA2}, {u32((CSLOT[c+2] - CSLOT[c+1])*SLOT)}, v{WA2}")
        while outs: emit(outs.pop(0))
        if c == opt.xbar and c > 5: g("s_barrier")
        if c in (0, 2, 4, 5, 6): stamp({0: 11, 2: 12, 4: 13, 5: 14, 6: 15}[c])
    g("s_nop 7")
    for op in out_ops(8): emit(op)
    stamp(6)
    for p in range(5):
        if p not in FLAG_AT.values(): emit((p, "flag"))
    stamp(7)
    g(f"s_lshl_b32 s{S_U}, s{S_J}, 4")
    g(f"s_add_u32 s{S_U}, s{S_U}, s{S_HKV}")
    g(f"s_add_u32 s{S_U}, s{S_U}, 60")
    g(f"v_mov_b32 v0, v{LN2}")
    g(f"v_mov_b32 v4, v{TAG}")
    g(f"v_mov_b32 v5, v{TAG+1}")
    g(f"s_cmp_ge_u32 s{S_U}, 92")
    g("s_cbranch_scc1 L_done")

    g.lab("L_reduce")
    sp, sr_, sa, sb_, sm = S_E, S_E+1, S_E+2, S_E+3, S_E+4
    g(f"s_mul_i32 s{sp}, s{S_U}, 205")
    g(f"s_lshr_b32 s{sp}, s{sp}, 12")
    g(f"s_and_b32 s{S_T3}, s{S_U}, 3")
    g(f"s_mul_i32 s{S_T0}, s{S_B}, 5")
    g(f"s_add_u32 s{S_T0}, s{S_T0}, s{sp}")
    g(f"s_lshl_b32 s{S_T0}, s{S_T0}, 2")
    g(f"s_add_u32 s{S_T0}, s{S_T0}, s{S_T3}")
    g(f"s_lshl_b32 s{S_T0}, s{S_T0}, 7")
    g(f"s_add_u32 s{S_FLG}, s{S_T0}, {FLAG_OFF}")
    g("v_and_b32 v2, 15, v0")
    g("v_lshlrev_b32 v8, 3, v2")
    g(f"buffer_load_dwordx2 v[6:7], v8, {sr(S_WS,4)}, s{S_FLG} offen sc1")
    g(f"s_mul_i32 s{S_T0}, s{sp}, 20")
    g(f"s_sub_u32 s{sr_}, s{S_U}, s{S_T0}")
    g(f"s_lshr_b32 s{sr_}, s{sr_}, 2")
    g(f"s_cmp_ge_u32 s{S_U}, 88")
    g(f"s_cselect_b32 s{sr_}, 4, s{sr_}")
    g(f"s_cselect_b32 s{sm}, 0x10000000, 128") if False else None
    g(f"s_mov_b32 s{sm}, 128")
    g(f"s_cselect_b32 s{sm}, 0x10000000, s{sm}")
    g(f"s_and_b32 s{S_T0}, s{sr_}, 1")
    g(f"s_mul_i32 s{sa}, s{S_T0}, {3*18432}")
    g(f"s_and_b32 s{S_T0}, s{sr_}, 2")
    g(f"s_lshl_b32 s{S_T0}, s{S_T0}, 6")
    g(f"s_add_u32 s{sa}, s{sa}, s{S_T0}")
    g(f"s_cmp_eq_u32 s{sr_}, 4")
    g(f"s_cselect_b32 s{sa}, {2*18432}, s{sa}")
    g(f"s_cselect_b32 s{sm}, s{sm}, 18432")
    g(f"s_lshl_b32 s{S_T0}, s{sp}, 8")
    g(f"s_add_u32 s{sa}, s{sa}, s{S_T0}")
    g(f"s_lshl_b32 s{S_T0}, s{S_T3}, 5")
    g(f"s_add_u32 s{sa}, s{sa}, s{S_T0}")
    g(f"s_mul_i32 s{S_T0}, s{S_B}, 92160")
    g(f"s_add_u32 s{sa}, s{sa}, s{S_T0}")
    g(f"s_add_u32 s{sb_}, s{sa}, s{sm}")
    g(f"s_mul_i32 s{S_SOFF}, s{S_B}, 96")
    g(f"s_add_u32 s{S_SOFF}, s{S_SOFF}, s{S_U}")
    g(f"s_lshl_b32 s{S_SOFF}, s{S_SOFF}, 14")
    g("v_lshlrev_b32 v1, 4, v0")
    g("v_lshrrev_b32 v3, 4, v0")
    g("v_mul_u32_u24 v2, 1152, v2")
    g("v_lshl_add_u32 v2, v3, 3, v2")
    g(f"s_mov_b32 s{sm}, 0xffff0000")
    g(f"s_mov_b32 s{S_I}, 0")
    g.lab("L_poll")
    g("s_waitcnt vmcnt(0)")
    g("v_cmp_ne_u64 vcc, v[6:7], v[4:5]")
    g("s_cbranch_vccz L_ready")
    if opt.psleep: g(f"s_sleep {opt.psleep}")
    g(f"buffer_load_dwordx2 v[6:7], v8, {sr(S_WS,4)}, s{S_FLG} offen sc1")
    g(f"s_add_u32 s{S_I}, s{S_I}, 1")
    g(f"s_cmp_lt_u32 s{S_I}, 0x200000")
    g("s_cbranch_scc1 L_poll")
    g.lab("L_ready")
    stamp(8)
    for p in range(16):
        if p and p % 4 == 0: g(f"s_add_u32 s{S_SOFF}, s{S_SOFF}, 4096")
        if opt.fakeg and p == 16 // opt.fakeg:
            g(f"s_cmp_lt_u32 s{S_U}, 80")
            g(f"s_cselect_b32 s{S_SOFF}, 0x20000000, s{S_SOFF}")
        if opt.rwin and p >= opt.rwin: g(f"s_waitcnt vmcnt({opt.rwin - 1})")
        g(f"buffer_load_dwordx4 {vr(64+4*p,4)}, v1, {sr(S_WS,4)}, s{S_SOFF} offen offset:{(p%4)*1024} sc1")
    for p in range(16):
        g(f"s_waitcnt vmcnt({15-p})")
        for r in range(4):
            src = 64 + 4*p + r
            if p == 0:
                g(f"v_lshlrev_b32 v{16+2*r}, 16, v{src}")
                g(f"v_and_b32 v{17+2*r}, s{sm}, v{src}")
            else:
                g(f"v_lshlrev_b32 v12, 16, v{src}")
                g(f"v_and_b32 v13, s{sm}, v{src}")
                g(f"v_add_f32 v{16+2*r}, v{16+2*r}, v12")
                g(f"v_add_f32 v{17+2*r}, v{17+2*r}, v13")
    for r in range(4): g(f"v_cvt_pk_bf16_f32 v{12+r}, v{16+2*r}, v{17+2*r}")
    g(f"buffer_store_dwordx2 v[12:13], v2, {sr(S_OUT,4)}, s{sa} offen")
    g(f"buffer_store_dwordx2 v[14:15], v2, {sr(S_OUT,4)}, s{sb_} offen")
    stamp(9)
    g.lab("L_done")
    if stamps:
        g("s_waitcnt vmcnt(0)")
        g("s_barrier")
        stamp(10)
        g(f"s_cmp_lg_u32 s{S_WAVE}, {opt.stampwave}")
        g("s_cbranch_scc1 L_end")
        g("s_waitcnt lgkmcnt(0)")
        g(f"s_mul_i32 s{S_T0}, s2, {NSTAMP*8}")
        g(f"s_add_u32 s{S_T0}, s{S_T0}, {STAMP_OFF}")
        g("v_mov_b32 v0, 0")
        g("s_mov_b64 exec, 1")
        for i in range(16):
            g(f"v_mov_b32 v2, s{S_STAMP+2*i}")
            g(f"v_mov_b32 v3, s{S_STAMP+2*i+1}")
            g(f"buffer_store_dwordx2 v[2:3], v0, {sr(S_WS,4)}, s{S_T0} offen offset:{8*i}")
            g("s_nop 1")
    g.lab("L_end")
    g("s_endpgm")

    for k, var in enumerate(tramp):
        g.lab(f"L_tr{k}")
        g(f"s_call_b64 s[6:7], L_hrare{var}")
        g(f"s_branch L_bk{k}")
    for sb in range(2):
        Sc = SB + sb*16; Sn = SB + (sb^1)*16
        g.lab(f"L_hrare{sb}")
        g("s_nop 7"); g("s_nop 7")
        rowmax(sb, VT1, VT0)
        g(f"v_max_f32 v{VT1}, 0, v{VT1}")
        g(f"v_sub_f32 v{VT2}, 0, v{VT1}")
        g(f"v_exp_f32 v{VT2}, v{VT2}")
        for r in range(16): g(f"v_sub_f32 v{Sc+r}, v{Sc+r}, v{VT1}")
        for r in range(16): g(f"v_sub_f32 v{Sn+r}, v{Sn+r}, v{VT1}")
        for r in range(16): g(f"v_sub_f32 v{NEGM+r}, v{NEGM+r}, v{VT1}")
        for r in range(64): g(f"v_mul_f32 v{O+r}, v{O+r}, v{VT2}")
        if opt.msum:
            for r in range(4): g(f"v_mul_f32 v{LS+r}, v{LS+r}, v{VT2}")
        else:
            g(f"v_mul_f32 v{VL}, v{VL}, v{VT2}")
        g(h_exp(sb, 0)); g(h_exp(sb, 1))
        for m in range(15):
            for x in sm_step(sb, m): g(x)
        g(h_exp(sb ^ 1, 0))
        g("s_nop 1")
        g("s_setpc_b64 s[6:7]")

    g.lab("L_code_end")
    g.raw('.section .rodata,"a"')
    g.raw(".p2align 6")
    g.raw(f".amdhsa_kernel {NAME}_kernel")
    for l in [".amdhsa_next_free_vgpr 256", ".amdhsa_next_free_sgpr 96", ".amdhsa_accum_offset 256",
              ".amdhsa_group_segment_fixed_size 0", ".amdhsa_kernarg_size 64", ".amdhsa_user_sgpr_count 2",
              ".amdhsa_user_sgpr_kernarg_segment_ptr 1", ".amdhsa_system_sgpr_workgroup_id_x 1"]:
        g.raw("  " + l)
    g.raw(".end_amdhsa_kernel")
    return "\n".join(g.L) + "\n"

if __name__ == "__main__":
    ap = argparse.ArgumentParser()
    ap.add_argument("-o", default="k.s")
    for f in ("stamps", "loopstamps", "fakekv", "nont", "nocoop", "list", "qstamps"): ap.add_argument("--" + f, action="store_true")
    for f, d in (("stampwave", 0), ("kvstart", 15), ("kvgap", 1), ("wgrp", 4), ("nb", 1), ("pad", 0), ("msum", 1), ("xcoop", 0), ("wqpre", 2), ("qbar", 19), ("touch", 0), ("qa", 1), ("swin", 0), ("rwin", 0), ("lead", 2), ("win", 10), ("wstep", 1), ("cpf", 1), ("ords", 12), ("olast", 0), ("q1ds", 0), ("oexp", 0), ("owait", 1), ("fakeg", 0), ("rot", 0), ("psleep", 8), ("xbar", 0), ("kvlate", 0), ("nowrite", 0), ("pkmul", 1)):
        ap.add_argument("--" + f, type=int, default=d)
    ap.add_argument("--xs", default="333")
    ap.add_argument("--ksched", default="11110")
    ap.add_argument("--vsched", default="00110")
    ap.add_argument("--stf", default=" sc1")
    ap.add_argument("--flagat", default="5:0,7:1")
    opt = ap.parse_args()
    opt.span = 0x1000
    txt = build(opt)
    if opt.cpf:
        import subprocess, tempfile, os
        d = tempfile.mkdtemp()
        open(d + "/a.s", "w").write(txt)
        subprocess.check_call(["clang", "-x", "assembler", "-target", "amdgcn-amd-amdhsa", "-mcpu=gfx950", "-c", d + "/a.s", "-o", d + "/a.o"])
        sym = {l.split()[-1]: int(l.split()[0], 16) for l in subprocess.check_output(["llvm-objdump", "-t", d + "/a.o"], text=True).splitlines() if ".text" in l}
        opt.span = sym["L_end"] - sym["L_pc0"]
        assert opt.span < 32768
        txt = build(opt)
    open(opt.o, "w").write(txt)
```

```python
import sys, struct, argparse

NAME = "standalone__gqa_block_cached__near_ridge"
def f32bits(x): return struct.unpack("<I", struct.pack("<f", x))[0]

class G:
    def __init__(self): self.L = []
    def __call__(self, s): self.L.append("    " + s)
    def lab(self, s): self.L.append(s + ":")
    def raw(self, s): self.L.append(s)
    def c(self, s): self.L.append("    ; " + s)
def vr(a, n): return f"v[{a}:{a+n-1}]" if n > 1 else f"v{a}"
def sr(a, n): return f"s[{a}:{a+n-1}]" if n > 1 else f"s{a}"
def u32(x): return hex(x & 0xffffffff)

S_X, S_KV, S_DBG, S_WQ, S_WO, S_WS, S_OUT = 8, 12, 16, 20, 24, 28, 32
S_HKV, S_B, S_WAVE = 36, 37, 38
S_T0, S_T1, S_T2, S_T3 = 39, 40, 41, 42
S_I, S_U, S_FLG = 43, 44, 45
S_THR, S_SCALE, S_ISV, S_J = 46, 47, 48, 49
S_E = 50
S_SOFF, S_M0, S_KVBASE, S_KM0 = 58, 59, 60, 61
S_CLK = 62
S_STAMP = 64
SLOT = 32768
XG = [0, SLOT, 2*SLOT]
WQB = 3*SLOT
QB = 5*SLOT - 40960
OFB = 16384
MLB = 32768
TAGA = 57344
FLAG_OFF = 0x6000000
STAMP_OFF = 0x8000000
NSTAMP = 16
HEADER = """; Fused GQA block: out = softmax((x@wq) k^T / sqrt(128)) v @ wo, one workgroup per (batch, kv head).
; and summed by the workgroups of the same batch; hand-off flags carry a per-launch tag kept in d_debug.
"""

def build(opt):
    g = G()
    stamps = opt.stamps
    nt = "" if opt.nont else " nt"
    def stamp(i):
        if opt.qstamps and i in (4, 5, 6, 7, 8, 9, 11, 12, 14, 15): return
        if stamps: g(f"s_memrealtime {sr(S_STAMP+2*i,2)}")
    if opt.list: g.raw(f"; @launch kernel={NAME}_kernel grid=(256,1,1) block=(512,1,1) lds=163840")
    else: g.raw(f"; @launch grid=(256,1,1) block=(512,1,1) lds=163840")
    for l in HEADER.strip().split("\n"): g.raw(l)
    g.raw('.amdgcn_target "amdgcn-amd-amdhsa--gfx950"')
    g.raw(".text")
    g.raw(f".globl {NAME}_kernel")
    g.raw(".p2align 8")
    g.raw(f".type {NAME}_kernel,@function")
    g.lab(f"{NAME}_kernel")
    g("s_cmp_ge_u32 s2, 256")
    g("s_cbranch_scc1 L_end")
    g("s_load_dwordx16 s[64:79], s[0:1], 0")
    if opt.cpf:
        g("s_getpc_b64 s[4:5]")
        g("v_lshlrev_b32 v2, 6, v0")
        g.lab("L_pc0")
        g(f"v_min_u32 v2, {hex(opt.span)}, v2")
        if opt.cpf & 1: g("global_load_dword v255, v2, s[4:5]")
    g("v_lshrrev_b32 v1, 6, v0")
    g(f"s_and_b32 s{S_HKV}, s2, 7")
    g(f"v_readfirstlane_b32 s{S_WAVE}, v1")
    g(f"s_lshl_b32 s{S_HKV}, s{S_HKV}, 1")
    g(f"s_bfe_u32 s{S_T0}, s2, 0x10003")
    g(f"s_add_u32 s{S_HKV}, s{S_HKV}, s{S_T0}")
    g(f"s_lshr_b32 s{S_B}, s2, 4")
    g("v_and_b32 v0, 63, v0")
    g(f"s_lshl_b32 s{S_KVBASE}, s{S_B}, 4")
    g(f"s_add_u32 s{S_KVBASE}, s{S_KVBASE}, s{S_HKV}")
    g(f"s_lshl_b32 s{S_KVBASE}, s{S_KVBASE}, 18")
    if opt.fakekv: g(f"s_mov_b32 s{S_KVBASE}, 0")
    S_KVU = 3
    g(f"s_mov_b32 s{S_KVU}, s{S_KVBASE}")
    if opt.krot:
        g(f"s_mul_i32 s{S_T0}, s2, {opt.krot}")
        g(f"s_lshr_b32 s{S_T0}, s{S_T0}, {opt.kshift}")
        g(f"s_and_b32 s{S_T0}, s{S_T0}, 63")
        g(f"s_lshl_b32 s{S_T0}, s{S_T0}, 12")
        g(f"s_add_u32 s{S_KVBASE}, s{S_KVBASE}, s{S_T0}")
    def kv_adv():
        g(f"s_add_u32 s{S_KVBASE}, s{S_KVBASE}, 4096")
        if opt.krot:
            g(f"s_and_b32 s{S_KVBASE}, s{S_KVBASE}, 0x3ffff")
            g(f"s_or_b32 s{S_KVBASE}, s{S_KVBASE}, s{S_KVU}")
    g(f"s_and_b32 s{S_ISV}, s{S_WAVE}, 1")
    g(f"s_and_b32 s{S_J}, s{S_WAVE}, 3")
    for (d, size) in ((S_X, 1474560), (S_KV, 67108864), (S_WQ, 4718592), (S_WO, 4718592), (S_OUT, 1474560), (S_DBG, 256), (S_WS, 268435456)):
        g(f"s_mov_b32 s{d+2}, {size}")
        g(f"s_mov_b32 s{d+3}, 0x20000")
    g(f"s_cmp_eq_u32 s{S_ISV}, 0")
    g("s_waitcnt lgkmcnt(0)")
    g(f"s_cselect_b32 s{S_KV}, s66, s68")
    g(f"s_cselect_b32 s{S_KV+1}, s67, s69")
    for (d, src) in ((S_X, 64), (S_WQ, 70), (S_WO, 72), (S_OUT, 74), (S_DBG, 76), (S_WS, 78)):
        g(f"s_mov_b32 s{d}, s{src}")
        g(f"s_mov_b32 s{d+1}, s{src+1}")
    stamp(0)

    O, QF, NEGM, SB, PB, FB, TB, KA, VA = 0, 64, 96, 112, 144, 160, 192, 208, 216
    VL, VTS, VM, VT0, VT1, VT2, VLANE, QA = 220, 221, 222, 223, 224, 225, 226, 227
    DV, WV, XV, LV, DUM, WA, QV, W2 = 228, 232, 236, 237, 238, 239, 240, 248
    LS, ONES = 200, 204
    AB = 64
    XB = {1: [], 2: [11], 4: [3, 11, 19]}[opt.nb]
    BIAS = 16.0

    class LQ:
        def __init__(self): self.q = []
        def issue(self, f, instrs):
            for s in instrs:
                g(s); self.q.append(f)
        def need(self, f):
            if f in self.q:
                last = len(self.q) - 1 - self.q[::-1].index(f)
                g(f"s_waitcnt lgkmcnt({min(15, len(self.q) - 1 - last)})")
                self.q = self.q[last+1:]
    class VQ:
        def __init__(self): self.q = []
        def add(self, tag, n=1): self.q += [tag]*n
        def wait(self, tag):
            last = len(self.q) - 1 - self.q[::-1].index(tag)
            s = f"s_waitcnt vmcnt({min(63, len(self.q) - 1 - last)})"
            self.q = self.q[last+1:]
            return s
        def need(self, tag):
            if tag in self.q: g(self.wait(tag))
    def cstamp(i, reg, val):
        if stamps and opt.loopstamps:
            n = len(g.L)
            g(f"s_cmp_lg_u32 s{reg}, {val}")
            g(f"s_cbranch_scc1 L_cs{n}")
            g(f"s_memrealtime {sr(S_STAMP+2*i,2)}")
            g.lab(f"L_cs{n}")

    def wo_setup():
        g(f"v_lshrrev_b32 v{VT0}, 3, v{VLANE}")
        g(f"v_bfe_u32 v{VT1}, v{VLANE}, 4, 1")
        g(f"v_bfe_u32 v{VT2}, v{VLANE}, 1, 2")
        g(f"v_xor_b32 v{VT1}, v{VT1}, v{VT2}")
        g(f"v_lshlrev_b32 v{VT1}, 5, v{VT1}")
        g(f"v_and_b32 v{VT2}, 1, v{VLANE}")
        g(f"v_lshl_add_u32 v{VT1}, v{VT2}, 4, v{VT1}")
        g(f"v_mul_u32_u24 v{VT0}, 1152, v{VT0}")
        g(f"v_add_u32 v{WV}, v{VT0}, v{VT1}")
        for a in range(1, 4): g(f"v_add_u32 v{WV+a}, {a*8192}, v{WV}")
        for a in range(4): g(f"v_xor_b32 v{W2+a}, 64, v{WV+a}")
        g(f"s_mul_i32 s{S_E}, s{S_HKV}, {256*1152}")
    def wo_part(chunk, slot, part):
        v = WV if part < 2 else W2
        g(f"s_mov_b32 m0, {slot*SLOT + part*8192}")
        g(f"s_add_u32 s{S_T0}, s{S_E}, {chunk*128 + part*64*1152}")
        for a in range(4): g(f"buffer_load_dwordx4 v{v+a}, {sr(S_WO,4)}, s{S_T0} offen offset:{a*1024} lds")
        g(f"s_add_u32 m0, m0, 4096")
        g(f"s_add_u32 s{S_T0}, s{S_T0}, {4*9216}")
        for a in range(4): g(f"buffer_load_dwordx4 v{v+a}, {sr(S_WO,4)}, s{S_T0} offen offset:{a*1024} lds")
    def attn_setup(semi=False):
        g(f"s_min_u32 s{S_T0}, s{S_WAVE}, 4")
        g(f"s_lshl_b32 s{S_T0}, s{S_T0}, 13")
        g(f"s_add_u32 s{S_T0}, s{S_T0}, {QB}")
        g(f"v_lshlrev_b32 v{LV}, 4, v{VLANE}")
        g(f"v_add_u32 v{QA}, s{S_T0}, v{LV}")
        g(f"v_and_b32 v{VT1}, 15, v{VLANE}")
        g(f"v_lshrrev_b32 v{VT2}, 5, v{VLANE}")
        g(f"v_xor_b32 v{VT1}, v{VT1}, v{VT2}")
        g(f"v_lshlrev_b32 v{VT1}, 4, v{VT1}")
        g(f"v_and_b32 v{KA}, 31, v{VLANE}")
        g(f"v_lshl_add_u32 v{KA}, v{KA}, 8, v{VT1}")
        g(f"v_bfe_u32 v{VT1}, v{VLANE}, 2, 2")
        g(f"v_lshl_add_u32 v{WA}, v{VT2}, 2, v{VT1}")
        g(f"v_lshlrev_b32 v{VA}, 8, v{WA}")
        g(f"v_lshl_add_u32 v{VA}, v{VT1}, 6, v{VA}")
        g(f"v_bfe_u32 v{VT1}, v{VLANE}, 4, 1")
        g(f"v_lshl_add_u32 v{VA}, v{VT1}, 5, v{VA}")
        g(f"v_lshl_add_u32 v{WA}, v{VT1}, 7, v{WA}")
        g(f"v_and_b32 v{VT0}, 3, v{VLANE}")
        g(f"v_lshl_add_u32 v{VA}, v{VT0}, 3, v{VA}")
        if semi:
            g(f"s_lshl_b32 s{S_T0}, s{S_ISV}, 13")
            g(f"v_add_u32 v{KA}, s{S_T0}, v{KA}")
            g(f"v_add_u32 v{VA}, s{S_T0}, v{VA}")
            g(f"s_lshl_b32 s{S_T0}, s{S_ISV}, 7")
            g(f"v_xor_b32 v{VA}, s{S_T0}, v{VA}")
        for s in range(1, 8): g(f"v_xor_b32 v{KA+s}, {s*32}, v{KA}")
        for dt in range(1, 4): g(f"v_xor_b32 v{VA+dt}, {dt*64}, v{VA}")
        g(f"v_lshlrev_b32 v{WA}, 7, v{WA}")
        g(f"v_bfe_u32 v{VT1}, v{VLANE}, 3, 2")
        g(f"v_xor_b32 v{VT1}, s{S_J}, v{VT1}")
        g(f"v_lshl_add_u32 v{WA}, v{VT1}, 5, v{WA}")
        g(f"v_lshl_add_u32 v{WA}, v{VT0}, 3, v{WA}")
        g(f"v_add_u32 v{WA}, {3*SLOT}, v{WA}")
        if opt.msum:
            g(f"v_lshrrev_b32 v{VT0}, 2, v{VLANE}")
            g(f"v_lshrrev_b32 v{VT1}, 4, v{VLANE}")
            g(f"v_xor_b32 v{VT0}, v{VT0}, v{VT1}")
            g(f"v_and_b32 v{VT0}, 1, v{VT0}")
            g(f"v_subrev_u32 v{VT0}, 1, v{VT0}")
            g(f"v_and_b32 v{ONES}, 0x3f803f80, v{VT0}")
            for r in range(1, 4): g(f"v_mov_b32 v{ONES+r}, v{ONES}")
            g(f"s_mov_b32 s{S_THR}, 0x40004000")
        else:
            g(f"s_mov_b32 s{S_THR}, {hex(f32bits(65536.0))}")

    def fb(f): return FB + (f % 8)*4
    def rd_k(f, st, s, so=0): return [f"ds_read_b128 {vr(fb(f),4)}, v{KA+s} offset:{so + st*8192}"]
    def rd_v(f, st, ks, dt, so=0):
        base = so + 16384 + st*8192 + ks*4096
        return [f"ds_read_b64_tr_b16 {vr(fb(f),2)}, v{VA+dt} offset:{base}",
                f"ds_read_b64_tr_b16 {vr(fb(f)+2,2)}, v{VA+dt} offset:{base+2048}"]
    def mf_qk(f, sb, s, czero=False):
        c = ("0" if czero else vr(NEGM,16)) if s == 0 else vr(SB+sb*16,16)
        return f"v_mfma_f32_32x32x16_bf16 {vr(SB+sb*16,16)}, {vr(fb(f),4)}, {vr(QF+4*s,4)}, {c}"
    def mf_pv(f, pb, ks, dt):
        return f"v_mfma_f32_32x32x16_bf16 {vr(O+dt*16,16)}, {vr(fb(f),4)}, {vr(PB+pb*8+ks*4,4)}, {vr(O+dt*16,16)}"
    def mf_sum(pb, ks): return f"v_mfma_f32_16x16x32_bf16 {vr(LS,4)}, {vr(ONES,4)}, {vr(PB+pb*8+ks*4,4)}, {vr(LS,4)}"
    def a_read(k, wa=WA):
        return [f"ds_read_b64_tr_b16 {vr(AB+k*4,2)}, v{wa} offset:{k*2048}",
                f"ds_read_b64_tr_b16 {vr(AB+k*4+2,2)}, v{wa} offset:{k*2048+1024}"]
    def rowmax(sb, dst, tmp):
        S = SB + sb*16
        g(f"v_max3_f32 v{dst}, v{S}, v{S+1}, v{S+2}")
        for r in range(3, 15, 2): g(f"v_max3_f32 v{dst}, v{dst}, v{S+r}, v{S+r+1}")
        g(f"v_max_f32 v{dst}, v{dst}, v{S+15}")
        g(f"v_mov_b32 v{tmp}, v{dst}")
        g("s_nop 1")
        g(f"v_permlane32_swap_b32 v{dst}, v{tmp}")
        g("s_nop 1")
        g(f"v_max_f32 v{dst}, v{dst}, v{tmp}")
        if opt.msum: g(f"v_add_f32 v{dst}, {hex(f32bits(BIAS))}, v{dst}")
    ORDER = "QQQPQPQPQPQPQPPP"
    def hdesc(n, so):
        st = n >> 4; m = n & 15
        k = ORDER[:m].count(ORDER[m])
        if ORDER[m] == "Q": return rd_k(n, st, k, so), mf_qk(n, st, k)
        return rd_v(n, st, k >> 2, k & 3, so), mf_pv(n, st, k >> 2, k & 3)
    def h_exp(sb, r): return f"v_exp_f32 v{TB + (r % 8)}, v{SB+sb*16+r}"
    def h_add(r):
        if r == 1: return f"v_add_f32 v{VTS}, v{TB}, v{TB+1}"
        return f"v_add_f32 v{VTS}, v{VTS}, v{TB+(r%8)}"
    def h_cvt(sb, k): return f"v_cvt_pk_bf16_f32 v{PB+sb*8+k}, v{TB+((2*k)%8)}, v{TB+((2*k+1)%8)}"
    def h_or(sb, i):
        P = PB + sb*8
        if i == 0: return f"v_or3_b32 v{VTS}, v{P}, v{P+1}, v{P+2}"
        if i < 3: return f"v_or3_b32 v{VTS}, v{VTS}, v{P+2*i+1}, v{P+2*i+2}"
        return f"v_bitop3_b32 v{VTS}, v{VTS}, v{P+7}, s{S_THR} bitop3:0xa8"
    def h_cmp(): return f"v_cmp_ne_u32 vcc, 0, v{VTS}" if opt.msum else f"v_cmp_lt_f32 vcc, s{S_THR}, v{VTS}"
    tramp = []
    def h_branch(var):
        k = len(tramp)
        g(f"s_cbranch_vccnz L_tr{k}")
        g.lab(f"L_bk{k}")
        if not opt.msum: g(f"v_add_f32 v{VL}, v{VL}, v{VTS}")
        tramp.append(var)
    CVT_AT = {1: 0, 3: 1, 5: 2, 9: 3, 10: 4, 11: 5, 13: 6, 15: 7}
    def h_gap(sb, m, reads):
        reads()
        if m <= 13: g(h_exp(sb, m + 2))
        if m == 14: g(h_exp(sb ^ 1, 0))
        if opt.msum:
            if m % 2 == 0: g(h_cvt(sb, m >> 1))
            if m in (5, 9, 13): g(h_or(sb, (m - 5) >> 2))
            if m == 14: g(h_or(sb, 3)); g(h_cmp())
            if m in (3, 11): g(mf_sum(sb ^ 1, m >> 3))
        else:
            if m <= 14: g(h_add(m + 1))
            if m in CVT_AT: g(h_cvt(sb, CVT_AT[m]))
            if m == 14: g(h_cmp())
        if m == 15:
            h_branch(sb)
            g(h_exp(sb ^ 1, 1))
    def sm_step(sb, m):
        out = [h_exp(sb, m + 2)] if m <= 13 else ["s_nop 0"]
        if not opt.msum: out.append(h_add(m + 1))
        if m % 2 == 0: out.append(h_cvt(sb, m >> 1))
        return out
    g(f"v_mov_b32 v{VLANE}, v0")
    g(f"s_cmp_lt_u32 s{S_WAVE}, 4")
    g("s_cbranch_scc1 L_qproj")
    T1, T2, T3 = VT0, VT1, VT2
    S_QOFF, S_QM0 = S_E+5, S_E+6
    g(f"v_lshrrev_b32 v{T1}, 5, v0")
    g(f"v_bfe_u32 v{T2}, v0, 1, 4")
    g(f"v_xor_b32 v{T2}, v{T2}, v{T1}")
    g(f"s_lshl_b32 s{S_T0}, s{S_ISV}, 2")
    g(f"v_xor_b32 v{T2}, s{S_T0}, v{T2}")
    g(f"v_lshlrev_b32 v{T2}, 5, v{T2}")
    g(f"v_and_b32 v{T3}, 1, v0")
    g(f"v_lshl_add_u32 v{T2}, v{T3}, 4, v{T2}")
    g(f"v_lshl_add_u32 v{T2}, v{T1}, 13, v{T2}")
    for p in range(4):
        g(f"v_xor_b32 v{QV+p}, {(2*(p & 1)) << 5}, v{T2}")
        if p: g(f"v_add_u32 v{QV+p}, {p*15360}, v{QV+p}")
    g(f"s_lshl_b32 s{S_QOFF}, s{S_HKV}, 9")
    g(f"s_lshl_b32 s{S_T0}, s{S_J}, 16")
    g(f"s_add_u32 s{S_QOFF}, s{S_QOFF}, s{S_T0}")
    g(f"s_lshl_b32 s{S_QM0}, s{S_J}, 12")
    def wq_issue():
        g(f"s_add_u32 m0, s{S_QM0}, {WQB}")
        g(f"s_add_u32 s{S_QM0}, s{S_QM0}, 16384")
        for p in range(4):
            g(f"buffer_load_dwordx4 v{QV+p}, {sr(S_WQ,4)}, s{S_QOFF} offen offset:{p*1024} lds")
        g(f"s_and_b32 s{S_QM0}, s{S_QM0}, 0xffff")
        g(f"s_add_u32 s{S_QOFF}, s{S_QOFF}, 0x40000")
    wq_issue()
    g(f"s_cmp_lt_u32 s{S_WAVE}, 6")
    g("s_cbranch_scc1 L_wq")

    T1, T2, T3 = VT0, VT1, VT2
    g(f"v_lshrrev_b32 v{T1}, 3, v0")
    g(f"s_lshl_b32 s{S_T1}, s{S_ISV}, 3")
    g(f"v_add_u32 v{T1}, s{S_T1}, v{T1}")
    g(f"v_lshrrev_b32 v{T2}, 1, v{T1}")
    g(f"v_and_b32 v{T3}, 7, v0")
    g(f"v_xor_b32 v{T2}, v{T2}, v{T3}")
    g(f"v_lshlrev_b32 v{T2}, 4, v{T2}")
    g(f"v_mul_u32_u24 v{T1}, 1152, v{T1}")
    g(f"v_add_u32 v{XV}, v{T1}, v{T2}")
    g(f"s_mul_i32 s{S_SOFF}, s{S_B}, 92160")
    g(f"s_lshl_b32 s{S_M0}, s{S_ISV}, 10")
    def x_kp(n):
        g(f"s_add_u32 m0, s{S_M0}, {XG[n//3] + (n % 3)*10240}")
        for t in range(5):
            g(f"s_add_u32 s{S_T2}, s{S_SOFF}, {t*18432 + n*128}")
            g(f"buffer_load_dwordx4 v{XV}, {sr(S_X,4)}, s{S_T2} offen lds")
            if t < 4: g("s_add_u32 m0, m0, 2048")
    vq = VQ()
    XS = [int(c) for c in opt.xs]
    assert sum(XS) == 9
    XS += [0]*(20 - len(XS))
    def x_issue(k):
        for n in range(sum(XS[:k]), sum(XS[:k+1])):
            x_kp(n); vq.add(f"x{n}", 5)
    vq.add("c0", 4)
    x_issue(0)
    for c in range(1, opt.wqpre):
        wq_issue(); vq.add(f"c{c}", 4)
    g("v_lshrrev_b32 v1, 4, v0")
    g("v_and_b32 v2, 15, v0")
    g(f"s_lshl_b32 s{S_T0}, s{S_ISV}, 1")
    g(f"v_lshlrev_b32 v3, s{S_T0}, v1")
    g("v_xor_b32 v3, v3, v2")
    g("v_lshlrev_b32 v3, 4, v3")
    g(f"v_lshl_add_u32 v{DV}, v1, 8, v3")
    g(f"s_cmp_eq_u32 s{S_ISV}, 0")
    for a in range(1, 4):
        g(f"s_cselect_b32 s{S_T0}, {a*64}, 0")
        g(f"v_xor_b32 v{DV+a}, s{S_T0}, v{DV}")
    wo_setup()
    g(f"s_mul_i32 s{S_KM0}, s{S_ISV}, {SLOT + 16384}")
    def kv_issue(bar=False, mid=False):
        g(f"s_mov_b32 m0, s{S_KM0}")
        g(f"s_add_u32 s{S_KM0}, s{S_KM0}, {SLOT}")
        for q in range(4):
            if bar and q and (q * opt.nb) % 4 == 0: g("s_barrier")
            if mid and q == 2: g("s_barrier")
            if q:
                g(f"s_add_u32 m0, m0, 4096")
                kv_adv()
            for a in range(4):
                if bar and opt.win and a % opt.wstep == 0: g(f"s_waitcnt vmcnt({opt.win - opt.wstep})")
                g(f"buffer_load_dwordx4 v{DV+a}, {sr(S_KV,4)}, s{S_KVBASE} offen offset:{a*1024}{nt} lds")
        kv_adv()
        g(f"s_cmp_ge_u32 s{S_KM0}, {3*SLOT}")
        g(f"s_cselect_b32 s{S_T0}, {3*SLOT}, 0")
        g(f"s_sub_u32 s{S_KM0}, s{S_KM0}, s{S_T0}")
    if opt.touch:
        g(f"buffer_load_dword v{DUM}, off, {sr(S_KV,4)}, s{S_KVBASE}{nt}"); vq.add("t")
    stamp(11)
    vq.need("x0")
    stamp(12)
    g("s_barrier")
    for k in range(1, 16):
        for c in (range(opt.wqpre, 4) if k == 1 else [k + 2]):
            wq_issue(); vq.add(f"c{c}", 4)
        x_issue(k)
        if k == 15: break
        vq.need(f"c{k}")
        if k % 2 == 0: vq.need(f"x{k//2}")
        g("s_barrier")
    def kv_halves():
        n0 = len(g.L); kv_issue(mid=True); body = g.L[n0:]; del g.L[n0:]
        k = body.index("    s_barrier")
        return [body[:k], body[k+1:]]
    def kv_start(sched, ntile):
        q = VQ(); q.q = list(vq.q)
        hs = []
        for t in range(ntile): hs += [(t, h) for h in kv_halves()]
        for i, n in enumerate(sched):
            for _ in range(n):
                t, h = hs.pop(0)
                g.L.extend(h); q.add(f"k{t}", 8)
            if i < 3: q.need(f"c{15+i}")
            if i < 4: g("s_barrier")
        assert not hs
    g(f"s_cmp_eq_u32 s{S_ISV}, 1")
    g("s_cbranch_scc1 L_kv_v0")
    kv_start([int(c) for c in opt.ksched], 2)
    g("s_branch L_kv_j")
    g.lab("L_kv_v0")
    kv_start([int(c) for c in opt.vsched], 1)
    g.lab("L_kv_j")
    g(f"s_waitcnt vmcnt(16)")
    g("s_barrier")
    g("s_barrier")
    CSLOT = [3, 4, 2, 3, 4, 0, 1, 2, 3]
    HR = 16
    g(f"s_cmp_eq_u32 s{S_ISV}, 0")
    g("s_cbranch_scc1 L_kv_w")
    for a in range(4): g(f"v_mov_b32 v{WV+a}, v{W2+a}")
    g.lab("L_kv_w")
    g(f"s_mul_i32 s{S_T0}, s{S_ISV}, {128*1152}")
    g(f"s_add_u32 s{S_E}, s{S_E}, s{S_T0}")
    g(f"s_lshl_b32 s{S_M0}, s{S_ISV}, 14")
    g(f"v_lshlrev_b32 v{LV}, 4, v{VLANE}")
    g(f"v_add_u32 v{LV}, s{S_M0}, v{LV}")
    assert opt.nb == 1 and opt.msum
    def wo_half(chunk):
        g(f"s_add_u32 m0, s{S_M0}, {CSLOT[chunk]*SLOT}")
        g(f"s_add_u32 s{S_T0}, s{S_E}, {chunk*128}")
        for q in range(4):
            if q:
                g(f"s_add_u32 m0, m0, 4096")
                g(f"s_add_u32 s{S_T0}, s{S_T0}, {4*9216}")
            for a in range(4): g(f"buffer_load_dwordx4 v{WV+a}, {sr(S_WO,4)}, s{S_T0} offen offset:{a*1024} lds")
    g(f"v_and_b32 v{VT0}, 7, v{VLANE}")
    g(f"v_mul_u32_u24 v{XV}, 1152, v{VT0}")
    g(f"v_and_b32 v{VT0}, 24, v{VLANE}")
    g(f"v_mov_b32 v{VT1}, 0x07050302")
    g(f"v_lshrrev_b32 v{VT0}, v{VT0}, v{VT1}")
    g(f"v_and_b32 v{VT0}, 15, v{VT0}")
    g(f"v_lshl_add_u32 v{XV}, v{VT0}, 7, v{XV}")
    g(f"s_mul_i32 s{S_T0}, s{S_B}, {8*1152}")
    g(f"s_add_u32 s{S_E+2}, s{S_E}, s{S_T0}")
    g(f"s_lshl_b32 s{S_E+1}, s{S_B}, 3")
    vq = VQ(); vq.add("s1", 16)
    wn = [0]
    def win(w):
        if opt.win: g(f"s_waitcnt vmcnt({w - 1})")
    def kv_quad(stage, q, vq, wo=False):
        if q == 0:
            g(f"s_mov_b32 m0, s{S_KM0}")
            g(f"s_add_u32 s{S_KM0}, s{S_KM0}, {SLOT}")
            g(f"s_cmp_ge_u32 s{S_KM0}, {3*SLOT}")
            g(f"s_cselect_b32 s{S_T0}, {3*SLOT}, 0")
            g(f"s_sub_u32 s{S_KM0}, s{S_KM0}, s{S_T0}")
        else:
            g(f"s_add_u32 m0, m0, 4096")
            if not opt.win: g("s_nop 0")
        for a in range(4):
            win(opt.winv if stage == 16 else opt.win if (wo and wn[0] < 48) else opt.win - opt.wred)
            g(f"buffer_load_dwordx4 v{DV+a}, {sr(S_KV,4)}, s{S_KVBASE} offen offset:{a*1024}{nt} lds")
        vq.add(f"s{stage}", 4)
        kv_adv()
        if wo and wn[0] < 48:
            n = wn[0]; wn[0] += 1
            if n % 4 == 0: g(f"s_add_u32 s{S_T1}, s{S_E}, {(4 + 2*(n >> 4))*128 + ((n >> 2) & 3)*4*9216}")
            g(f"buffer_load_dwordx4 {vr(HR + n*4, 4)}, v{WV+(n&3)}, {sr(S_WO,4)}, s{S_T1} offen offset:{(n&3)*1024}")
            vq.add("w")
    LEAD = opt.lead
    for i in range(14):
        if opt.fakeloop and 2 <= i <= 12:
            if i > 2: continue
            g(f"s_mov_b32 s{S_I}, 11")
            g.lab("L_fl")
        if i:
            for q in range(LEAD, 4): kv_quad(i + 1, q, vq, True)
        for q in range(LEAD): kv_quad(i + 2, q, vq, i > 0)
        if i == 13:
            g(f"buffer_load_dword v{DUM}, v{XV}, {sr(S_WO,4)}, s{S_E+2} offen")
            g(f"buffer_load_dwordx2 v[4:5], off, {sr(S_DBG,4)}, s{S_E+1} sc1")
            vq.add("w", 2)
        vq.need(f"s{i+1}")
        g("s_barrier")
        if stamps and opt.loopstamps and i % 2 == 0: stamp((1, 2, 3, 4, 11, 12, 13)[i >> 1])
        if opt.fakeloop and i == 2:
            g(f"s_sub_u32 s{S_I}, s{S_I}, 1")
            g(f"s_cmp_lg_u32 s{S_I}, 0")
            g("s_cbranch_scc1 L_fl")
            vq.q = [x.replace("s4", "s14") for x in vq.q]; wn[0] = 48
    assert wn[0] == 48
    for q in range(LEAD, 4): kv_quad(15, q, vq)
    g(f"s_cmp_eq_u32 s{S_ISV}, 1")
    g("s_cbranch_scc1 L_kv_v")
    g("s_waitcnt vmcnt(0)")
    g("s_barrier")
    g("s_branch L_kv_t")
    g.lab("L_kv_v")
    for q in range(LEAD): kv_quad(16, q, vq)
    vq.need("s15")
    g("s_barrier")
    for q in range(LEAD, 4): kv_quad(16, q, vq)
    g.lab("L_kv_t")
    wo_half(2)
    g("s_waitcnt vmcnt(16)")
    g("s_barrier")
    def wo_put(chunk, first, p0, n):
        if p0 == 0: g(f"v_add_u32 v{DUM}, {CSLOT[chunk]*SLOT}, v{LV}")
        for p in range(p0, p0 + n): g(f"ds_write_b128 v{DUM}, {vr(HR + (first + p)*4, 4)} offset:{p*1024}")
    g(f"s_mov_b32 s{S_I}, 0")
    g.lab("L_tagw")
    g("v_cmp_ne_u32 vcc, 0, v4")
    g("s_cbranch_vccnz L_tagok")
    g(f"buffer_load_dwordx2 v[4:5], off, {sr(S_DBG,4)}, s{S_E+1} sc1")
    g(f"s_add_u32 s{S_I}, s{S_I}, 1")
    g(f"s_cmp_gt_u32 s{S_I}, 0x200000")
    g("s_waitcnt vmcnt(0)")
    g("s_cbranch_scc0 L_tagw")
    g.lab("L_tagok")
    g(f"v_mov_b32 v{DUM}, 0")
    g("s_barrier")
    g(f"ds_write_b64 v{DUM}, v[4:5] offset:{TAGA}")
    wo_half(3)
    g("s_waitcnt vmcnt(16) lgkmcnt(0)")
    g("s_barrier")
    g("s_barrier")
    for st_ in range(6):
        wo_put(4 + (st_ & ~1), 16*(st_ >> 1), 8*(st_ & 1), 8)
        if st_ == 0: g("s_waitcnt vmcnt(0)")
        if st_ & 1: g("s_waitcnt lgkmcnt(0)")
        g("s_barrier")
    g("s_branch L_red_hi")

    g.lab("L_wq")
    if opt.cpf & 2:
        for pg in range(1, 8): g(f"s_load_dword s3, s[4:5], {hex(min(pg*4096, opt.span & ~3))}")
    for _ in range(opt.wqpre - 1): wq_issue()
    attn_setup(True)
    wo_setup()
    stamp(11)
    g(f"s_waitcnt vmcnt({4*(opt.wqpre-1)})")
    stamp(12)
    g("s_barrier")
    for _ in range(4 - opt.wqpre): wq_issue()
    g(f"s_mov_b32 s{S_I}, 1")
    g.lab("L_wq_loop")
    g("s_waitcnt vmcnt(8)")
    g("s_barrier")
    wq_issue()
    g(f"s_add_u32 s{S_I}, s{S_I}, 1")
    g(f"s_cmp_lt_u32 s{S_I}, 15")
    g("s_cbranch_scc1 L_wq_loop")
    for w in (8, 4, 0):
        g(f"s_waitcnt vmcnt({w})")
        g("s_barrier")
    g("s_barrier")
    S_DL, S_WO1, S_WM1 = S_E+1, S_E+2, S_E+3
    g(f"s_cmp_eq_u32 s{S_ISV}, 0")
    g("s_cbranch_scc1 L_sm_w")
    for a in range(4): g(f"v_mov_b32 v{QV+a}, v{W2+a}")
    g("s_branch L_sm_w2")
    g.lab("L_sm_w")
    for a in range(4): g(f"v_mov_b32 v{QV+a}, v{WV+a}")
    g.lab("L_sm_w2")
    g(f"s_mul_i32 s{S_T0}, s{S_ISV}, {128*1152}")
    g(f"s_add_u32 s{S_WO1}, s{S_E}, s{S_T0}")
    g(f"s_lshl_b32 s{S_WM1}, s{S_ISV}, 14")
    g(f"s_add_u32 s{S_WM1}, s{S_WM1}, {3*SLOT}")
    for r in range(64): g(f"v_mov_b32 v{O+r}, 0")
    for r in range(4): g(f"v_mov_b32 v{LS+r}, 0")
    if opt.sprio: g(f"s_setprio {opt.sprio}")
    g("s_barrier")
    lq = LQ()
    for s in range(8):
        lq.issue(s, [f"ds_read_b128 {vr(QF+4*s,4)}, v{QA} offset:{s*1024}"] + rd_k(s, 0, s))
    for s in range(8):
        lq.need(s)
        g(mf_qk(s, 0, s, czero=True))
    g("s_barrier")
    g(f"s_mov_b32 s{S_I}, 0")
    for k in range(8): g(f"v_add_u32 v{KA+k}, {SLOT}, v{KA+k}")
    for d in range(4): g(f"v_add_u32 v{VA+d}, {SLOT}, v{VA+d}")
    rowmax(0, VM, VT0)
    for r in range(16): g(f"v_sub_f32 v{NEGM+r}, 0, v{VM}")
    for r in range(16): g(f"v_sub_f32 v{SB+r}, v{SB+r}, v{VM}")
    g("s_branch L_sm_soft")
    g.lab("L_sm_loop")
    g("s_barrier")
    lq = LQ()
    def sdesc(n):
        if n < 8: return rd_v(n, 0, n >> 2, n & 3), mf_pv(n, 0, n >> 2, n & 3)
        return rd_k(n, 0, n - 8), mf_qk(n, 0, n - 8)
    for n in range(7): lq.issue(n, sdesc(n)[0])
    g(f"s_bitcmp1_b32 {hex(sum(1 << x for x in range(2, 16, 3)))}, s{S_I}")
    g(f"s_mov_b32 s{S_DL}, {SLOT}")
    g(f"s_cselect_b32 s{S_DL}, {u32(-2*SLOT)}, s{S_DL}")
    for n in range(16):
        if n % 2 == 0: lq.need(n + 1)
        g(sdesc(n)[1])
        if n + 7 < 16: lq.issue(n + 7, sdesc(n + 7)[0])
        if 4 <= n < 8: g(f"v_add_u32 v{VA+n-4}, s{S_DL}, v{VA+n-4}")
    for k in range(8): g(f"v_add_u32 v{KA+k}, s{S_DL}, v{KA+k}")
    g(f"s_cmp_gt_u32 s{S_I}, 8")
    g("s_cbranch_scc1 L_sm_now")
    g(f"s_mov_b32 m0, s{S_WM1}")
    g(f"s_cmp_eq_u32 s{S_I}, 4")
    for a in range(4): g(f"buffer_load_dwordx4 v{QV+a}, {sr(S_WO,4)}, s{S_WO1} offen offset:{a*1024} lds")
    g(f"s_cselect_b32 s{S_T0}, {u32(128 - 4*36864)}, 0")
    g(f"s_cselect_b32 s{S_T1}, {SLOT - 16384}, 0")
    g(f"s_add_u32 s{S_WO1}, s{S_WO1}, s{S_T0}")
    g(f"s_add_u32 s{S_WM1}, s{S_WM1}, s{S_T1}")
    g(f"s_add_u32 s{S_WO1}, s{S_WO1}, 36864")
    g(f"s_add_u32 s{S_WM1}, s{S_WM1}, 4096")
    g.lab("L_sm_now")
    g("s_nop 1")
    g.lab("L_sm_soft")
    g(h_exp(0, 0)); g(h_exp(0, 1))
    for m in range(15):
        for x in sm_step(0, m): g(x)
    for i_ in range(4): g(h_or(0, i_))
    g(h_cmp())
    h_branch(0)
    g(f"s_add_u32 s{S_I}, s{S_I}, 1")
    g(f"s_cmp_lt_u32 s{S_I}, 16")
    g(mf_sum(0, 0)); g(mf_sum(0, 1))
    g("s_cbranch_scc1 L_sm_loop")
    ML, W_ = 152, 154
    g(f"v_lshrrev_b32 v{VT1}, 1, v{LV}")
    g(f"s_lshl_b32 s{S_T0}, s{S_ISV}, 9")
    g(f"v_add_u32 v{VT1}, s{S_T0}, v{VT1}")
    g(f"v_xor_b32 v{VT2}, 512, v{VT1}")
    g(f"s_lshl_b32 s{S_T0}, s{S_ISV}, 13")
    g(f"v_add_u32 v{KA}, s{S_T0}, v{LV}")
    g(f"v_xor_b32 v{KA+1}, 8192, v{KA}")
    g(f"s_lshl_b32 s{S_T0}, s{S_ISV}, 12")
    g(f"v_add_u32 v{KA+2}, s{S_T0}, v{LV}")
    g(f"v_mov_b32 v{ML}, v{NEGM}")
    g(f"v_mov_b32 v{ML+1}, v{LS}")
    g(f"ds_write_b64 v{VT1}, {vr(ML,2)} offset:{MLB}")
    g("s_waitcnt vmcnt(0) lgkmcnt(0)")
    g("s_barrier")
    lq = LQ()
    lq.issue("ml", [f"ds_read_b64 {vr(W_,2)}, v{VT2} offset:{MLB}"])
    EO = [(0, 2), (1, 2), (0, 3), (1, 3), (0, 0), (1, 0), (0, 1), (1, 1)]
    for n in range(7): lq.issue(n, rd_v(n, 0, *EO[n]))
    lq.need("ml")
    g(f"v_min_f32 v{VM}, v{ML}, v{W_}")
    g(f"v_sub_f32 v{TB}, v{VM}, v{ML}")
    g(f"v_sub_f32 v{TB+1}, v{VM}, v{W_}")
    g(f"v_exp_f32 v{TB}, v{TB}")
    g(f"v_exp_f32 v{TB+1}, v{TB+1}")
    fill = [f"v_mul_f32 v{VL}, v{TB}, v{ML+1}", f"v_mul_f32 v{VT0}, v{TB+1}, v{W_+1}", f"v_add_f32 v{VL}, v{VL}, v{VT0}",
            f"v_rcp_f32 v{VL}, v{VL}", "s_nop 0", f"v_mul_f32 v{VL}, v{VL}, v{TB}"]
    for n in range(8):
        lq.need(n)
        g(mf_pv(n, 0, *EO[n]))
        if n == 0: lq.issue(7, rd_v(7, 0, *EO[7]))
        if n == 1: fill += ["s_nop 4"]
        if n == 2: fill += ["s_nop 4"]
        if n == 3:
            for q in range(8):
                fill += [f"v_mul_f32 v{O+32+4*q+r}, v{O+32+4*q+r}, v{VL}" for r in range(4)]
                fill += [f"ds_write_b128 v{KA}, {vr(O+32+4*q,4)} offset:{q*1024}"]
        for _ in range(6 if n != 3 else 5):
            if fill:
                x = fill.pop(0)
                if x.startswith("ds_"): lq.issue("w", [x])
                else: g(x)
    while fill: g(fill.pop(0))
    g("s_waitcnt lgkmcnt(0)")
    g("s_barrier")
    for q in range(8): g(f"ds_read_b128 {vr(O+32+4*q,4)}, v{KA+1} offset:{q*1024}")
    for kap in range(4):
        g(f"s_waitcnt lgkmcnt({6 - kap})")
        for r in range(8): g(f"v_fma_f32 v{O+8*kap+r}, v{O+8*kap+r}, v{VL}, v{O+32+8*kap+r}")
        for r in range(4): g(f"v_cvt_pk_bf16_f32 v{SB+4*kap+r}, v{O+8*kap+2*r}, v{O+8*kap+2*r+1}")
        g(f"ds_write_b128 v{KA+2}, {vr(SB+4*kap,4)} offset:{OFB + 4*8192 + kap*1024}")
    g("s_waitcnt lgkmcnt(0)")
    if opt.sprio: g("s_setprio 0")
    g("s_barrier")
    g(f"v_mov_b32 v{DUM}, 0")
    g(f"ds_read_b64 v[4:5], v{DUM} offset:{TAGA}")
    g(f"s_cmp_eq_u32 s{S_ISV}, 1")
    g("s_waitcnt lgkmcnt(0)")
    g("s_barrier")
    g("s_cbranch_scc1 L_sm_c7")
    for part in range(4):
        wo_part(5, CSLOT[5], part)
        if part & 1: g("s_barrier")
    g("s_waitcnt vmcnt(0)")
    for _ in range(4): g("s_barrier")
    g("s_branch L_red_hi")
    g.lab("L_sm_c7")
    for _ in range(2): g("s_barrier")
    for part in range(4):
        wo_part(7, CSLOT[7], part)
        if part & 1: g("s_barrier")
    g("s_waitcnt vmcnt(0)")
    for _ in range(2): g("s_barrier")
    g.lab("L_red_hi")
    if opt.xbar > 5: g("s_barrier")
    g(f"s_lshl_b32 s{S_U}, s{S_J}, 4")
    g(f"s_add_u32 s{S_U}, s{S_U}, s{S_HKV}")
    g(f"v_mov_b32 v0, v{VLANE}")
    g(f"s_cmp_lt_u32 s{S_U}, 60")
    g("s_cbranch_scc1 L_reduce")
    g("s_branch L_done")

    ACC, XF, AF, WA4, XA, QW = 0, 80, 120, 152, 156, 160
    def acc(j, t): return ACC + (j*5 + t)*4
    g.lab("L_qproj")
    g(f"s_cmp_eq_u32 s{S_WAVE}, 3")
    g("s_cbranch_scc1 L_q_tag")
    if not opt.nocoop:
        g(f"s_mul_i32 s{S_T0}, s{S_B}, 36")
        g(f"s_lshl_b32 s{S_T1}, s{S_WAVE}, 4")
        g(f"s_add_u32 s{S_T0}, s{S_T0}, s{S_T1}")
        g(f"s_lshl_b32 s{S_T0}, s{S_T0}, 13")
        g(f"s_lshl_b32 s{S_T1}, s{S_HKV}, 9")
        g(f"s_add_u32 s{S_T0}, s{S_T0}, s{S_T1}")
        g("v_lshrrev_b32 v1, 2, v0")
        g("v_and_b32 v2, 3, v0")
        g("v_lshlrev_b32 v1, 13, v1")
        g("v_lshl_add_u32 v1, v2, 7, v1")
        g(f"buffer_load_dword v255, v1, {sr(S_WQ,4)}, s{S_T0} offen")
    if opt.xcoop:
        g(f"s_mul_i32 s{S_T0}, s{S_B}, 92160")
        g(f"s_and_b32 s{S_T1}, s{S_HKV}, 1")
        g(f"s_mul_i32 s{S_T1}, s{S_T1}, 46080")
        g(f"s_add_u32 s{S_T0}, s{S_T0}, s{S_T1}")
        g(f"s_mul_i32 s{S_T1}, s{S_WAVE}, 15360")
        g(f"s_add_u32 s{S_T0}, s{S_T0}, s{S_T1}")
        g(f"s_add_u32 s{S_T1}, s{S_T0}, 7168")
        g("v_lshlrev_b32 v1, 7, v0")
        g(f"buffer_load_dword v255, v1, {sr(S_X,4)}, s{S_T0} offen")
        g(f"buffer_load_dword v255, v1, {sr(S_X,4)}, s{S_T1} offen")
    g("s_branch L_q_go")
    g.lab("L_q_tag")
    g(f"s_cmp_lg_u32 s{S_HKV}, 0")
    g("s_cbranch_scc1 L_q_go")
    g(f"s_memrealtime {sr(S_CLK,2)}")
    g(f"s_lshl_b32 s{S_T0}, s{S_B}, 3")
    g("v_lshlrev_b32 v254, 8, v0")
    g("s_waitcnt lgkmcnt(0)")
    g(f"s_or_b32 s{S_T1}, s{S_CLK}, 1")
    g(f"v_mov_b32 v252, s{S_T1}")
    g(f"v_mov_b32 v253, s{S_CLK+1}")
    g(f"buffer_store_dwordx2 v[252:253], v254, {sr(S_DBG,4)}, s{S_T0} offen sc1")
    g.lab("L_q_go")
    g("v_and_b32 v1, 15, v0")
    g("v_lshrrev_b32 v2, 4, v0")
    g("v_lshrrev_b32 v3, 1, v1")
    g("v_xor_b32 v3, v3, v2")
    g("v_lshlrev_b32 v3, 4, v3")
    g(f"v_lshl_add_u32 v{XA}, v1, 7, v3")
    g(f"v_xor_b32 v{XA+1}, 64, v{XA}")
    g("v_bfe_u32 v3, v0, 2, 2")
    g("v_lshl_add_u32 v4, v2, 3, v3")
    g("v_lshlrev_b32 v4, 9, v4")
    g("v_bfe_u32 v3, v0, 2, 3")
    g(f"s_lshl_b32 s{S_T0}, s{S_WAVE}, 2")
    g(f"v_xor_b32 v3, s{S_T0}, v3")
    g("v_lshl_add_u32 v4, v3, 5, v4")
    g("v_and_b32 v3, 3, v0")
    g(f"v_lshl_add_u32 v{WA4}, v3, 3, v4")
    g(f"v_add_u32 v{WA4}, {WQB}, v{WA4}")
    for j in range(1, 4): g(f"v_xor_b32 v{WA4+j}, {j*32}, v{WA4}")
    attn_setup()
    g(f"s_lshl_b32 s{S_T0}, s{S_ISV}, 12")
    g(f"s_lshr_b32 s{S_T1}, s{S_WAVE}, 1")
    g(f"s_lshl_b32 s{S_T1}, s{S_T1}, 8")
    g(f"s_add_u32 s{S_T0}, s{S_T0}, s{S_T1}")
    g(f"s_add_u32 s{S_T0}, s{S_T0}, {QB}")
    g(f"v_and_b32 v{QW}, 47, v0")
    g(f"v_lshlrev_b32 v{QW}, 4, v{QW}")
    g(f"v_bfe_u32 v{QW+1}, v0, 4, 1")
    g(f"v_lshl_add_u32 v{QW}, v{QW+1}, 10, v{QW}")
    g(f"v_add_u32 v{QW}, s{S_T0}, v{QW}")
    S_SCALE2 = S_E+2
    g(f"s_mov_b32 s{S_SCALE2}, {hex(f32bits(1.4426950408889634 * 128 ** -0.5))}")
    g(f"s_mov_b32 s{S_SCALE2+1}, s{S_SCALE2}")
    for r in range(80): g(f"v_mov_b32 v{ACC+r}, 0")
    def q_reads(par):
        out = []
        for j in range(4):
            a = AF + par*16 + j*4
            out.append(f"ds_read_b64_tr_b16 {vr(a,2)}, v{WA4+j} offset:{par*16384}")
            out.append(f"ds_read_b64_tr_b16 {vr(a+2,2)}, v{WA4+j} offset:{par*16384+2048}")
        for t in range(5):
            out.append(f"ds_read_b128 {vr(XF+par*20+t*4,4)}, v{XA+par} offset:{t*2048}")
        return out
    def q_mfmas(par, fill, late=(), at=99, order=None):
        k = 0; n = 0
        for j, t in order or [(j, t) for j in range(4) for t in range(5)]:
            if True:
                g(f"v_mfma_f32_16x16x32_bf16 {vr(acc(j,t),4)}, {vr(AF+par*16+j*4,4)}, {vr(XF+par*20+t*4,4)}, {vr(acc(j,t),4)}")
                for _ in range(2):
                    if k < len(fill):
                        g(fill[k]); k += 1
                        if opt.q1ds and fill[k-1].startswith("ds_read"): break
                if n == at:
                    for x in late: g(x)
                n += 1
        while k < len(fill): g(fill[k]); k += 1
    bar = ["s_waitcnt lgkmcnt(0)", "s_barrier"]
    g(f"s_mov_b32 s{S_I}, 0")
    g("s_barrier")
    stamp(1)
    for s in q_reads(0) + bar: g(s)
    g("s_branch L_q_mid")
    g.lab("L_q_top")
    q_mfmas(1, q_reads(0), bar, opt.qbar)
    g.lab("L_q_mid")
    for sl, val in ((4, opt.qa),):
        if opt.qstamps: cstamp(sl, S_I, val)
    upd = [f"s_mov_b32 s{S_T0}, 10240", f"s_bitcmp1_b32 {1<<2 | 1<<5}, s{S_I}", f"s_cselect_b32 s{S_T0}, {SLOT-20480}, s{S_T0}",
           f"s_add_u32 s{S_I}, s{S_I}, 1", f"s_cmp_lt_u32 s{S_I}, 9"] + \
          [f"v_xor_b32 v{WA4+j}, {hex(WQB ^ (WQB+32768))}, v{WA4+j}" for j in range(4)] + \
          [f"v_add_u32 v{XA+s}, s{S_T0}, v{XA+s}" for s in range(2)]
    q_mfmas(0, q_reads(1) + upd, bar, opt.qbar)
    g("s_cbranch_scc1 L_q_top")
    if opt.qstamps: g(f"s_memrealtime {sr(S_STAMP+2*14,2)}")
    outs = []; pend = []
    order = [(j + d, t) for j in (0, 2) for t in range(5) for d in (0, 1)]
    for j in (0, 2):
        for t in range(5):
            a, b = acc(j, t), acc(j + 1, t)
            outs += [f"v_mul_f32 v{a+r}, s{S_SCALE2}, v{a+r}" for r in range(4)]
            outs += pend
            outs += [f"v_mul_f32 v{b+r}, s{S_SCALE2}, v{b+r}" for r in range(4)]
            outs += [f"v_cvt_pk_bf16_f32 v{a}, v{a}, v{a+1}", f"v_cvt_pk_bf16_f32 v{a+1}, v{a+2}, v{a+3}",
                     f"v_cvt_pk_bf16_f32 v{a+2}, v{b}, v{b+1}", f"v_cvt_pk_bf16_f32 v{a+3}, v{b+2}, v{b+3}"]
            pend = [f"v_permlane16_swap_b32 v{a}, v{a+2}", f"v_permlane16_swap_b32 v{a+1}, v{a+3}",
                    f"ds_write_b128 v{QW}, {vr(a,4)} offset:{t*8192 + j*1024}"]
    outs += ["s_nop 1"] + pend
    q_mfmas(1, ["s_nop 0"]*6 + outs, order=order)
    stamp(2)
    g("s_waitcnt vmcnt(0) lgkmcnt(0)")

    g.lab("L_attn")
    g("s_barrier")
    WAITS = {4: {0: 1, 2: 4, 5: 8, 9: 12, 13: 16, 17: 20, 21: 24, 25: 27},
             2: {0: 0, **{n: n + 1 for n in range(1, 28, 2)}}}[opt.wgrp]
    POST = [[0, 1], [2, 3], [4, 5], [6]]
    SO = {0: 0, 1: SLOT, 2: 0}
    UPD = {1: 2*SLOT, 2: -2*SLOT}
    lq = LQ()
    for s in range(8):
        lq.issue(s, [f"ds_read_b128 {vr(QF+4*s,4)}, v{QA} offset:{s*1024}"] + rd_k(s, 0, s))
    for r in range(16): g(f"v_mov_b32 v{O+r}, 0")
    for s in range(8):
        lq.need(s)
        g(mf_qk(s, 0, s, czero=True))
        if s >= 1: lq.issue(8+s-1, rd_k(8+s-1, 1, s-1))
        for r in range(5):
            if s < 7: g(f"v_mov_b32 v{O+16+5*s+r}, 0")
    lq.issue(15, rd_k(15, 1, 7))
    g("s_barrier")
    stamp(3)
    for r in range(51, 64): g(f"v_mov_b32 v{O+r}, 0")
    if opt.msum:
        for r in range(4): g(f"v_mov_b32 v{LS+r}, 0")
    rowmax(0, VM, VT0)
    for r in range(16): g(f"v_sub_f32 v{NEGM+r}, 0, v{VM}")
    for r in range(16): g(f"v_sub_f32 v{SB+r}, v{SB+r}, v{VM}")
    g(h_exp(0, 0)); g(h_exp(0, 1))
    for s in range(8):
        lq.need(8+s)
        g(mf_qk(8+s, 1, s))
        for m in (2*s, 2*s+1):
            if m <= 14:
                for x in sm_step(0, m): g(x)
    if not opt.msum: g(f"v_mov_b32 v{VL}, v{VTS}")
    g(f"s_mov_b32 s{S_I}, 0")
    g("s_barrier")
    lq = LQ()
    for f in range(7): lq.issue(f, hdesc(f, SO[1])[0])
    g(h_exp(1, 0)); g(h_exp(1, 1))
    g("s_branch L_mid")
    g.raw(".p2align 3")
    g.lab("L_top")
    for it in range(3):
        slot = (it + 1) % 3
        so = SO[slot]
        lq = LQ()
        for n in range(28, 32):
            g(hdesc(n, 0)[1])
            h_gap(0, n - 16, lambda: [lq.issue(f, hdesc(f, so)[0]) for f in POST[n - 28]])
        if it == 0: g.lab("L_mid")
        upd = []
        if slot in UPD:
            upd = [f"v_add_u32 v{KA+k}, {u32(UPD[slot])}, v{KA+k}" for k in range(8)] + \
                  [f"v_add_u32 v{VA+d}, {u32(UPD[slot])}, v{VA+d}" for d in range(4)]
        def rds(n):
            if n + 7 < 32: lq.issue(n + 7, hdesc(n + 7, so)[0])
            if n + 1 in WAITS: lq.need(WAITS[n + 1])
            if n == 27: g("s_waitcnt lgkmcnt(0)")
            if opt.msum and n == 14: g("s_nop 0")
        lq.need(WAITS[0])
        for n in range(28):
            if opt.pad: g(f"s_nop {opt.pad-1}")
            g(hdesc(n, so)[1])
            h_gap(1 if n < 16 else 0, n & 15, lambda: rds(n))
            if upd:
                if n in (17, 19, 21): g(upd.pop(0))
                if n in (25, 26, 27):
                    for _ in range(3): g(upd.pop(0))
            if n in XB: g("s_barrier")
            if it == 2 and n == 25:
                g(f"s_add_u32 s{S_I}, s{S_I}, 1")
                g(f"s_cmp_lt_u32 s{S_I}, 5")
        g("s_barrier")
    g("s_cbranch_scc1 L_top")
    stamp(4)
    lq = LQ()
    def edesc(e):
        st = e >> 3; idx = e & 7
        if st: idx = (idx & 1)*4 + (idx >> 1)
        return rd_v(e, st, idx >> 2, idx & 3, SO[1]), mf_pv(e, st, idx >> 2, idx & 3)
    for n in range(28, 32):
        g(hdesc(n, 0)[1])
        h_gap(0, n - 16, lambda: [lq.issue(f, edesc(f)[0]) for f in POST[n - 28]])
    for e in range(8):
        lq.need(e)
        g(edesc(e)[1])
        lq.issue(e + 7, edesc(e + 7)[0])
        if e < 4:
            for kk in (2*e, 2*e+1): lq.issue(100 + kk, a_read(kk))
        for m in (2*e, 2*e+1):
            if m <= 14:
                for x in sm_step(1, m): g(x)
        if opt.msum and e in (1, 5): g(mf_sum(0, e >> 2))
    if opt.msum:
        for i in range(4): g(h_or(1, i))
    g(h_cmp())
    h_branch(1)
    g(f"s_lshl_b32 s{S_T0}, s{S_WAVE}, 13")
    def pkreg(kap): return SB + kap*4
    def norm(kap):
        b = O + kap*8
        return [f"v_mul_f32 v{b+r}, v{b+r}, v{VL}" for r in range(8)] + \
               [f"v_cvt_pk_bf16_f32 v{pkreg(kap)+r}, v{b+2*r}, v{b+2*r+1}" for r in range(4)]
    def owrite(kap): return f"ds_write_b128 v{VT0}, {vr(pkreg(kap),4)} offset:{OFB + kap*1024}"
    if opt.msum:
        g("s_nop 0")
        g(mf_sum(1, 0)); g(mf_sum(1, 1))
        fill = [f"v_add_u32 v{VT0}, s{S_T0}, v{LV}"]
    else:
        g(f"v_mov_b32 v{VT0}, v{VL}")
        fill = [f"v_permlane32_swap_b32 v{VL}, v{VT0}", "s_nop 1", f"v_add_f32 v{VL}, v{VL}, v{VT0}",
                f"v_rcp_f32 v{VL}, v{VL}", f"v_add_u32 v{VT0}, s{S_T0}, v{LV}"]
    for e in range(8, 16):
        lq.need(e)
        g(edesc(e)[1])
        if e + 7 < 16: lq.issue(e + 7, edesc(e + 7)[0])
        if e == 9: fill += ["s_nop 4"]
        if e == 10: fill += ([f"v_rcp_f32 v{VL}, v{LS}", "s_nop 3"] if opt.msum else ["s_nop 4"])
        if e == 11:
            g("s_waitcnt lgkmcnt(0)"); lq.q = []
            g("s_barrier")
            for kap in range(8): fill += norm(kap)[:4] + ([owrite(kap-1)] if kap else []) + norm(kap)[4:]
            fill += [owrite(7)]
        for _ in range(6):
            if fill:
                x = fill.pop(0)
                if x.startswith("ds_"): lq.issue("w", [x])
                else: g(x)
    while fill: g(fill.pop(0))

    OA, PK, WA2, LV2, TAG, FV, LN2, BF = 0, 40, 52, 53, 54, 56, 57, 96
    g(f"v_add_u32 v{WA2}, {SLOT}, v{WA}")
    g(f"v_mov_b32 v{LV2}, v{LV}")
    g(f"v_mov_b32 v{LN2}, v{VLANE}")
    g(f"v_lshlrev_b32 v{FV}, 28, v{VLANE}")
    g(f"v_lshl_or_b32 v{FV}, v{VLANE}, 24, v{FV}")
    g(f"v_and_b32 v{FV}, 0xf0000000, v{FV}")
    g(f"v_mov_b32 v{LN2+1}, 0")
    g(f"s_mul_i32 s{S_SOFF}, s{S_B}, {96*16*1024}")
    if opt.rot:
        g(f"s_lshl_b32 s{S_T0}, s{S_J}, 2")
        g(f"s_add_u32 s{S_T0}, s{S_T0}, s{S_HKV}")
        g(f"s_lshl_b32 s{S_T1}, s{S_B}, 1")
        g(f"s_add_u32 s{S_T0}, s{S_T0}, s{S_T1}")
        g(f"s_and_b32 s{S_T0}, s{S_T0}, 15")
        g(f"s_lshl_b32 s{S_T0}, s{S_T0}, 10")
    else:
        g(f"s_lshl_b32 s{S_T0}, s{S_HKV}, 10")
    g(f"s_add_u32 s{S_SOFF}, s{S_SOFF}, s{S_T0}")
    g(f"s_lshl_b32 s{S_T0}, s{S_J}, 14")
    g(f"s_add_u32 s{S_SOFF}, s{S_SOFF}, s{S_T0}")
    g(f"s_mul_i32 s{S_FLG}, s{S_B}, {20*128}")
    g(f"s_lshl_b32 s{S_T0}, s{S_J}, 7")
    g(f"s_add_u32 s{S_FLG}, s{S_FLG}, s{S_T0}")
    g(f"s_lshl_b32 s{S_T0}, s{S_HKV}, 3")
    g(f"s_add_u32 s{S_FLG}, s{S_FLG}, s{S_T0}")
    g(f"s_add_u32 s{S_FLG}, s{S_FLG}, {FLAG_OFF}")
    g("s_waitcnt lgkmcnt(0)")
    g("s_barrier")
    stamp(5)
    vq = VQ()
    def pk(dst, src):
        return [f"v_cvt_pk_bf16_f32 v{dst}, v{src}, v{src+1}", f"v_cvt_pk_bf16_f32 v{dst+1}, v{src+2}, v{src+3}"]
    def st(p): return [f"buffer_store_dwordx4 {vr(p,4)}, v{LV2}, {sr(S_WS,4)}, s{S_SOFF} offen{opt.stf}", f"s_add_u32 s{S_SOFF}, s{S_SOFF}, {4*16384}"]
    def out_ops(c):
        oa = OA + (c & 1)*20
        ops = pk(PK, oa) + pk(PK+2, oa+4) + st(PK) + pk(PK+4, oa+12) + pk(PK+6, oa+16) + st(PK+4) + pk(PK + 8 + 2*(c & 1), oa+8)
        if (c & 1) or c == 8: ops += st(PK+8)
        return [(c >> 1, x) for x in ops]
    def emit(op):
        p, x = op
        if x == "flag":
            g(vq.wait(f"p{p}"))
            g(f"buffer_store_dwordx2 {vr(TAG,2)}, v{FV}, {sr(S_WS,4)}, s{S_FLG} offen offset:{p*512}{opt.ff}")
            vq.add("f")
            return
        if x.startswith("buffer_store"):
            if opt.swin: g(f"s_waitcnt vmcnt({opt.swin - 1})")
            vq.add(f"p{p}")
            if opt.fakeg and p < 4:
                g(f"s_and_b32 s{S_T0}, s{S_HKV}, {opt.fakeg-1}")
                g(f"s_cmp_eq_u32 s{S_T0}, {p % opt.fakeg}")
                g(f"s_cselect_b32 s{S_T0}, s{S_SOFF}, 0x20000000")
                x = x.replace(f"s{S_SOFF} offen", f"s{S_T0} offen")
        g(x)
    lq = LQ()
    def bread(k): return [f"ds_read_b128 {vr(BF+(t*8+k)*4,4)}, v{LV2} offset:{OFB + (t*8+k)*1024}" for t in range(5)]
    FLAG_AT = {int(a): int(b) for a, b in (x.split(":") for x in opt.flagat.split(",") if x)}
    for c in range(9):
        oa = OA + (c & 1)*20
        outs = out_ops(c - 1) if c >= 1 else []
        if opt.oexp & 1: outs = [o for o in outs if not o[1].startswith("v_cvt")]
        if opt.oexp & 2 and c < 8:
            for o in outs:
                if o[1].startswith("buffer_store"): vq.add(f"p{o[0]}")
            outs = [o for o in outs if o[1].startswith("v_cvt")]
        if c in FLAG_AT: outs = [(FLAG_AT[c], "flag")] + outs
        if c == 0:
            lq.issue("tag", [f"ds_read_b64 {vr(TAG,2)}, v{LN2+1} offset:{TAGA}"])
            for k in range(2): lq.issue(("b", k), bread(k))
        for k in range(8):
            if c == 0: lq.need(("b", k))
            elif k % opt.owait == 0: lq.need(("a", c, k + opt.owait - 1))
            for t in range(5):
                cc = "0" if k == 0 else vr(oa+t*4,4)
                g(f"v_mfma_f32_16x16x32_bf16 {vr(oa+t*4,4)}, {vr(AB+k*4,4)}, {vr(BF+(t*8+k)*4,4)}, {cc}")
                ra, rb = opt.ords // 10, opt.ords % 10
                if k >= 1 and c < 8 and t in (ra, rb):
                    rr = a_read(k - 1, WA2)
                    lq.issue(("a", c + 1, k - 1), rr if ra == rb else rr[:1] if t == ra else rr[1:])
                if k == 0 and c >= 1 and t in (ra, rb) and opt.olast:
                    rr = a_read(7, WA2)
                    lq.issue(("a", c, 7), rr if ra == rb else rr[:1] if t == ra else rr[1:])
                    if t == rb and c < 8: g(f"v_add_u32 v{WA2}, {u32((CSLOT[c+1] - CSLOT[c])*SLOT)}, v{WA2}")
                if c == 0 and k < 6:
                    lq.issue(("b", k + 2), bread(k + 2)[t:t+1])
                elif t not in (ra, rb) and k >= 2 and outs: emit(outs.pop(0))
                if t == 4 and k == 0 and 1 <= c <= 7:
                    if c <= 3:
                        g("s_waitcnt lgkmcnt(0)"); lq.q = []
                    g("s_barrier")
        if c < 8 and not opt.olast:
            lq.issue(("a", c + 1, 7), a_read(7, WA2))
            if c < 7: g(f"v_add_u32 v{WA2}, {u32((CSLOT[c+2] - CSLOT[c+1])*SLOT)}, v{WA2}")
        while outs: emit(outs.pop(0))
        if c == opt.xbar and c > 5: g("s_barrier")
        if c in (0, 2, 4, 5, 6): stamp({0: 11, 2: 12, 4: 13, 5: 14, 6: 15}[c])
    g("s_nop 7")
    for op in out_ops(8): emit(op)
    stamp(6)
    for p in range(5):
        if p not in FLAG_AT.values(): emit((p, "flag"))
    stamp(7)
    g(f"s_lshl_b32 s{S_U}, s{S_J}, 4")
    g(f"s_add_u32 s{S_U}, s{S_U}, s{S_HKV}")
    g(f"s_add_u32 s{S_U}, s{S_U}, 60")
    g(f"v_mov_b32 v0, v{LN2}")
    g(f"v_mov_b32 v4, v{TAG}")
    g(f"v_mov_b32 v5, v{TAG+1}")
    g(f"s_cmp_ge_u32 s{S_U}, 92")
    g("s_cbranch_scc1 L_done")

    g.lab("L_reduce")
    sp, sr_, sa, sb_, sm = S_E, S_E+1, S_E+2, S_E+3, S_E+4
    g(f"s_mul_i32 s{sp}, s{S_U}, 205")
    g(f"s_lshr_b32 s{sp}, s{sp}, 12")
    g(f"s_and_b32 s{S_T3}, s{S_U}, 3")
    g(f"s_mul_i32 s{S_T0}, s{S_B}, 5")
    g(f"s_add_u32 s{S_T0}, s{S_T0}, s{sp}")
    g(f"s_lshl_b32 s{S_T0}, s{S_T0}, 2")
    g(f"s_add_u32 s{S_T0}, s{S_T0}, s{S_T3}")
    g(f"s_lshl_b32 s{S_T0}, s{S_T0}, 7")
    g(f"s_add_u32 s{S_FLG}, s{S_T0}, {FLAG_OFF}")
    g("v_and_b32 v2, 15, v0")
    g("v_lshlrev_b32 v8, 3, v2")
    g(f"buffer_load_dwordx2 v[6:7], v8, {sr(S_WS,4)}, s{S_FLG} offen{opt.pf}")
    g(f"s_mul_i32 s{S_T0}, s{sp}, 20")
    g(f"s_sub_u32 s{sr_}, s{S_U}, s{S_T0}")
    g(f"s_lshr_b32 s{sr_}, s{sr_}, 2")
    g(f"s_cmp_ge_u32 s{S_U}, 88")
    g(f"s_cselect_b32 s{sr_}, 4, s{sr_}")
    g(f"s_cselect_b32 s{sm}, 0x10000000, 128") if False else None
    g(f"s_mov_b32 s{sm}, 128")
    g(f"s_cselect_b32 s{sm}, 0x10000000, s{sm}")
    g(f"s_and_b32 s{S_T0}, s{sr_}, 1")
    g(f"s_mul_i32 s{sa}, s{S_T0}, {3*18432}")
    g(f"s_and_b32 s{S_T0}, s{sr_}, 2")
    g(f"s_lshl_b32 s{S_T0}, s{S_T0}, 6")
    g(f"s_add_u32 s{sa}, s{sa}, s{S_T0}")
    g(f"s_cmp_eq_u32 s{sr_}, 4")
    g(f"s_cselect_b32 s{sa}, {2*18432}, s{sa}")
    g(f"s_cselect_b32 s{sm}, s{sm}, 18432")
    g(f"s_lshl_b32 s{S_T0}, s{sp}, 8")
    g(f"s_add_u32 s{sa}, s{sa}, s{S_T0}")
    g(f"s_lshl_b32 s{S_T0}, s{S_T3}, 5")
    g(f"s_add_u32 s{sa}, s{sa}, s{S_T0}")
    g(f"s_mul_i32 s{S_T0}, s{S_B}, 92160")
    g(f"s_add_u32 s{sa}, s{sa}, s{S_T0}")
    g(f"s_add_u32 s{sb_}, s{sa}, s{sm}")
    g(f"s_mul_i32 s{S_SOFF}, s{S_B}, 96")
    g(f"s_add_u32 s{S_SOFF}, s{S_SOFF}, s{S_U}")
    g(f"s_lshl_b32 s{S_SOFF}, s{S_SOFF}, 14")
    g("v_lshlrev_b32 v1, 4, v0")
    g("v_lshrrev_b32 v3, 4, v0")
    g("v_mul_u32_u24 v2, 1152, v2")
    g("v_lshl_add_u32 v2, v3, 3, v2")
    g(f"s_mov_b32 s{sm}, 0xffff0000")
    if opt.incr:
        s_todo, s_got, s_new = S_T1, S_T2, S_T3
        g(f"s_mov_b32 s{S_I}, 0")
        g(f"s_mov_b32 s{s_todo}, 0xffff")
        g(f"s_mov_b32 s{s_got}, 0")
        for q in range(1, 4): g(f"s_add_u32 s{S_E+4+q}, s{S_SOFF}, {4096*q}")
        for r in range(8): g(f"v_mov_b32 v{16+r}, 0")
        g.lab("L_poll")
        g("s_waitcnt vmcnt(0)")
        g("v_cmp_eq_u64 vcc, v[6:7], v[4:5]")
        g(f"s_and_b32 s{s_new}, vcc_lo, s{s_todo}")
        g("s_cbranch_scc0 L_noload")
        for p in range(16):
            g(f"s_bitcmp0_b32 s{s_new}, {p}")
            g(f"s_cbranch_scc1 L_ld{p}")
            g(f"buffer_load_dwordx4 {vr(64+4*p,4)}, v1, {sr(S_WS,4)}, s{S_SOFF if p < 4 else S_E+4+(p>>2)} offen offset:{(p%4)*1024} sc1")
            g.lab(f"L_ld{p}")
        g.lab("L_noload")
        g(f"s_andn2_b32 s{s_todo}, s{s_todo}, s{s_new}")
        g("s_cbranch_scc0 L_nopoll")
        g(f"buffer_load_dwordx2 v[6:7], v8, {sr(S_WS,4)}, s{S_FLG} offen{opt.pf}")
        g.lab("L_nopoll")
        g(f"s_cmp_eq_u32 s{s_got}, 0")
        g("s_cbranch_scc1 L_noadd")
        for p in range(16):
            g(f"s_bitcmp0_b32 s{s_got}, {p}")
            g(f"s_cbranch_scc1 L_ad{p}")
            for r in range(4):
                src = 64 + 4*p + r
                g(f"v_lshlrev_b32 v12, 16, v{src}")
                g(f"v_and_b32 v13, s{sm}, v{src}")
                g(f"v_add_f32 v{16+2*r}, v{16+2*r}, v12")
                g(f"v_add_f32 v{17+2*r}, v{17+2*r}, v13")
            g.lab(f"L_ad{p}")
        g.lab("L_noadd")
        g(f"s_mov_b32 s{s_got}, s{s_new}")
        g(f"s_add_u32 s{S_I}, s{S_I}, 1")
        g(f"s_cmp_ge_u32 s{S_I}, 0x200000")
        g("s_cbranch_scc1 L_ready")
        g(f"s_or_b32 s{S_T0}, s{s_got}, s{s_todo}")
        g("s_cbranch_scc1 L_poll")
        g.lab("L_ready")
        stamp(8)
    else:
        g(f"s_mov_b32 s{S_I}, 0")
        g.lab("L_poll")
        g("s_waitcnt vmcnt(0)")
        g("v_cmp_ne_u64 vcc, v[6:7], v[4:5]")
        g("s_cbranch_vccz L_ready")
        if opt.psleep: g(f"s_sleep {opt.psleep}")
        g(f"buffer_load_dwordx2 v[6:7], v8, {sr(S_WS,4)}, s{S_FLG} offen{opt.pf}")
        g(f"s_add_u32 s{S_I}, s{S_I}, 1")
        g(f"s_cmp_lt_u32 s{S_I}, 0x200000")
        g("s_cbranch_scc1 L_poll")
        g.lab("L_ready")
        stamp(8)
        for p in range(16):
            if p and p % 4 == 0: g(f"s_add_u32 s{S_SOFF}, s{S_SOFF}, 4096")
            if opt.fakeg and p == 16 // opt.fakeg:
                g(f"s_cmp_lt_u32 s{S_U}, 80")
                g(f"s_cselect_b32 s{S_SOFF}, 0x20000000, s{S_SOFF}")
            if opt.rwin and p >= opt.rwin: g(f"s_waitcnt vmcnt({opt.rwin - 1})")
            g(f"buffer_load_dwordx4 {vr(64+4*p,4)}, v1, {sr(S_WS,4)}, s{S_SOFF} offen offset:{(p%4)*1024} sc1")
        for p in range(16):
            g(f"s_waitcnt vmcnt({15-p})")
            for r in range(4):
                src = 64 + 4*p + r
                if p == 0:
                    g(f"v_lshlrev_b32 v{16+2*r}, 16, v{src}")
                    g(f"v_and_b32 v{17+2*r}, s{sm}, v{src}")
                else:
                    g(f"v_lshlrev_b32 v12, 16, v{src}")
                    g(f"v_and_b32 v13, s{sm}, v{src}")
                    g(f"v_add_f32 v{16+2*r}, v{16+2*r}, v12")
                    g(f"v_add_f32 v{17+2*r}, v{17+2*r}, v13")
    for r in range(4): g(f"v_cvt_pk_bf16_f32 v{12+r}, v{16+2*r}, v{17+2*r}")
    g(f"buffer_store_dwordx2 v[12:13], v2, {sr(S_OUT,4)}, s{sa} offen")
    g(f"buffer_store_dwordx2 v[14:15], v2, {sr(S_OUT,4)}, s{sb_} offen")
    stamp(9)
    g.lab("L_done")
    if stamps:
        g("s_waitcnt vmcnt(0)")
        g("s_barrier")
        stamp(10)
        g(f"s_cmp_lg_u32 s{S_WAVE}, {opt.stampwave}")
        g("s_cbranch_scc1 L_end")
        g("s_waitcnt lgkmcnt(0)")
        g(f"s_mul_i32 s{S_T0}, s2, {NSTAMP*8}")
        g(f"s_add_u32 s{S_T0}, s{S_T0}, {STAMP_OFF}")
        g("v_mov_b32 v0, 0")
        g("s_mov_b64 exec, 1")
        for i in range(16):
            g(f"v_mov_b32 v2, s{S_STAMP+2*i}")
            g(f"v_mov_b32 v3, s{S_STAMP+2*i+1}")
            g(f"buffer_store_dwordx2 v[2:3], v0, {sr(S_WS,4)}, s{S_T0} offen offset:{8*i}")
            g("s_nop 1")
    g.lab("L_end")
    g("s_endpgm")

    for k, var in enumerate(tramp):
        g.lab(f"L_tr{k}")
        g(f"s_call_b64 s[6:7], L_hrare{var}")
        g(f"s_branch L_bk{k}")
    for sb in range(2):
        Sc = SB + sb*16; Sn = SB + (sb^1)*16
        g.lab(f"L_hrare{sb}")
        g("s_nop 7"); g("s_nop 7")
        rowmax(sb, VT1, VT0)
        g(f"v_max_f32 v{VT1}, 0, v{VT1}")
        g(f"v_sub_f32 v{VT2}, 0, v{VT1}")
        g(f"v_exp_f32 v{VT2}, v{VT2}")
        for r in range(16): g(f"v_sub_f32 v{Sc+r}, v{Sc+r}, v{VT1}")
        for r in range(16): g(f"v_sub_f32 v{Sn+r}, v{Sn+r}, v{VT1}")
        for r in range(16): g(f"v_sub_f32 v{NEGM+r}, v{NEGM+r}, v{VT1}")
        for r in range(64): g(f"v_mul_f32 v{O+r}, v{O+r}, v{VT2}")
        if opt.msum:
            for r in range(4): g(f"v_mul_f32 v{LS+r}, v{LS+r}, v{VT2}")
        else:
            g(f"v_mul_f32 v{VL}, v{VL}, v{VT2}")
        g(h_exp(sb, 0)); g(h_exp(sb, 1))
        for m in range(15):
            for x in sm_step(sb, m): g(x)
        g(h_exp(sb ^ 1, 0))
        g("s_nop 1")
        g("s_setpc_b64 s[6:7]")

    g.lab("L_code_end")
    g.raw('.section .rodata,"a"')
    g.raw(".p2align 6")
    g.raw(f".amdhsa_kernel {NAME}_kernel")
    for l in [".amdhsa_next_free_vgpr 256", ".amdhsa_next_free_sgpr 96", ".amdhsa_accum_offset 256",
              ".amdhsa_group_segment_fixed_size 0", ".amdhsa_kernarg_size 64", ".amdhsa_user_sgpr_count 2",
              ".amdhsa_user_sgpr_kernarg_segment_ptr 1", ".amdhsa_system_sgpr_workgroup_id_x 1"]:
        g.raw("  " + l)
    g.raw(".end_amdhsa_kernel")
    return "\n".join(g.L) + "\n"

if __name__ == "__main__":
    ap = argparse.ArgumentParser()
    ap.add_argument("-o", default="k.s")
    for f in ("stamps", "loopstamps", "fakekv", "nont", "nocoop", "list", "qstamps"): ap.add_argument("--" + f, action="store_true")
    for f, d in (("stampwave", 0), ("kvstart", 15), ("kvgap", 1), ("wgrp", 4), ("nb", 1), ("pad", 0), ("msum", 1), ("xcoop", 0), ("wqpre", 2), ("qbar", 19), ("touch", 0), ("qa", 1), ("wred", 2), ("winv", 12), ("sprio", 1), ("now4", 0), ("incr", 0), ("krot", 1), ("kshift", 3), ("fakeloop", 0), ("swin", 0), ("rwin", 0), ("lead", 2), ("win", 10), ("wstep", 1), ("cpf", 1), ("ords", 12), ("olast", 0), ("q1ds", 0), ("oexp", 0), ("owait", 1), ("fakeg", 0), ("rot", 0), ("psleep", 8), ("xbar", 0), ("kvlate", 0), ("nowrite", 0), ("pkmul", 1)):
        ap.add_argument("--" + f, type=int, default=d)
    ap.add_argument("--xs", default="333")
    ap.add_argument("--ksched", default="11110")
    ap.add_argument("--vsched", default="00110")
    ap.add_argument("--pf", default=" sc1")
    ap.add_argument("--ff", default=" sc1")
    ap.add_argument("--stf", default=" sc1")
    ap.add_argument("--flagat", default="5:0,7:1")
    opt = ap.parse_args()
    opt.span = 0x1000
    txt = build(opt)
    if opt.cpf:
        import subprocess, tempfile, os
        d = tempfile.mkdtemp()
        open(d + "/a.s", "w").write(txt)
        subprocess.check_call(["clang", "-x", "assembler", "-target", "amdgcn-amd-amdhsa", "-mcpu=gfx950", "-c", d + "/a.s", "-o", d + "/a.o"])
        sym = {l.split()[-1]: int(l.split()[0], 16) for l in subprocess.check_output(["llvm-objdump", "-t", d + "/a.o"], text=True).splitlines() if ".text" in l}
        opt.span = sym["L_end"] - sym["L_pc0"]
        assert opt.span < 32768
        txt = build(opt)
    open(opt.o, "w").write(txt)
```
